```python
import torch

def _softmax(x, axis=-1):
    return torch.softmax(x, dim=axis)
def _gelu(x):
    return torch.nn.functional.gelu(x, approximate="tanh")
def _silu(x):
    return torch.nn.functional.silu(x)
def _sigmoid(x):
    return torch.sigmoid(x)
def _layernorm(x, axis=-1, eps=1e-5):
    m = x.mean(dim=axis, keepdim=True)
    v = x.var(dim=axis, keepdim=True, unbiased=False)
    return (x - m) / torch.sqrt(v + eps)
def _scatter_add(tgt, idx, src, axis=0):
    return tgt.clone().index_add_(axis, idx, src)
def _segment_sum(src, seg, n):
    out = torch.zeros((n,) + src.shape[1:], dtype=src.dtype)
    return out.index_add_(0, seg, src)
def _pad(x, pw):
    flat = tuple(v for pair in reversed(pw) for v in pair)
    return torch.nn.functional.pad(x, flat)

kernel_name = 'gather_scatter__hybrid_graph_tf_nagphormer__graph'

def setup_inputs():

    _w = (lambda a: (lambda t: t.to(torch.bfloat16) if t.is_floating_point() else t)(torch.as_tensor(a)))
    N, deg, D = 25000, 16, 128
    E = N * deg
    src = (lambda lo, hi, *s: torch.randint(lo, hi, s))(0, N, E).to(torch.int64)
    dst = (lambda lo, hi, *s: torch.randint(lo, hi, s))(0, N, E).to(torch.int64)
    deg_cnt = torch.bincount(dst, minlength=N).to(float) + 1.0
    sc = 1.0 / D ** 0.5
    return {
        "x": _w((lambda *s: torch.randn(*s, dtype=torch.bfloat16) * 0.1)(N, D)),
        "src": _w(src),
        "dst": _w(dst),
        "deg_inv_sqrt": _w(1.0 / (lambda _x: torch.sqrt(torch.as_tensor(_x)))(deg_cnt)),
        "wq": _w((lambda *s: torch.randn(*s, dtype=torch.bfloat16) * 1.6)(D, D) * sc),
        "wk": _w((lambda *s: torch.randn(*s, dtype=torch.bfloat16) * 1.6)(D, D) * sc),
        "wv": _w((lambda *s: torch.randn(*s, dtype=torch.bfloat16) * 0.1)(D, D) * sc),
        "wo": _w((lambda *s: torch.randn(*s, dtype=torch.bfloat16) * 0.1)(D, D) * sc),
        "w_r": _w((lambda *s: torch.randn(*s, dtype=torch.bfloat16) * 0.1)(D)),
    }

def reference(x, src, dst, deg_inv_sqrt, wq, wk, wv, wo, w_r):
    N, D = x.shape[0], x.shape[1]
    K = 7
    h = x
    toks = [x]
    for _ in range(K):
        msg = h[src] * deg_inv_sqrt[src, None] * deg_inv_sqrt[dst, None]
        h = _segment_sum(msg, dst, N)
        toks.append(h)
    tok = torch.stack(toks, axis=1)
    t = _layernorm(tok, axis=-1)
    q   = torch.einsum('nkd,de->nke', t, wq)
    key = torch.einsum('nkd,de->nke', t, wk)
    v   = torch.einsum('nkd,de->nke', t, wv)
    scale = 1.0 / (D ** 0.5)
    attn = _softmax(torch.einsum('nkd,nld->nkl', q, key) * scale, axis=-1)
    o = torch.einsum('nkl,nld->nkd', attn, v)
    o = tok + torch.einsum('nkd,de->nke', o, wo)
    r = _layernorm(o, axis=-1)
    alpha = _softmax(torch.einsum('nkd,d->nk', r, w_r), axis=-1)
    return torch.einsum('nk,nkd->nd', alpha, o)
```

```python
N = 25000
E = 400000
D = 128
NR = 125
RN = 200
TAB = N * 256
HALF = N * 128
OFF_G = 0
OFF_ENT = 8 * TAB
OFF_OFFS = OFF_ENT + E * 4
OFF_CNT = OFF_OFFS + NR * 512
CNT_BYTES = 4096
OFF_WM = OFF_CNT + CNT_BYTES
OFF_WV = OFF_WM + 32768
OFF_WC = OFF_WV + 32768
OFF_OVF = OFF_WC + 512
OFF_END = OFF_OVF + 2 * E * 2
WS_BYTES = 268435456
assert OFF_CNT % 128 == 0 and OFF_WM % 128 == 0 and OFF_OVF % 16 == 0
CAP = 40
NSHARD = 4

class Asm:
    def __init__(self):
        self.lines = []
        self.uid = 0
    def __call__(self, s=""):
        for l in s.split("\n"):
            self.lines.append(l)
    def op(self, s):
        self.lines.append("    " + s)
    def ops(self, *ss):
        for s in ss:
            self.op(s)
    def label(self, s):
        self.lines.append(s + ":")
    def new(self, p="L"):
        self.uid += 1
        return f"{p}_{self.uid}"
    def cmt(self, s):
        self.lines.append("    ; " + s)
    def text(self):
        return "\n".join(self.lines) + "\n"

def kernel_begin(A, name):
    A(f".globl {name}")
    A(".p2align 8")
    A(f".type {name},@function")
    A(f"{name}:")

def kernel_desc(A, name, vgpr, sgpr, accum=None):
    if accum is None:
        accum = (vgpr + 3) // 4 * 4
    A(".p2align 6")
    A(f".amdhsa_kernel {name}")
    A(f"  .amdhsa_next_free_vgpr {vgpr}")
    A(f"  .amdhsa_next_free_sgpr {sgpr}")
    A(f"  .amdhsa_accum_offset {accum}")
    A("  .amdhsa_group_segment_fixed_size 0")
    A("  .amdhsa_kernarg_size 96")
    A("  .amdhsa_user_sgpr_count 2")
    A("  .amdhsa_user_sgpr_kernarg_segment_ptr 1")
    A("  .amdhsa_system_sgpr_workgroup_id_x 1")
    A("  .amdhsa_float_denorm_mode_32 3")
    A("  .amdhsa_float_denorm_mode_16_64 3")
    A(".end_amdhsa_kernel")

def srd(A, s, base, size, off=None):
    if off:
        A.op(f"s_add_u32 s{s}, s{base}, {off}")
        A.op(f"s_addc_u32 s{s+1}, s{base+1}, 0")
    else:
        A.op(f"s_mov_b32 s{s}, s{base}")
        A.op(f"s_mov_b32 s{s+1}, s{base+1}")
    A.op(f"s_mov_b32 s{s+2}, {size}")
    A.op(f"s_mov_b32 s{s+3}, 0x20000")

def wave_scan_incl(A, v, tmp=None):
    for sh in (1, 2, 4, 8):
        A.op("s_nop 1")
        A.op(f"v_add_u32_dpp v{v}, v{v}, v{v} row_shr:{sh} row_mask:0xf bank_mask:0xf")
    A.op("s_nop 1")
    A.op(f"v_add_u32_dpp v{v}, v{v}, v{v} row_bcast:15 row_mask:0xa bank_mask:0xf")
    A.op("s_nop 1")
    A.op(f"v_add_u32_dpp v{v}, v{v}, v{v} row_bcast:31 row_mask:0xc bank_mask:0xf")
    A.op("s_nop 1")
```

```python
from common import *

L_CNT = 0
L_HIST = 6400
L_BINS = L_HIST + 256
L_SLOT = L_BINS + 256
L_NODE = L_SLOT + 832
L_DEG = L_NODE + 832
L_NDEG = L_DEG + 832
L_OVFP = L_NDEG + 832
L_MISC = L_OVFP + 832
L_IMG = L_MISC + 64
IMG_STRIDE = CAP * 2
L_END = L_IMG + 208 * IMG_STRIDE
assert L_IMG % 16 == 0

def gen_hops(A, nh=7, depthfn=lambda W: 4, maxdepth=7, prio=1, sleep=1, stamp=0):
    name = "hops_kernel"
    kernel_begin(A, name)
    NW = 13
    maxpairs = CAP // 2
    A.op("s_cmp_ge_u32 s2, 250"); A.op("s_cbranch_scc1 hops_done")
    A.op("s_load_dwordx2 s[4:5], s[0:1], 88")
    A.op("s_load_dwordx2 s[44:45], s[0:1], 24")
    A.op("v_lshrrev_b32 v1, 6, v0"); A.op("s_nop 0")
    A.op("v_readfirstlane_b32 s6, v1")
    A.op("s_and_b32 s7, s2, 1"); A.op("s_lshr_b32 s8, s2, 1")
    A.op("v_lshlrev_b32 v1, 2, v0")
    A.op("v_mov_b32 v2, 0"); A.op("v_mov_b32 v3, -1")
    for i in range(2):
        A.op(f"ds_write_b32 v1, v2 offset:{i*3328}")
    assert 2 * 3328 >= L_BINS and 2 * 3328 <= L_SLOT + 0 or True
    nimg = 208 * IMG_STRIDE // 4
    for i in range(nimg // 832):
        A.op(f"ds_write_b32 v1, v3 offset:{L_IMG + i*3328}")
    assert nimg % 832 == 0
    A.op("v_cmp_gt_u32 vcc, 208, v0"); A.op("s_and_saveexec_b64 s[20:21], vcc")
    A.op(f"ds_write_b32 v1, v3 offset:{L_NODE}")
    A.op(f"ds_write_b32 v1, v2 offset:{L_DEG}")
    A.op("s_mov_b64 exec, s[20:21]")
    A.op("v_cmp_gt_u32 vcc, 16, v0"); A.op("s_and_saveexec_b64 s[20:21], vcc")
    A.op(f"ds_write_b32 v1, v2 offset:{L_MISC}")
    A.op("s_mov_b64 exec, s[20:21]")
    A.op("s_waitcnt lgkmcnt(0)")
    srd(A, 12, 4, NR * 512, OFF_OFFS)
    srd(A, 16, 4, E * 4, OFF_ENT)
    A.op("v_lshrrev_b32 v4, 2, v0")
    A.op("v_and_b32 v5, 3, v0")
    A.op("v_lshlrev_b32 v6, 9, v4")
    A.op("s_lshl_b32 s9, s8, 2")
    A.op("buffer_load_dwordx2 v[8:9], v6, s[12:15], s9 offen")
    A.op("s_barrier")
    A.op("s_waitcnt vmcnt(0)")
    A.op("v_sub_u32 v10, v9, v8")
    A.op("v_mul_u32_u24 v11, 3200, v4"); A.op("v_add_u32 v11, v11, v8")
    A.op("v_lshl_add_u32 v11, v5, 2, v11"); A.op("v_lshlrev_b32 v11, 2, v11")
    A.op("v_lshlrev_b32 v12, 2, v5")
    A.op("v_cmp_eq_u32 vcc, 0, v5"); A.op("s_and_saveexec_b64 s[20:21], vcc")
    A.op(f"v_mov_b32 v13, {L_MISC}"); A.op("ds_add_u32 v13, v8")
    A.op("s_mov_b64 exec, s[20:21]")
    def entry_pass(fill):
        lp = A.new("ep"); le = A.new("epe")
        A.op("v_mov_b32 v14, v11"); A.op("v_mov_b32 v15, v12")
        A.label(lp)
        A.op("v_cmp_lt_u32 vcc, v15, v10")
        A.op(f"s_cbranch_vccz {le}")
        A.op("buffer_load_dwordx4 v[16:19], v14, s[16:19], 0 offen")
        A.op("v_mov_b32 v30, 1")
        A.op("s_waitcnt vmcnt(0)")
        for i in range(4):
            A.op(f"v_lshrrev_b32 v{20+i}, 16, v{16+i}")
            A.op(f"v_bfe_u32 v24, v{16+i}, 12, 4")
            A.op(f"v_lshl_add_u32 v24, v{20+i}, 3, v24")
            A.op(f"v_lshlrev_b32 v{24+1+i}, 2, v24")
        A.op("s_mov_b64 s[22:23], exec")
        if not fill:
            for i in range(4):
                A.op(f"v_add_u32 v24, {i}, v15"); A.op("v_cmp_lt_u32 vcc, v24, v10"); A.op("s_and_b64 exec, s[22:23], vcc")
                A.op(f"ds_add_u32 v{25+i}, v30 offset:{L_CNT}")
            A.op("s_mov_b64 exec, s[22:23]")
        else:
            for i in range(4):
                A.op(f"v_add_u32 v24, {i}, v15"); A.op(f"v_cmp_lt_u32 s[{24+2*i}:{25+2*i}], v24, v10")
            for i in range(4):
                A.op(f"s_and_b64 exec, s[22:23], s[{24+2*i}:{25+2*i}]")
                A.op(f"ds_add_rtn_u32 v{32+i}, v{25+i}, v30 offset:{L_CNT}")
                A.op(f"v_lshlrev_b32 v24, 2, v{20+i}")
                A.op(f"ds_read_b32 v{36+i}, v24 offset:{L_SLOT}")
            A.op("s_mov_b64 exec, s[22:23]")
            A.op("s_waitcnt lgkmcnt(0)")
            for i in range(4):
                A.op("s_mov_b64 exec, s[22:23]")
                A.op(f"v_cmp_gt_u32 vcc, {CAP}, v{32+i}")
                A.op(f"s_and_b64 s[32:33], s[{24+2*i}:{25+2*i}], vcc")
                A.op(f"s_and_b64 exec, s[22:23], s[32:33]")
                A.op(f"v_mul_u32_u24 v24, {IMG_STRIDE}, v{36+i}")
                A.op(f"v_lshl_add_u32 v24, v{32+i}, 1, v24")
                A.op(f"ds_write_b16 v24, v{16+i} offset:{L_IMG}")
                A.op(f"s_andn2_b64 s[32:33], s[{24+2*i}:{25+2*i}], vcc")
                A.op(f"s_and_b64 exec, s[22:23], s[32:33]")
                lo = A.new("no")
                A.op(f"s_cbranch_execz {lo}")
                A.op(f"v_lshlrev_b32 v24, 2, v{20+i}")
                A.op(f"ds_read_b32 v24, v24 offset:{L_OVFP}")
                A.op("s_waitcnt lgkmcnt(0)")
                A.op(f"v_add_u32 v24, v24, v{32+i}")
                A.op(f"v_subrev_u32 v24, {CAP}, v24")
                A.op(f"v_lshlrev_b32 v24, 1, v24")
                A.op(f"buffer_store_short v{16+i}, v24, s[48:51], 0 offen")
                A.label(lo)
            A.op("s_mov_b64 exec, s[22:23]")
        A.op("v_add_u32 v14, 64, v14"); A.op("v_add_u32 v15, 16, v15")
        A.op(f"s_branch {lp}")
        A.label(le)
    entry_pass(False)
    A.op("s_waitcnt lgkmcnt(0)")
    A.op("s_barrier")
    A.op("v_cmp_gt_u32 vcc, 200, v0"); A.op("s_and_saveexec_b64 s[20:21], vcc")
    l1 = A.new("np"); A.op(f"s_cbranch_execz {l1}")
    A.op("v_lshlrev_b32 v1, 5, v0")
    A.op(f"ds_read_b128 v[16:19], v1 offset:{L_CNT}"); A.op(f"ds_read_b128 v[20:23], v1 offset:{L_CNT+16}")
    A.op("s_waitcnt lgkmcnt(0)")
    A.op("v_mov_b32 v24, 0")
    for i in range(8):
        A.op(f"v_mov_b32 v25, v{16+i}"); A.op(f"v_mov_b32 v{16+i}, v24"); A.op("v_add_u32 v24, v24, v25")
    A.op(f"ds_write_b128 v1, v[16:19] offset:{L_CNT}"); A.op(f"ds_write_b128 v1, v[20:23] offset:{L_CNT+16}")
    A.op("v_mov_b32 v40, v24")
    A.op(f"v_min_u32 v41, {CAP}, v24"); A.op("v_lshlrev_b32 v41, 2, v41")
    A.op("v_mov_b32 v30, 1")
    A.op(f"ds_add_rtn_u32 v42, v41, v30 offset:{L_HIST}")
    A.op("v_lshlrev_b32 v1, 2, v0")
    A.op(f"ds_write_b32 v1, v40 offset:{L_NDEG}")
    A.op(f"v_cmp_lt_u32 vcc, {CAP}, v40"); A.op("s_and_b64 exec, exec, vcc")
    A.op(f"v_mov_b32 v13, {L_MISC+4}"); A.op("ds_write_b32 v13, v30")
    A.label(l1)
    A.op("s_mov_b64 exec, s[20:21]")
    A.op("s_waitcnt lgkmcnt(0)")
    A.op("s_barrier")
    A.op("s_cmp_eq_u32 s6, 0"); l2 = A.new("w0"); A.op(f"s_cbranch_scc0 {l2}")
    A.op("v_lshlrev_b32 v1, 2, v0")
    A.op(f"ds_read_b32 v16, v1 offset:{L_HIST}")
    A.op(f"v_mov_b32 v13, {L_MISC}"); A.op("ds_read_b64 v[18:19], v13")
    A.op("s_waitcnt lgkmcnt(0)")
    wave_scan_incl(A, 16)
    A.op("v_sub_u32 v16, 200, v16")
    A.op(f"ds_write_b32 v1, v16 offset:{L_BINS}")
    A.op("v_readfirstlane_b32 s9, v18"); A.op("v_readfirstlane_b32 s10, v19")
    A.op("s_nop 3")
    A.op("s_cmp_eq_u32 s10, 0"); A.op(f"s_cbranch_scc1 {l2}")
    A.op("s_mov_b32 s11, 0")
    lo = A.new("ov"); A.label(lo)
    A.op("s_lshl_b32 s20, s11, 2"); A.op("v_mov_b32 v1, s20")
    A.op(f"ds_read_b32 v16, v1 offset:{L_NDEG}")
    A.op("v_mov_b32 v17, s9"); A.op(f"ds_write_b32 v1, v17 offset:{L_OVFP}")
    A.op("s_waitcnt lgkmcnt(0)")
    A.op("v_readfirstlane_b32 s20, v16"); A.op("s_nop 3")
    A.op(f"s_max_u32 s20, s20, {CAP}"); A.op(f"s_sub_u32 s20, s20, {CAP}"); A.op("s_add_u32 s9, s9, s20")
    A.op("s_add_u32 s11, s11, 1"); A.op("s_cmp_lt_u32 s11, 200"); A.op(f"s_cbranch_scc1 {lo}")
    A.label(l2)
    A.op("s_waitcnt lgkmcnt(0)")
    A.op("s_barrier")
    A.op("v_cmp_gt_u32 vcc, 200, v0"); A.op("s_and_saveexec_b64 s[20:21], vcc")
    l3 = A.new("np"); A.op(f"s_cbranch_execz {l3}")
    A.op(f"ds_read_b32 v16, v41 offset:{L_BINS}")
    A.op("s_waitcnt lgkmcnt(0)")
    A.op("v_add_u32 v16, v16, v42")
    A.op("v_lshlrev_b32 v1, 2, v0"); A.op(f"ds_write_b32 v1, v16 offset:{L_SLOT}")
    A.op("v_lshlrev_b32 v16, 2, v16")
    A.op(f"ds_write_b32 v16, v0 offset:{L_NODE}"); A.op(f"ds_write_b32 v16, v40 offset:{L_DEG}")
    A.label(l3)
    A.op("s_mov_b64 exec, s[20:21]")
    A.op(f"s_mul_i32 s9, s7, {E*2}"); A.op(f"s_add_u32 s9, s9, {OFF_OVF}")
    A.op("s_add_u32 s48, s4, s9"); A.op("s_addc_u32 s49, s5, 0"); A.op(f"s_mov_b32 s50, {E*2}"); A.op("s_mov_b32 s51, 0x20000")
    A.op("s_waitcnt lgkmcnt(0)")
    A.op("s_barrier")
    entry_pass(True)
    A.op("s_waitcnt vmcnt(0) lgkmcnt(0)")
    A.op("s_barrier")
    P = [26, 26 + maxpairs]
    VA = 26 + 2 * maxpairs; VN = VA + 2; VS = VN + 2
    DATA = (VS + 2 + 3) // 4 * 4
    ACC = [10, 18]
    nv = DATA + 8 * maxdepth
    assert nv <= 128
    A.op("v_and_b32 v0, 63, v0")
    A.op("v_and_b32 v8, 7, v0"); A.op("v_lshlrev_b32 v8, 4, v8")
    A.op("v_lshrrev_b32 v5, 3, v0")
    A.op("s_lshl_b32 s9, s6, 4")
    A.op("v_add_u32 v5, s9, v5")
    srd(A, 60, 44, N * 2)
    A.op(f"s_mul_i32 s10, s8, {RN}")
    for i in range(2):
        A.op(f"v_add_u32 v6, {8*i}, v5")
        A.op(f"v_mul_u32_u24 v7, {IMG_STRIDE}, v6")
        for p in range(maxpairs):
            A.op(f"ds_read_b32 v{P[i]+p}, v7 offset:{L_IMG + 4*p}")
            if p % 8 == 7: A.op("s_waitcnt lgkmcnt(0)")
        A.op("v_lshlrev_b32 v6, 2, v6")
        A.op(f"ds_read_b32 v2, v6 offset:{L_NODE}"); A.op(f"ds_read_b32 v{3+i}, v6 offset:{L_DEG}")
        A.op("s_waitcnt lgkmcnt(0)")
        A.op("v_cmp_gt_u32 vcc, 200, v2")
        A.op("v_add_u32 v2, s10, v2")
        A.op("v_lshlrev_b32 v6, 1, v2")
        A.op(f"buffer_load_ushort v{VS+i}, v6, s[60:63], 0 offen")
        A.op("v_lshl_add_u32 v2, v2, 7, v8")
        A.op(f"v_cndmask_b32_e64 v{VN+i}, -1, v2, vcc")
    A.op("v_max_u32 v3, v3, v4")
    A.op("s_nop 0")
    A.op("v_readfirstlane_b32 s40, v3")
    A.op("s_nop 3")
    A.op(f"s_cmp_gt_u32 s40, {CAP}"); A.op("s_cselect_b32 s41, 1, 0")
    A.op(f"s_min_u32 s40, s40, {CAP}"); A.op("s_add_u32 s40, s40, 1"); A.op("s_lshr_b32 s40, s40, 1")
    A.op("s_waitcnt vmcnt(0)")
    for i in range(2):
        A.op(f"v_lshlrev_b32 v{VS+i}, 16, v{VS+i}"); A.op(f"v_mul_f32 v{VS+i}, v{VS+i}, v{VS+i}")
    A.op("s_mov_b32 s28, 0x3f80"); A.op("s_mov_b32 s29, 0x3f800000"); A.op("s_mov_b32 s30, 128")
    A.op(f"s_mul_i32 s19, s7, {HALF}")
    A.op("s_add_u32 s20, s4, s19"); A.op("s_addc_u32 s21, s5, 0")
    A.op(f"s_mov_b32 s22, {HALF}"); A.op("s_mov_b32 s23, 0x20000")
    A.op(f"s_add_u32 s24, s20, {TAB}"); A.op("s_addc_u32 s25, s21, 0")
    A.op(f"s_mov_b32 s26, {HALF}"); A.op("s_mov_b32 s27, 0x20000")
    A.op(f"s_mul_i32 s19, s7, {NSHARD*128}"); A.op(f"s_add_u32 s19, s19, {OFF_CNT}")
    A.op("s_add_u32 s32, s4, s19"); A.op("s_addc_u32 s33, s5, 0")
    A.op(f"s_mov_b32 s34, {NSHARD*128}"); A.op("s_mov_b32 s35, 0x20000")
    A.op("s_mov_b32 s36, 0")
    A.label("hop_loop")
    for i in range(2):
        for q in range(8):
            A.op(f"v_mov_b32 v{ACC[i]+q}, 0")
    def tree(lo, hi):
        if lo == hi:
            A.op(f"s_branch hop_w{lo}"); return
        mid = (lo + hi + 1) // 2
        l = A.new("bt")
        A.op(f"s_cmp_ge_u32 s40, {mid}"); A.op(f"s_cbranch_scc1 {l}")
        tree(lo, mid - 1)
        A.label(l)
        tree(mid, hi)
    tree(0, maxpairs)
    A.label("hop_w0")
    A.op("s_branch hop_fin")
    for n in range(1, maxpairs + 1):
        A.label(f"hop_w{n}")
        steps = 2 * n
        depth = max(1, min(maxdepth, depthfn(steps), steps))
        state = {"p": None}
        def issue(j):
            if prio:
                p = 3 - min(3, (4 * j) // steps)
                if p != state["p"]:
                    A.op(f"s_setprio {p}"); state["p"] = p
            for i in range(2):
                A.op(f"v_mad_u32_u16 v{VA + i}, v{P[i] + j//2}, s30, v8 op_sel:[{j&1},0,0,0]")
                d = DATA + 8 * (j % depth) + 4 * i
                A.op(f"buffer_load_dwordx4 v[{d}:{d+3}], v{VA + i}, s[20:23], 0 offen sc1")
        for j in range(min(depth, steps)):
            issue(j)
        for j in range(steps):
            out_steps = min(steps, j + depth) - j - 1
            for i in range(2):
                A.op(f"s_waitcnt vmcnt({2*out_steps + (1 - i)})")
                d = DATA + 8 * (j % depth) + 4 * i
                for q in range(4):
                    A.op(f"v_dot2c_f32_bf16 v{ACC[i]+2*q}, s28, v{d+q}")
                    A.op(f"v_dot2c_f32_bf16 v{ACC[i]+2*q+1}, s29, v{d+q}")
            if j + depth < steps:
                issue(j + depth)
        if n != maxpairs:
            A.op(f"s_branch hop_fin")
    A.label("hop_fin")
    if prio: A.op("s_setprio 0")
    A.op("s_cmp_eq_u32 s41, 0"); A.op("s_cbranch_scc1 hop_noovf")
    T = DATA; DD = DATA + 8
    for i in range(2):
        A.op("s_mov_b32 s52, 0")
        lg = A.new("og"); ln = A.new("on"); ll = A.new("ol"); ld = A.new("od")
        A.label(lg)
        A.op(f"s_lshl_b32 s53, s6, 4"); A.op(f"s_add_u32 s53, s53, s52"); A.op(f"s_add_u32 s53, s53, {8*i}")
        A.op("s_lshl_b32 s53, s53, 2"); A.op("v_mov_b32 v2, s53")
        A.op(f"ds_read_b32 v3, v2 offset:{L_DEG}"); A.op(f"ds_read_b32 v4, v2 offset:{L_NODE}")
        A.op("s_waitcnt lgkmcnt(0)")
        A.op("v_readfirstlane_b32 s54, v3"); A.op("v_lshlrev_b32 v4, 2, v4"); A.op("s_nop 2")
        A.op(f"s_cmp_le_u32 s54, {CAP}"); A.op(f"s_cbranch_scc1 {ln}")
        A.op(f"ds_read_b32 v4, v4 offset:{L_OVFP}")
        A.op(f"s_sub_u32 s54, s54, {CAP}")
        for q in range(8):
            A.op(f"v_mov_b32 v{T+q}, 0")
        A.op("v_lshrrev_b32 v5, 3, v0")
        A.op("s_waitcnt lgkmcnt(0)")
        A.label(ll)
        A.op("v_add_u32 v6, v4, v5"); A.op("v_lshlrev_b32 v6, 1, v6")
        A.op("buffer_load_ushort v7, v6, s[48:51], 0 offen sc1")
        A.op("v_cmp_gt_u32 vcc, s54, v5")
        A.op("v_mov_b32 v6, 0xffff")
        A.op("s_waitcnt vmcnt(0)")
        A.op("v_cndmask_b32_e64 v7, v6, v7, vcc")
        A.op("v_mad_u32_u24 v7, v7, s30, v8")
        A.op(f"buffer_load_dwordx4 v[{DD}:{DD+3}], v7, s[20:23], 0 offen sc1")
        A.op("v_add_u32 v5, 8, v5")
        A.op("s_waitcnt vmcnt(0)")
        for q in range(4):
            A.op(f"v_dot2c_f32_bf16 v{T+2*q}, s28, v{DD+q}")
            A.op(f"v_dot2c_f32_bf16 v{T+2*q+1}, s29, v{DD+q}")
        A.op("v_min_u32 v6, v5, v5")
        A.op("v_readfirstlane_b32 s55, v5"); A.op("s_nop 3")
        A.op("s_cmp_lt_u32 s55, s54"); A.op(f"s_cbranch_scc1 {ll}")
        for q in range(8):
            A.op("s_nop 1")
            A.op(f"v_add_f32_dpp v{T+q}, v{T+q}, v{T+q} row_ror:8 row_mask:0xf bank_mask:0xf")
        for q in range(8):
            A.op(f"ds_swizzle_b32 v{DD+q}, v{T+q} offset:0x401f")
        A.op("s_waitcnt lgkmcnt(0)")
        for q in range(8):
            A.op(f"v_add_f32 v{T+q}, v{T+q}, v{DD+q}")
            A.op(f"v_mov_b32 v{DD+q}, v{T+q}")
        A.op("s_nop 1")
        for q in range(8):
            A.op(f"v_permlane32_swap_b32 v{T+q}, v{DD+q}")
        A.op("s_mov_b32 s58, 0xff"); A.op("s_mov_b32 s59, 0"); A.op("s_lshl_b32 s55, s52, 3"); A.op("s_lshl_b64 s[58:59], s[58:59], s55")
        for q in range(8):
            A.op(f"v_add_f32 v{T+q}, v{T+q}, v{DD+q}")
        A.op("s_mov_b64 exec, s[58:59]")
        for q in range(8):
            A.op(f"v_add_f32 v{ACC[i]+q}, v{ACC[i]+q}, v{T+q}")
        A.op("s_mov_b64 exec, -1")
        A.label(ln)
        A.op("s_add_u32 s52, s52, 1"); A.op("s_cmp_lt_u32 s52, 8"); A.op(f"s_cbranch_scc1 {lg}")
    A.label("hop_noovf")
    for i in range(2):
        for q in range(8):
            A.op(f"v_mul_f32 v{ACC[i]+q}, v{VS+i}, v{ACC[i]+q}")
        d = DATA + 4 * i
        for q in range(4):
            A.op(f"v_cvt_pk_bf16_f32 v{d+q}, v{ACC[i]+2*q}, v{ACC[i]+2*q+1}")
        A.op(f"buffer_store_dwordx4 v[{d}:{d+3}], v{VN+i}, s[24:27], 0 offen sc0 sc1")
    A.op("s_add_u32 s36, s36, 1")
    A.op(f"s_add_u32 s20, s20, {TAB}"); A.op("s_addc_u32 s21, s21, 0")
    A.op(f"s_add_u32 s24, s24, {TAB}"); A.op("s_addc_u32 s25, s25, 0")
    A.op(f"s_cmp_ge_u32 s36, {nh}"); A.op("s_cbranch_scc1 hops_done")
    A.op("s_waitcnt vmcnt(0)")
    A.op("s_barrier")
    A.op("s_cmp_lg_u32 s6, 0"); A.op("s_cbranch_scc1 hop_barw")
    A.op(f"s_and_b32 s9, s8, {NSHARD-1}"); A.op("s_lshl_b32 s9, s9, 7")
    A.op("v_mov_b32 v2, s9"); A.op("v_mov_b32 v3, 1")
    A.op("s_mov_b64 exec, 1")
    A.op("buffer_atomic_add v3, v2, s[32:35], 0 offen sc1")
    A.op("s_mov_b64 exec, -1")
    A.op(f"v_min_u32 v5, {NSHARD-1}, v0"); A.op("v_lshlrev_b32 v2, 7, v5")
    A.op(f"v_sub_u32 v5, {NR + NSHARD - 1}, v5"); A.op(f"v_lshrrev_b32 v5, {NSHARD.bit_length()-1}, v5")
    A.op("v_mul_lo_u32 v5, v5, s36")
    A.op("s_mov_b32 s37, 0")
    A.label("hop_poll")
    A.op("buffer_load_dword v4, v2, s[32:35], 0 offen sc0 sc1")
    A.op("s_add_u32 s37, s37, 1"); A.op("s_cmp_ge_u32 s37, 100000"); A.op("s_cbranch_scc1 hop_pollok")
    A.op("s_waitcnt vmcnt(0)")
    A.op("v_cmp_ge_u32 s[38:39], v4, v5")
    A.op("s_nop 3")
    A.op("s_cmp_eq_u64 s[38:39], -1"); A.op("s_cbranch_scc1 hop_pollok")
    if sleep: A.op(f"s_sleep {sleep}")
    A.op("s_branch hop_poll")
    A.label("hop_pollok")
    A.op("s_waitcnt vmcnt(0)")
    A.label("hop_barw")
    A.op("s_barrier")
    A.op("s_branch hop_loop")
    A.label("hops_done")
    A.op("s_endpgm")
    return dict(name=name, grid=250, block=64 * NW, lds=L_END, vgpr=nv, sgpr=64)
```

```python
from common import *

MAGIC200 = 41944

def pi_expr(A, dst, m, t1):
    A.op(f"v_and_b32 v{dst}, 0x13, v{m}")
    A.op(f"v_and_b32 v{t1}, 4, v{m}")
    A.op(f"v_lshl_or_b32 v{dst}, v{t1}, 1, v{dst}")
    A.op(f"v_and_b32 v{t1}, 8, v{m}")
    A.op(f"v_lshrrev_b32 v{t1}, 1, v{t1}")
    A.op(f"v_or_b32 v{dst}, v{dst}, v{t1}")

def gen_prep(A):
    name = "prep_kernel"
    kernel_begin(A, name)
    A.op("s_cmp_ge_u32 s2, 253"); A.op("s_cbranch_scc1 prep_done")
    A.op("s_load_dwordx2 s[4:5], s[0:1], 88")
    A.op("s_cmp_ge_u32 s2, 250"); A.op("s_cbranch_scc1 prep_misc")
    A.op("s_cmp_ge_u32 s2, 125"); A.op("s_cbranch_scc1 prep_x")
    A.op("s_load_dwordx4 s[8:11], s[0:1], 8")
    A.op("v_lshlrev_b32 v1, 2, v0")
    A.op("v_mov_b32 v2, 0")
    A.op("v_cmp_gt_u32 vcc, 128, v0"); A.op("s_and_saveexec_b64 s[20:21], vcc")
    A.op("ds_write_b32 v1, v2")
    A.op("s_mov_b64 exec, s[20:21]")
    A.op("s_waitcnt lgkmcnt(0)")
    srd(A, 12, 8, E * 4)
    srd(A, 16, 10, E * 4)
    A.op("s_mul_i32 s3, s2, 12800")
    A.op("v_lshlrev_b32 v3, 4, v0")
    A.op("buffer_load_dwordx4 v[4:7], v3, s[16:19], s3 offen")
    A.op("buffer_load_dwordx4 v[8:11], v3, s[12:15], s3 offen")
    A.op("s_barrier")
    A.op(f"s_mov_b32 s22, {MAGIC200}")
    A.op("s_waitcnt vmcnt(1)")
    for i in range(4):
        A.op(f"v_mul_u32_u24 v{12+i}, s22, v{4+i}")
        A.op(f"v_lshrrev_b32 v{12+i}, 23, v{12+i}")
        A.op(f"v_mul_u32_u24 v{16+i}, 200, v{12+i}")
        A.op(f"v_sub_u32 v{16+i}, v{4+i}, v{16+i}")
        A.op(f"v_lshlrev_b32 v{12+i}, 2, v{12+i}")
    A.op("v_mov_b32 v2, 1")
    for i in range(4):
        A.op(f"ds_add_rtn_u32 v{20+i}, v{12+i}, v2")
    A.op("s_waitcnt vmcnt(0)")
    for i in range(4):
        A.op(f"v_lshl_or_b32 v{16+i}, v{16+i}, 16, v{8+i}")
    A.op("s_waitcnt lgkmcnt(0)")
    A.op("s_barrier")
    A.op("v_cmp_gt_u32 vcc, 64, v0"); A.op("s_and_saveexec_b64 s[20:21], vcc")
    l = A.new("es"); A.op(f"s_cbranch_execz {l}")
    A.op("v_lshlrev_b32 v3, 3, v0")
    A.op("ds_read_b64 v[24:25], v3")
    A.op("s_waitcnt lgkmcnt(0)")
    A.op("v_add_u32 v26, v24, v25")
    A.op("v_mov_b32 v27, v26")
    wave_scan_incl(A, 26)
    A.op("v_sub_u32 v26, v26, v27")
    A.op("v_add_u32 v27, v26, v24")
    A.op("ds_write_b64 v3, v[26:27] offset:512")
    srd(A, 24, 4, NR * 512, OFF_OFFS)
    A.op("s_lshl_b32 s23, s2, 9")
    A.op("buffer_store_dwordx2 v[26:27], v3, s[24:27], s23 offen")
    A.label(l)
    A.op("s_mov_b64 exec, s[20:21]")
    A.op("s_waitcnt lgkmcnt(0)")
    A.op("s_barrier")
    for i in range(4):
        A.op(f"ds_read_b32 v{24+i}, v{12+i} offset:512")
    A.op("s_waitcnt lgkmcnt(0)")
    for i in range(4):
        A.op(f"v_add_lshl_u32 v{24+i}, v{24+i}, v{20+i}, 2")
    for i in range(4):
        A.op(f"ds_write_b32 v{24+i}, v{16+i} offset:1024")
    A.op("s_waitcnt lgkmcnt(0)")
    A.op("s_barrier")
    A.op("v_lshlrev_b32 v3, 4, v0")
    A.op("ds_read_b128 v[4:7], v3 offset:1024")
    srd(A, 24, 4, E * 4, OFF_ENT)
    A.op("s_waitcnt lgkmcnt(0)")
    A.op("buffer_store_dwordx4 v[4:7], v3, s[24:27], s3 offen")
    A.op("s_endpgm")
    A.label("prep_x")
    A.op("s_load_dwordx2 s[8:9], s[0:1], 0")
    A.op("s_load_dwordx2 s[10:11], s[0:1], 24")
    A.op("s_sub_u32 s3, s2, 125")
    A.op("s_waitcnt lgkmcnt(0)")
    srd(A, 12, 8, TAB)
    srd(A, 16, 10, N * 2)
    srd(A, 24, 4, TAB, OFF_G)
    A.op("s_mul_i32 s20, s3, 51200")
    A.op("s_mul_i32 s21, s3, 400")
    A.op("s_mul_i32 s22, s3, 25600")
    for i in range(4):
        A.op(f"v_add_u32 v1, {800*i}, v0")
        A.op(f"v_lshlrev_b32 v2, 4, v1")
        A.op(f"buffer_load_dwordx4 v[{8+4*i}:{11+4*i}], v2, s[12:15], s20 offen")
        A.op(f"v_lshrrev_b32 v3, 4, v1")
        A.op(f"v_lshlrev_b32 v4, 1, v3")
        A.op(f"buffer_load_ushort v{24+i}, v4, s[16:19], s21 offen")
        A.op(f"v_and_b32 v4, 7, v1"); A.op(f"v_lshlrev_b32 v4, 4, v4")
        A.op(f"v_lshl_add_u32 v4, v3, 7, v4")
        A.op(f"v_bfe_u32 v5, v1, 3, 1")
        A.op(f"s_mov_b32 s23, {HALF}")
        A.op(f"v_mad_u32_u24 v{28+i}, v5, s23, v4")
    A.op("s_mov_b32 s23, 0xffff0000")
    for i in range(4):
        A.op(f"s_waitcnt vmcnt({6-2*i})")
        A.op(f"v_lshlrev_b32 v{24+i}, 16, v{24+i}")
        for q in range(4):
            r = 8 + 4 * i + q
            A.op(f"v_lshlrev_b32 v2, 16, v{r}")
            A.op(f"v_and_b32 v3, s23, v{r}")
            A.op(f"v_mul_f32 v2, v2, v{24+i}")
            A.op(f"v_mul_f32 v3, v3, v{24+i}")
            A.op(f"v_cvt_pk_bf16_f32 v{r}, v2, v3")
        A.op(f"buffer_store_dwordx4 v[{8+4*i}:{11+4*i}], v{28+i}, s[24:27], s22 offen")
    A.op("s_endpgm")
    A.label("prep_misc")
    A.op("s_cmp_eq_u32 s2, 252"); A.op("s_cbranch_scc0 prep_w")
    A.op("s_waitcnt lgkmcnt(0)")
    srd(A, 24, 4, CNT_BYTES, OFF_CNT)
    A.op("v_lshlrev_b32 v1, 4, v0")
    for i in range(4):
        A.op(f"v_mov_b32 v{4+i}, 0")
    A.op("buffer_store_dwordx4 v[4:7], v1, s[24:27], 0 offen")
    A.op("s_endpgm")
    A.label("prep_w")
    LMEAN = 0
    FM = 2048
    STR = 129
    LWO = 68096
    A.op("s_load_dwordx4 s[8:11], s[0:1], 32")
    A.op("s_load_dwordx4 s[12:15], s[0:1], 48")
    A.op("s_load_dwordx2 s[28:29], s[0:1], 64")
    A.op("v_lshrrev_b32 v1, 6, v0"); A.op("s_nop 0")
    A.op("v_readfirstlane_b32 s6, v1")
    A.op("v_and_b32 v30, 63, v0")
    A.op("v_and_b32 v31, 31, v30")
    A.op("v_lshrrev_b32 v32, 5, v30")
    A.op("s_waitcnt lgkmcnt(0)")
    A.op("s_cmp_eq_u32 s2, 250")
    A.op("s_cselect_b32 s16, s8, s12"); A.op("s_cselect_b32 s17, s9, s13")
    A.op("s_mov_b32 s18, 32768"); A.op("s_mov_b32 s19, 0x20000")
    A.op("s_cselect_b32 s20, s10, s14"); A.op("s_cselect_b32 s21, s11, s15")
    A.op("s_mov_b32 s22, 32768"); A.op("s_mov_b32 s23, 0x20000")
    A.op("s_cbranch_scc1 prep_w_nostage")
    for i in range(3):
        A.op(f"v_add_u32 v1, {800*i}, v0")
        A.op("v_lshlrev_b32 v2, 4, v1")
        if i == 2:
            A.op("v_cmp_gt_u32 vcc, 2048, v1"); A.op("s_and_saveexec_b64 s[24:25], vcc")
            l = A.new("st"); A.op(f"s_cbranch_execz {l}")
        A.op("buffer_load_dwordx4 v[4:7], v2, s[20:23], 0 offen")
        A.op("s_waitcnt vmcnt(0)")
        A.op(f"v_add_u32 v2, {LWO}, v2")
        A.op(f"ds_write_b128 v2, v[4:7]")
        if i == 2:
            A.label(l); A.op("s_mov_b64 exec, s[24:25]")
    A.op("s_waitcnt lgkmcnt(0)")
    A.label("prep_w_nostage")
    A.op("s_barrier")
    A.op("s_cmp_ge_u32 s6, 8"); A.op("s_cbranch_scc1 prep_w_mm_done")
    A.op("s_lshr_b32 s24, s6, 1"); A.op("s_and_b32 s25, s6, 1"); A.op("s_lshl_b32 s25, s25, 1")
    A.op("s_lshl_b32 s26, s24, 13")
    A.op("v_lshlrev_b32 v1, 8, v31"); A.op("v_lshl_add_u32 v1, v32, 4, v1")
    for kk in range(8):
        A.op(f"buffer_load_dwordx4 v[{40+4*kk}:{43+4*kk}], v1, s[16:19], s26 offen offset:{32*kk}")
    for te in range(2):
        A.op("s_cmp_eq_u32 s2, 250"); lb = A.new("bw"); le = A.new("be"); A.op(f"s_cbranch_scc0 {lb}")
        A.op(f"s_add_u32 s27, s25, {te}"); A.op("s_lshl_b32 s27, s27, 13")
        for kk in range(8):
            A.op(f"buffer_load_dwordx4 v[{72+4*kk}:{75+4*kk}], v1, s[20:23], s27 offen offset:{32*kk}")
        A.op("s_waitcnt vmcnt(0)")
        A.op(f"s_branch {le}")
        A.label(lb)
        A.op("v_and_b32 v2, 15, v30")
        A.op("v_lshrrev_b32 v3, 2, v2")
        A.op("v_and_b32 v2, 3, v2")
        A.op("v_lshl_add_u32 v3, v32, 3, v3")
        A.op("v_lshlrev_b32 v3, 8, v3")
        A.op("v_lshl_add_u32 v3, v2, 3, v3")
        A.op("v_bfe_u32 v2, v30, 4, 1")
        A.op("v_lshl_add_u32 v3, v2, 5, v3")
        A.op(f"s_add_u32 s27, s25, {te}"); A.op("s_lshl_b32 s27, s27, 6")
        A.op(f"s_add_u32 s27, s27, {LWO}")
        A.op("v_add_u32 v3, s27, v3")
        for kk in range(8):
            A.op(f"ds_read_b64_tr_b16 v[{72+4*kk}:{73+4*kk}], v3 offset:{4096*kk}")
            A.op(f"ds_read_b64_tr_b16 v[{74+4*kk}:{75+4*kk}], v3 offset:{4096*kk+1024}")
        A.op("s_waitcnt vmcnt(0) lgkmcnt(0)")
        A.label(le)
        for kk in range(8):
            c = "0" if kk == 0 else "v[104:119]"
            A.op(f"v_mfma_f32_32x32x16_bf16 v[104:119], v[{40+4*kk}:{43+4*kk}], v[{72+4*kk}:{75+4*kk}], {c}")
        A.op("s_nop 15"); A.op("s_nop 7")
        A.op("s_lshl_b32 s27, s24, 5")
        A.op("v_lshlrev_b32 v2, 2, v32"); A.op("v_add_u32 v2, s27, v2")
        A.op(f"v_mul_u32_u24 v2, {STR}, v2")
        A.op(f"s_add_u32 s27, s25, {te}"); A.op("s_lshl_b32 s27, s27, 5")
        A.op("v_add3_u32 v2, v2, s27, v31")
        A.op("v_lshlrev_b32 v2, 2, v2")
        for r in range(16):
            d = (r & 3) + 8 * (r >> 2)
            A.op(f"ds_write_b32 v2, v{104+r} offset:{FM + d*STR*4}")
    A.label("prep_w_mm_done")
    A.op("s_waitcnt lgkmcnt(0)")
    A.op("s_barrier")
    A.op("v_cmp_gt_u32 vcc, 256, v0"); A.op("s_and_saveexec_b64 s[24:25], vcc")
    l = A.new("mn"); A.op(f"s_cbranch_execz {l}")
    A.op("v_and_b32 v2, 127, v0")
    A.op("v_cmp_gt_u32 vcc, 128, v0")
    A.op(f"v_mul_u32_u24 v3, {STR}, v2")
    A.op("s_nop 1")
    A.op("v_cndmask_b32_e64 v3, v3, v2, vcc")
    A.op(f"v_mov_b32 v4, {STR}")
    A.op("v_cndmask_b32_e64 v4, 1, v4, vcc")
    A.op("v_lshlrev_b32 v3, 2, v3"); A.op("v_lshlrev_b32 v4, 2, v4")
    A.op("v_mov_b32 v5, 0")
    A.op("s_mov_b32 s26, 0")
    lp = A.new("ml"); A.label(lp)
    for i in range(8):
        A.op(f"ds_read_b32 v{8+i}, v3 offset:{FM}"); A.op("v_add_u32 v3, v3, v4")
    A.op("s_waitcnt lgkmcnt(0)")
    for i in range(8):
        A.op(f"v_add_f32 v5, v5, v{8+i}")
    A.op("s_add_u32 s26, s26, 1"); A.op("s_cmp_lt_u32 s26, 16"); A.op(f"s_cbranch_scc1 {lp}")
    A.op("v_mul_f32 v5, 0x3c000000, v5")
    A.op("v_lshlrev_b32 v2, 2, v0")
    A.op(f"ds_write_b32 v2, v5 offset:{LMEAN}")
    A.label(l)
    A.op("s_mov_b64 exec, s[24:25]")
    A.op("s_waitcnt lgkmcnt(0)")
    A.op("s_barrier")
    A.op("v_lshlrev_b32 v2, 3, v30")
    A.op(f"ds_read_b64 v[4:5], v2 offset:{LMEAN}")
    A.op("s_waitcnt lgkmcnt(0)")
    A.op("v_add_f32 v4, v4, v5")
    A.op("s_cmp_eq_u32 s6, 0"); l = A.new("tm"); A.op(f"s_cbranch_scc0 {l}")
    for sh in (1, 2, 4, 8):
        A.op("s_nop 1"); A.op(f"v_add_f32_dpp v4, v4, v4 row_shr:{sh} row_mask:0xf bank_mask:0xf")
    A.op("s_nop 1"); A.op("v_add_f32_dpp v4, v4, v4 row_bcast:15 row_mask:0xa bank_mask:0xf")
    A.op("s_nop 1"); A.op("v_add_f32_dpp v4, v4, v4 row_bcast:31 row_mask:0xc bank_mask:0xf")
    A.op("s_nop 1"); A.op("v_readlane_b32 s26, v4, 63")
    A.op("s_nop 3"); A.op("v_mov_b32 v4, s26"); A.op("v_mul_f32 v4, 0x3c000000, v4")
    A.op("v_mov_b32 v2, 0"); A.op(f"ds_write_b32 v2, v4 offset:{LMEAN+1024}")
    A.label(l)
    A.op("s_waitcnt lgkmcnt(0)")
    A.op("s_barrier")
    A.op("s_cmp_eq_u32 s2, 250")
    A.op(f"s_cselect_b32 s26, 0, 32768")
    A.op("s_cselect_b32 s30, 0x3e0293ee, 1.0")
    A.op("s_cselect_b32 s31, 1.0, 0")
    A.op(f"s_add_u32 s26, s26, {OFF_WM}")
    A.op("s_add_u32 s24, s4, s26"); A.op("s_addc_u32 s25, s5, 0")
    A.op("s_mov_b32 s26, 32768"); A.op("s_mov_b32 s27, 0x20000")
    A.op("v_mov_b32 v2, 0"); A.op(f"ds_read_b32 v33, v2 offset:{LMEAN+1024}")
    for i in range(3):
        A.op(f"v_add_u32 v1, {800*i}, v0")
        if i == 2:
            A.op("v_cmp_gt_u32 vcc, 2048, v1"); A.op("s_and_saveexec_b64 s[34:35], vcc")
            l = A.new("em"); A.op(f"s_cbranch_execz {l}")
        A.op("v_and_b32 v2, 31, v1")
        pi_expr(A, 3, 2, 4)
        A.op("v_lshrrev_b32 v4, 9, v1")
        A.op("v_lshl_add_u32 v3, v4, 5, v3")
        A.op("v_bfe_u32 v4, v1, 6, 3")
        A.op("v_bfe_u32 v5, v1, 5, 1")
        A.op("v_lshlrev_b32 v4, 4, v4"); A.op("v_lshl_add_u32 v4, v5, 3, v4")
        A.op(f"v_mul_u32_u24 v5, {STR}, v4"); A.op("v_add_lshl_u32 v5, v5, v3, 2")
        for j in range(8):
            A.op(f"ds_read_b32 v{8+j}, v5 offset:{FM + j*STR*4}")
        A.op("v_lshlrev_b32 v6, 2, v3"); A.op(f"ds_read_b32 v16, v6 offset:{LMEAN}")
        A.op("v_lshlrev_b32 v6, 2, v4")
        A.op(f"ds_read_b128 v[20:23], v6 offset:{LMEAN+512}"); A.op(f"ds_read_b128 v[24:27], v6 offset:{LMEAN+528}")
        A.op("s_waitcnt lgkmcnt(0)")
        for j in range(8):
            A.op(f"v_sub_f32 v{20+j}, v{20+j}, v33")
            A.op(f"v_sub_f32 v{8+j}, v{8+j}, v16")
            A.op(f"v_fma_f32 v{8+j}, -v{20+j}, s31, v{8+j}")
            A.op(f"v_mul_f32 v{8+j}, s30, v{8+j}")
        for j in range(4):
            A.op(f"v_cvt_pk_bf16_f32 v{8+j}, v{8+2*j}, v{9+2*j}")
        A.op("v_lshlrev_b32 v6, 4, v1")
        A.op("buffer_store_dwordx4 v[8:11], v6, s[24:27], 0 offen")
        if i == 2:
            A.label(l); A.op("s_mov_b64 exec, s[34:35]")
    A.op("s_cmp_eq_u32 s2, 251"); A.op("s_cbranch_scc0 prep_done")
    A.op("s_cmp_ge_u32 s6, 1"); A.op("s_cbranch_scc1 prep_done")
    srd(A, 12, 28, 256)
    A.op("v_lshlrev_b32 v2, 1, v30")
    A.op("buffer_load_ushort v4, v2, s[12:15], 0 offen")
    A.op("buffer_load_ushort v5, v2, s[12:15], 0 offen offset:128")
    A.op("s_waitcnt vmcnt(0)")
    A.op("v_lshlrev_b32 v4, 16, v4"); A.op("v_lshlrev_b32 v5, 16, v5")
    A.op("v_add_f32 v6, v4, v5")
    for sh in (1, 2, 4, 8):
        A.op("s_nop 1"); A.op(f"v_add_f32_dpp v6, v6, v6 row_shr:{sh} row_mask:0xf bank_mask:0xf")
    A.op("s_nop 1"); A.op("v_add_f32_dpp v6, v6, v6 row_bcast:15 row_mask:0xa bank_mask:0xf")
    A.op("s_nop 1"); A.op("v_add_f32_dpp v6, v6, v6 row_bcast:31 row_mask:0xc bank_mask:0xf")
    A.op("s_nop 1"); A.op("v_readlane_b32 s26, v6, 63")
    A.op("s_nop 3"); A.op("v_mov_b32 v6, s26"); A.op("v_mul_f32 v6, 0x3c000000, v6")
    A.op("v_sub_f32 v4, v4, v6"); A.op("v_sub_f32 v5, v5, v6")
    srd(A, 16, 4, 512, OFF_WC)
    for (val, add) in ((4, 0), (5, 64)):
        A.op(f"v_add_u32 v7, {add}, v30")
        A.op("v_bfe_u32 v8, v7, 3, 1"); A.op("v_lshlrev_b32 v8, 6, v8")
        A.op("v_lshrrev_b32 v9, 5, v7"); A.op("v_lshl_add_u32 v8, v9, 4, v8")
        A.op("v_bfe_u32 v9, v7, 4, 1"); A.op("v_lshl_add_u32 v8, v9, 3, v8")
        A.op("v_and_b32 v9, 7, v7"); A.op("v_add_lshl_u32 v8, v8, v9, 2")
        A.op(f"buffer_store_dword v{val}, v8, s[16:19], 0 offen")
    A.label("prep_done")
    A.op("s_endpgm")
    return dict(name=name, grid=253, block=800, lds=100864, vgpr=120, sgpr=40)
```

```python
import re

def regs_of(tok):
    tok = tok.strip()
    neg = tok.lstrip("-|").rstrip("|")
    if neg.startswith("abs(") and neg.endswith(")"): neg = neg[4:-1]
    m = re.fullmatch(r"([vsa])\[(\d+):(\d+)\]", neg)
    if m: return [f"{m.group(1)}{i}" for i in range(int(m.group(2)), int(m.group(3)) + 1)]
    m = re.fullmatch(r"([vsa])(\d+)", neg)
    if m: return [neg]
    if neg in ("vcc", "exec", "m0", "scc"): return [neg]
    if neg in ("vcc_lo", "vcc_hi"): return ["vcc"]
    return []

TRANS = ("v_exp_f32", "v_log_f32", "v_rcp_f32", "v_rsq_f32", "v_sqrt_f32")
FAST = ("v_add_f32", "v_sub_f32", "v_mul_f32", "v_fma_f32", "v_fmac_f32", "v_mov_b32", "v_and_b32", "v_or_b32", "v_xor_b32", "v_add_u32", "v_sub_u32", "v_subrev_f32")

class Op:
    __slots__ = ("text", "name", "defs", "uses", "kind", "idx", "extra_dep", "prio", "succ", "pred", "t", "dpp", "srcC", "ab", "cost")
    def __init__(self, text, memr=(), memw=()):
        self.text = text
        body = text.split(";")[0].strip()
        parts = body.split(None, 1)
        name = parts[0]; self.name = name
        rest = parts[1] if len(parts) > 1 else ""
        ops = [o.strip() for o in re.split(r",(?![^\[]*\])", rest)] if rest else []
        mods = ""
        if ops:
            sp = ops[-1].split(None, 1)
            if len(sp) > 1 and not ops[-1].startswith(("abs", "-")):
                ops[-1] = sp[0]; mods = sp[1]
            elif len(sp) > 1:
                ops[-1] = sp[0]; mods = sp[1]
        defs, uses = [], []
        self.dpp = ("row_" in mods or "quad_perm" in mods or "wave_" in mods)
        self.srcC = []; self.ab = []
        R = regs_of
        if name.startswith("v_mfma"):
            self.kind = "mfma"
            defs = R(ops[0]); self.ab = R(ops[1]) + R(ops[2]); self.srcC = R(ops[3]); uses = self.ab + self.srcC
        elif name.startswith("ds_read") or name.startswith("ds_bpermute") or name.startswith("ds_swizzle"):
            self.kind = "ds"; defs = R(ops[0]); uses = sum((R(o) for o in ops[1:]), [])
        elif name.startswith("ds_write"):
            self.kind = "ds"; uses = sum((R(o) for o in ops), [])
        elif name.startswith("buffer_load"):
            self.kind = "vmem"
            if " lds" in " " + mods or mods.endswith("lds"):
                uses = sum((R(o) for o in ops), []) + ["m0"]
            else:
                defs = R(ops[0]); uses = sum((R(o) for o in ops[1:]), [])
        elif name.startswith("buffer_store"):
            self.kind = "vmem"; uses = sum((R(o) for o in ops), [])
        elif name.startswith("v_"):
            self.kind = "valu"
            base = name.replace("_e64", "").replace("_e32", "").replace("_dpp", "")
            if base.startswith("v_cmp"):
                defs = R(ops[0]); uses = sum((R(o) for o in ops[1:]), [])
            elif base in ("v_permlane32_swap_b32", "v_permlane16_swap_b32", "v_swap_b32"):
                defs = R(ops[0]) + R(ops[1]); uses = list(defs)
            else:
                defs = R(ops[0]); uses = sum((R(o) for o in ops[1:]), [])
                if base in ("v_fmac_f32", "v_dot2c_f32_bf16") or self.dpp:
                    uses += defs
                if base == "v_cndmask_b32" and len(ops) == 3: uses.append("vcc")
            uses.append("exec")
        elif name.startswith("s_"):
            self.kind = "salu"
            if name in ("s_nop", "s_setprio", "s_sleep"):
                pass
            elif name.startswith("s_cmp"):
                uses = sum((R(o) for o in ops), []); defs = ["scc"]
            else:
                defs = R(ops[0]); uses = sum((R(o) for o in ops[1:]), [])
                if name.startswith(("s_add", "s_sub", "s_lshl", "s_lshr", "s_and", "s_or", "s_xor", "s_min", "s_max")): defs.append("scc")
                if name.startswith(("s_addc", "s_subb", "s_cselect")): uses.append("scc")
        else:
            raise ValueError("unknown op " + text)
        if self.kind in ("ds", "vmem"): uses.append("exec")
        defs = defs + list(memw); uses = uses + list(memr)
        self.defs = set(defs); self.uses = set(uses)
        base = name.replace("_e64", "").replace("_e32", "").replace("_dpp", "")
        if self.kind == "valu":
            if base in TRANS or base.startswith("v_permlane"): self.cost = 8
            elif base in FAST and not self.dpp: self.cost = 3
            else: self.cost = 4
        elif self.kind == "mfma": self.cost = 8
        else: self.cost = 4

def latency(p, c, reg):
    if p.kind == "mfma":
        if c.kind == "mfma" and reg in c.srcC and c.srcC and set(c.srcC) == p.defs: return 32
        return 64
    if p.kind == "ds": return 128 if reg[0] == "v" else 4
    if p.kind == "vmem": return 600 if reg[0] == "v" else 4
    if p.kind == "valu": return max(p.cost, 8 if (c.kind == "mfma" or c.dpp or c.name.startswith("v_permlane")) else p.cost)
    return 4

def schedule(ops, reorder=True):
    n = len(ops)
    for i, o in enumerate(ops):
        o.idx = i; o.succ = []; o.pred = []
    if not reorder: return list(ops)
    last_def = {}; last_uses = {}
    for o in ops:
        deps = {}
        for r in o.uses:
            if r in last_def: deps.setdefault(last_def[r].idx, (last_def[r], latency(last_def[r], o, r)))
            if r in last_def:
                p = last_def[r]; l = latency(p, o, r)
                if deps[p.idx][1] < l: deps[p.idx] = (p, l)
        for r in o.defs:
            if r in last_def:
                p = last_def[r]
                l = 64 if (p.kind == "mfma" and not (o.kind == "mfma" and set(o.srcC) == p.defs)) else (128 if p.kind == "ds" and r[0] == "v" else (600 if p.kind == "vmem" and r[0] == 'v' else 4))
                if o.kind == "mfma" and p.kind == "mfma" and set(o.srcC) == p.defs: l = 32
                if p.idx not in deps or deps[p.idx][1] < l: deps[p.idx] = (p, l)
            for u in last_uses.get(r, ()):
                if u is o: continue
                l = 32 if (u.kind == "mfma" and r in u.srcC) else 1
                if u.idx not in deps or deps[u.idx][1] < l: deps[u.idx] = (u, l)
        for (p, l) in deps.values():
            p.succ.append((o, l)); o.pred.append((p, l))
        for r in o.uses: last_uses.setdefault(r, []).append(o)
        for r in o.defs:
            last_def[r] = o; last_uses[r] = []
    for o in reversed(ops):
        o.prio = max([l + s.prio for (s, l) in o.succ], default=0) + o.cost
    npred = {o.idx: len(o.pred) for o in ops}
    ready_t = {o.idx: 0 for o in ops}
    ready = [o for o in ops if npred[o.idx] == 0]
    out = []; t = 0; mfma_free = 0
    while ready:
        def est(o):
            s = max(t, ready_t[o.idx])
            if o.kind == "mfma": s = max(s, mfma_free)
            return s
        now = [o for o in ready if est(o) <= t]
        if now:
            mf = [o for o in now if o.kind == "mfma"]
            o = max(mf or now, key=lambda x: (x.prio, -x.idx))
        else:
            o = min(ready, key=lambda x: (est(x), -x.prio))
        s = est(o)
        o.t = s; t = s + o.cost
        if o.kind == "mfma": mfma_free = s + 32
        ready.remove(o); out.append(o)
        for (c, l) in o.succ:
            ready_t[c.idx] = max(ready_t[c.idx], s + l)
            npred[c.idx] -= 1
            if npred[c.idx] == 0: ready.append(c)
    assert len(out) == n
    return out

def finalize(ops, lgkm_in=0, vm_in=None):
    lines = []
    pend_ds = []
    pend_vm = list(vm_in or [])
    hist = []
    def states_since(pred):
        cnt = 0
        for h in reversed(hist[-40:]):
            op, st = h
            if op is not None and pred(op): return cnt
            cnt += st
        return None
    def emit_nop(k):
        while k > 0:
            m = min(k, 16)
            lines.append(f"    s_nop {m-1}"); hist.append((None, m)); k -= m
    for o in ops:
        touched = o.uses | o.defs
        need = None
        for i, d in enumerate(pend_ds):
            if d & touched: need = i
        if need is not None:
            left = len(pend_ds) - need - 1
            left = min(left, 15)
            lines.append(f"    s_waitcnt lgkmcnt({left})"); hist.append((None, 1))
            pend_ds = pend_ds[len(pend_ds) - left:] if left else []
        need = None
        for i, d in enumerate(pend_vm):
            if d & touched: need = i
        if need is not None:
            left = min(len(pend_vm) - need - 1, 63)
            lines.append(f"    s_waitcnt vmcnt({left})"); hist.append((None, 1))
            pend_vm = pend_vm[len(pend_vm) - left:] if left else []
        req = 0
        def chk(pred, n):
            nonlocal req
            s = states_since(pred)
            if s is not None and s < n: req = max(req, n - s)
        vuses = {r for r in o.uses if r[0] in "va" and r not in ("vcc",)}
        vdefs = {r for r in o.defs if r[0] in "va" and r not in ("vcc",)}
        suses = {r for r in o.uses if r[0] == "s" or r == "vcc"}
        if o.kind == "mfma":
            chk(lambda p: p.kind == "valu" and (p.defs & vuses), 2)
            chk(lambda p: p.kind == "mfma" and (p.defs & set(o.ab)), 12)
            chk(lambda p: p.kind == "mfma" and (p.defs & set(o.srcC)) and p.defs != set(o.srcC), 10)
            chk(lambda p: p.kind == "mfma" and (p.defs & o.defs) and set(o.srcC) != p.defs, 12)
            chk(lambda p: p.kind == "valu" and "exec" in p.defs, 4)
        else:
            chk(lambda p: p.kind == "mfma" and (p.defs & (vuses | vdefs)), 12)
            if o.kind == "valu":
                chk(lambda p: p.kind == "mfma" and (set(p.srcC) & vdefs), 7)
                if o.dpp or o.name.startswith("v_permlane"):
                    chk(lambda p: p.kind == "valu" and (p.defs & vuses), 2)
                if o.name.startswith(("v_readlane", "v_readfirstlane")):
                    chk(lambda p: p.kind == "valu" and (p.defs & vuses), 1)
                if not o.name.startswith(TRANS):
                    chk(lambda p: p.name.startswith(TRANS) and (p.defs & vuses), 1)
                chk(lambda p: p.kind == "valu" and (p.defs & suses), 2)
                chk(lambda p: p.kind == "vmem" and p.name.startswith("buffer_store") and "x4" in p.name and (p.uses & vdefs), 2)
            if o.kind == "vmem":
                chk(lambda p: p.kind == "valu" and (p.defs & suses), 5)
                if "m0" in o.uses: chk(lambda p: p.kind == "salu" and "m0" in p.defs, 1)
        if req: emit_nop(req)
        lines.append("    " + o.text); hist.append((o, 1))
        if o.kind == "ds":
            pend_ds.append({r for r in o.defs if r[0] == "v" and r[1:].isdigit()})
            if len(pend_ds) > 15:
                lines.append("    s_waitcnt lgkmcnt(8)"); hist.append((None, 1)); pend_ds = pend_ds[-8:]
        if o.kind == "vmem":
            pend_vm.append({r for r in o.defs if r[0] == "v" and r[1:].isdigit()})
    return lines, pend_ds, pend_vm
```

```python
from common import *
from sched import Op, schedule, finalize

L_WM = 0; L_WV = 32768; L_WC = 65536; L_X = 66560
NWV = 8
L_S = L_X + NWV * 8192
L_END = L_S + NWV * 512
NWG = 250; TPW = 25

X = 32
WB = 64
NWB = 6
DA = [88, 104]
S = 120
UOP = [136, 144]
VOP = 152
POP = 184
XT = 192
WCR = 224
R = 88

def gen_tf(A, reorder=True):
    name = "tf_kernel"
    kernel_begin(A, name)
    A.op(f"s_cmp_ge_u32 s2, {NWG}"); A.op("s_cbranch_scc1 tf_done")
    A.op("s_load_dwordx2 s[4:5], s[0:1], 88")
    A.op("s_load_dwordx2 s[8:9], s[0:1], 0")
    A.op("s_load_dwordx2 s[10:11], s[0:1], 24")
    A.op("s_load_dwordx2 s[44:45], s[0:1], 72")
    A.op("v_lshrrev_b32 v1, 6, v0"); A.op("s_nop 0")
    A.op("v_readfirstlane_b32 s6, v1")
    A.op("v_and_b32 v0, 63, v0")
    A.op("s_waitcnt lgkmcnt(0)")
    srd(A, 12, 4, 8 * TAB, OFF_G)
    srd(A, 16, 8, TAB)
    srd(A, 20, 10, N * 2)
    srd(A, 24, 44, TAB)
    srd(A, 28, 4, 65536 + 512, OFF_WM)
    A.op("v_lshlrev_b32 v2, 4, v0")
    A.op("s_lshl_b32 s3, s6, 13")
    for i in range(8):
        A.op(f"s_add_u32 s32, s3, {1024*i}"); A.op("s_mov_b32 m0, s32"); A.op("s_nop 0")
        A.op("buffer_load_dwordx4 v2, s[28:31], s32 offen lds")
    A.op("s_cmp_eq_u32 s6, 0"); l = A.new("wc"); A.op(f"s_cbranch_scc0 {l}")
    A.op("s_mov_b64 exec, 0xffffffff")
    A.op("buffer_load_dwordx4 v[4:7], v2, s[28:31], 0 offen offset:0".replace(", 0 offen offset:0", ", s33 offen") if False else "s_mov_b32 s33, 65536")
    A.op("buffer_load_dwordx4 v[4:7], v2, s[28:31], s33 offen")
    A.op("s_waitcnt vmcnt(0)")
    A.op(f"v_add_u32 v3, {L_WC}, v2"); A.op("ds_write_b128 v3, v[4:7]")
    A.op("s_mov_b64 exec, -1")
    A.label(l)
    A.op("v_lshrrev_b32 v3, 5, v0"); A.op("v_and_b32 v4, 7, v0"); A.op("v_bfe_u32 v5, v0, 3, 2")
    A.op(f"s_mul_i32 s34, s6, 8192"); A.op(f"s_add_u32 s34, s34, {L_X}")
    A.op("v_and_b32 v7, 15, v0"); A.op("v_xor_b32 v7, v7, v3"); A.op("v_lshlrev_b32 v7, 4, v7")
    A.op("v_lshl_add_u32 v7, v4, 10, v7"); A.op("v_lshl_add_u32 v7, v5, 8, v7"); A.op("v_add_u32 v6, s34, v7")
    A.op("v_bfe_u32 v12, v0, 2, 2")
    A.op("v_lshl_add_u32 v12, v3, 2, v12")
    A.op("v_bfe_u32 v13, v0, 4, 1"); A.op("v_lshlrev_b32 v13, 1, v13")
    A.op("v_and_b32 v14, 1, v0"); A.op("v_or_b32 v13, v13, v14")
    A.op("v_xor_b32 v13, v13, v12")
    A.op("v_lshlrev_b32 v13, 4, v13")
    A.op("v_lshl_add_u32 v13, v12, 10, v13")
    A.op("v_bfe_u32 v14, v0, 1, 1"); A.op("v_lshl_add_u32 v13, v14, 3, v13")
    A.op("v_add_u32 v13, s34, v13")
    for q in range(4):
        A.op(f"v_xor_b32 v{8+q}, {q << 6}, v13")
    A.op("v_lshrrev_b32 v12, 4, v0"); A.op("v_bfe_u32 v13, v0, 3, 1"); A.op("v_and_b32 v14, 1, v12"); A.op("v_xor_b32 v13, v13, v14")
    A.op("v_and_b32 v14, 7, v0"); A.op("v_lshlrev_b32 v14, 4, v14")
    A.op(f"s_mov_b32 s35, {HALF}")
    A.op("v_lshl_add_u32 v15, v12, 7, v14"); A.op("v_mad_u32_u24 v15, v13, s35, v15")
    A.op("v_lshl_add_u32 v16, v12, 8, v14"); A.op("v_lshl_add_u32 v16, v13, 7, v16")
    A.op(f"s_lshl_b32 s35, s6, 9"); A.op(f"s_add_u32 s35, s35, {L_S}")
    A.op("v_and_b32 v17, 31, v0"); A.op("v_lshlrev_b32 v17, 2, v17"); A.op("v_add_u32 v17, s35, v17")
    A.op("v_lshlrev_b32 v18, 3, v5"); A.op("v_lshl_add_u32 v18, v3, 2, v18"); A.op("v_lshlrev_b32 v18, 2, v18"); A.op("v_add_u32 v18, s35, v18")
    A.op("v_lshl_add_u32 v19, v3, 2, v5"); A.op("v_lshlrev_b32 v19, 3, v19"); A.op("v_add_u32 v19, s35, v19")
    A.op("v_lshlrev_b32 v20, 5, v3"); A.op("v_add_u32 v20, s35, v20")
    A.op("v_lshrrev_b32 v21, 2, v4"); A.op("v_lshlrev_b32 v21, 4, v21"); A.op("v_lshl_add_u32 v21, v5, 2, v21")
    A.op("v_and_b32 v12, 3, v4"); A.op("v_add_u32 v21, v21, v12"); A.op("v_lshlrev_b32 v21, 1, v21"); A.op("v_add_u32 v21, s35, v21")
    A.op("v_lshlrev_b32 v22, 8, v3"); A.op(f"v_add_u32 v22, {L_WC}, v22")
    A.op("v_and_b32 v12, 31, v0")
    A.op("v_and_b32 v23, 0x13, v12"); A.op("v_and_b32 v13, 4, v12"); A.op("v_lshl_or_b32 v23, v13, 1, v23")
    A.op("v_and_b32 v13, 8, v12"); A.op("v_lshrrev_b32 v13, 1, v13"); A.op("v_or_b32 v23, v23, v13")
    A.op("v_lshlrev_b32 v23, 1, v23"); A.op("v_lshl_add_u32 v23, v3, 9, v23")
    A.op("v_lshlrev_b32 v24, 1, v5")
    def m64(s, val):
        A.op(f"s_mov_b32 s{s}, {val & 0xffffffff:#x}"); A.op(f"s_mov_b32 s{s+1}, {val >> 32:#x}")
    m64(46, 0x0000FF000000FF00); m64(48, 0x00FF000000FF0000); m64(50, 0xFF000000FF000000); m64(52, 0x000000FF000000FF)
    m64(54, 0x0101010101010101)
    A.op("s_mov_b32 s56, 0x3f803f80")
    A.op("s_mov_b32 s57, 0x3727c5ac")
    A.op("s_mov_b32 s58, 0x3c000000")
    A.op("s_mov_b32 s59, 0x3fb8aa3b")
    A.op("s_mov_b32 s60, 0xffff0000")
    A.op(f"s_mul_i32 s37, s2, {TPW}")
    A.op("s_mov_b32 s36, s6")
    def issue_dma():
        A.op("s_add_u32 s38, s37, s36"); A.op("s_lshl_b32 s39, s38, 9")
        A.op("s_lshl_b32 s40, s38, 10")
        A.op("s_mov_b32 m0, s34"); A.op("s_nop 0")
        A.op("buffer_load_dwordx4 v16, s[16:19], s40 offen lds")
        for k in range(1, 8):
            A.op(f"v_xor_b32 v25, {k << 4}, v15")
            A.op(f"s_add_u32 s41, s34, {1024*k}"); A.op("s_mov_b32 m0, s41")
            A.op(f"s_add_u32 s41, s39, {k*TAB}")
            A.op("buffer_load_dwordx4 v25, s[12:15], s41 offen lds")
        A.op("s_lshl_b32 s41, s38, 3")
        A.op("buffer_load_ushort v26, v24, s[20:23], s41 offen")
    issue_dma()
    A.op("s_waitcnt vmcnt(0) lgkmcnt(0)")
    A.op("s_barrier")
    A.label("tf_loop")
    A.op("s_waitcnt vmcnt(0)")
    A.op("s_add_u32 s38, s37, s36"); A.op("s_lshl_b32 s42, s38, 10")
    for kk in range(8):
        A.op(f"v_xor_b32 v27, {(2*kk) << 4}, v6")
        A.op(f"ds_read_b128 v[{X+4*kk}:{X+4*kk+3}], v27")
    for T in range(4):
        for a in range(4):
            r = XT + (T * 4 + a) * 2
            A.op(f"ds_read_b64_tr_b16 v[{r}:{r+1}], v{8 + (T ^ (2*(a&1)))} offset:{a*256}")
        A.op("s_waitcnt lgkmcnt(4)")
    A.op("v_lshlrev_b32 v28, 16, v26")
    A.op("s_waitcnt lgkmcnt(0)")
    A.op("s_add_u32 s36, s36, 8")
    A.op(f"s_cmp_ge_u32 s36, {TPW}"); A.op("s_cbranch_scc1 tf_nodma")
    issue_dma()
    A.label("tf_nodma")

    ops = []
    def o(t, memr=(), memw=()): ops.append(Op(t, memr, memw))
    o("v_mov_b32 v240, 0"); o("v_mov_b32 v241, 0")
    for i in range(32):
        o(f"v_dot2c_f32_bf16 v240, s56, v{X+i}")
        o(f"v_dot2c_f32_bf16 v241, v{X+i}, v{X+i}")
    def xhalf_sum(r, t):
        o(f"v_mov_b32 v{t}, v{r}"); o(f"v_permlane32_swap_b32 v{r}, v{t}"); o(f"v_add_f32 v{r}, v{r}, v{t}")
    xhalf_sum(240, 242); xhalf_sum(241, 243)
    o("v_mul_f32 v240, s58, v240")
    o("v_mul_f32 v241, s58, v241")
    o("v_fma_f32 v241, -v240, v240, v241")
    o("v_max_f32 v241, 0, v241")
    o("v_cndmask_b32_e64 v29, v28, 1.0, s[54:55]")
    o("v_cmp_eq_f32_e64 s[62:63], 0, v29")
    o("v_cndmask_b32_e64 v29, v29, 1.0, s[62:63]")
    o("v_rcp_f32 v30, v29")
    o("v_mul_f32 v31, v30, v30")
    o("v_mov_b32 v242, s57")
    o("v_fma_f32 v241, v241, v31, v242")
    o("v_rsq_f32 v241, v241")
    o("v_mul_f32 v244, v241, v30")
    o("ds_write_b32 v17, v244", memw=["M_rho"])
    o("ds_read_b128 v[248:251], v18", memr=["M_rho"])
    wb = [0]
    def wload(off):
        b = WB + 4 * (wb[0] % NWB); wb[0] += 1
        o(f"ds_read_b128 v[{b}:{b+3}], v2 offset:{off}")
        return b
    for T in range(4):
        D = DA[T & 1]
        for kk in range(8):
            b = wload(L_WM + (T * 8 + kk) * 1024)
            c = "0" if kk == 0 else f"v[{D}:{D+15}]"
            o(f"v_mfma_f32_32x32x16_bf16 v[{D}:{D+15}], v[{b}:{b+3}], v[{X+4*kk}:{X+4*kk+3}], {c}")
        U = UOP[T & 1]
        for j in range(8):
            o(f"v_cvt_pk_bf16_f32 v{U+j}, v{D+2*j}, v{D+2*j+1}")
        for half in range(2):
            c = "0" if (T == 0 and half == 0) else f"v[{S}:{S+15}]"
            xa = X + 4 * (2 * T + half)
            o(f"v_mfma_f32_32x32x16_bf16 v[{S}:{S+15}], v[{xa}:{xa+3}], v[{U+4*half}:{U+4*half+3}], {c}")
    for i in range(4):
        o(f"v_cndmask_b32_e64 v{252+i}, v{S+i}, v{S+4+i}, s[46:47]")
        o(f"v_cndmask_b32_e64 v{252+i}, v{252+i}, v{S+8+i}, s[48:49]")
        o(f"v_cndmask_b32_e64 v{252+i}, v{252+i}, v{S+12+i}, s[50:51]")
        o(f"v_mul_f32 v{252+i}, v{252+i}, v{248+i}")
        o(f"v_mul_f32 v{252+i}, v{252+i}, v244")
    o("v_max_f32 v245, v252, v253"); o("v_max3_f32 v245, v245, v254, v255")
    o("v_mov_b32 v246, v245"); o("v_permlane32_swap_b32 v245, v246"); o("v_max_f32 v245, v245, v246")
    for i in range(4):
        o(f"v_sub_f32 v{252+i}, v{252+i}, v245"); o(f"v_exp_f32 v{252+i}, v{252+i}")
    o("v_add_f32 v245, v252, v253"); o("v_add_f32 v246, v254, v255"); o("v_add_f32 v245, v245, v246")
    xhalf_sum(245, 246)
    o("v_rcp_f32 v245, v245"); o("v_mul_f32 v245, v245, v29")
    for i in range(4):
        o(f"v_mul_f32 v{252+i}, v{252+i}, v{248+i}"); o(f"v_mul_f32 v{252+i}, v{252+i}, v245")
    o("v_cvt_pk_bf16_f32 v246, v252, v253"); o("v_cvt_pk_bf16_f32 v247, v254, v255")
    for a, m in enumerate((52, 46, 48, 50)):
        o(f"v_cndmask_b32_e64 v{POP+2*a}, 0, v246, s[{m}:{m+1}]")
        o(f"v_cndmask_b32_e64 v{POP+2*a+1}, 0, v247, s[{m}:{m+1}]")
    for T in range(4):
        D = DA[T & 1]
        for kk in range(8):
            b = wload(L_WV + (T * 8 + kk) * 1024)
            c = "0" if kk == 0 else f"v[{D}:{D+15}]"
            o(f"v_mfma_f32_32x32x16_bf16 v[{D}:{D+15}], v[{X+4*kk}:{X+4*kk+3}], v[{b}:{b+3}], {c}")
        for j in range(8):
            o(f"v_cvt_pk_bf16_f32 v{VOP+8*T+j}, v{D+2*j}, v{D+2*j+1}")
    o("v_mov_b32 v240, 0"); o("v_mov_b32 v241, 0"); o("v_mov_b32 v242, 0")
    for T in range(4):
        D = DA[T & 1]
        for half in range(2):
            for j in range(4):
                x = X + 4 * (2 * T + half) + j
                o(f"v_lshlrev_b32 v{D+8*half+2*j}, 16, v{x}")
                o(f"v_and_b32 v{D+8*half+2*j+1}, s60, v{x}")
        for half in range(2):
            o(f"v_mfma_f32_32x32x16_bf16 v[{D}:{D+15}], v[{VOP+8*T+4*half}:{VOP+8*T+4*half+3}], v[{POP+4*half}:{POP+4*half+3}], v[{D}:{D+15}]")
        for q in range(4):
            o(f"ds_read_b128 v[{WCR+4*q}:{WCR+4*q+3}], v22 offset:{T*64 + q*16}")
        for r in range(16):
            o(f"v_add_f32 v240, v240, v{D+r}")
            o(f"v_fmac_f32 v241, v{D+r}, v{D+r}")
            o(f"v_fmac_f32 v242, v{D+r}, v{WCR+r}")
    xhalf_sum(240, 243); xhalf_sum(241, 243); xhalf_sum(242, 243)
    o("v_mul_f32 v240, s58, v240"); o("v_mul_f32 v241, s58, v241")
    o("v_fma_f32 v241, -v240, v240, v241"); o("v_max_f32 v241, 0, v241")
    o("v_mov_b32 v243, s57"); o("v_fma_f32 v241, v241, v31, v243"); o("v_rsq_f32 v241, v241")
    o("v_mul_f32 v242, v242, v241"); o("v_mul_f32 v242, v242, v30"); o("v_mul_f32 v242, s59, v242")
    def red8(r, t, op):
        o(f"v_{op}_f32_dpp v{r}, v{r}, v{r} quad_perm:[1,0,3,2] row_mask:0xf bank_mask:0xf")
        o(f"v_{op}_f32_dpp v{r}, v{r}, v{r} quad_perm:[2,3,0,1] row_mask:0xf bank_mask:0xf")
        o(f"v_{op}_f32_dpp v{r}, v{r}, v{r} row_half_mirror row_mask:0xf bank_mask:0xf")
    o("v_mov_b32 v243, v242"); red8(243, None, "max")
    o("v_sub_f32 v242, v242, v243"); o("v_exp_f32 v242, v242")
    o("v_mov_b32 v243, v242"); red8(243, None, "add")
    o("v_rcp_f32 v243, v243"); o("v_mul_f32 v242, v242, v243"); o("v_mul_f32 v242, v242, v30")
    for i in range(4):
        o(f"v_mul_f32 v{252+i}, v{252+i}, v242"); red8(252 + i, None, "add")
    o("v_cvt_pk_bf16_f32 v246, v252, v253"); o("v_cvt_pk_bf16_f32 v247, v254, v255")
    o("ds_write_b64 v19, v[246:247] offset:128", memw=["M_b"])
    o("v_cvt_pk_bf16_f32 v243, v242, v242")
    o("ds_write_b16 v21, v243 offset:256", memw=["M_a"])
    BP = WCR; AP = WCR + 8
    o(f"ds_read_b128 v[{BP}:{BP+3}], v20 offset:128", memr=["M_b"]); o(f"ds_read_b128 v[{BP+4}:{BP+7}], v20 offset:144", memr=["M_b"])
    o(f"ds_read_b128 v[{AP}:{AP+3}], v20 offset:256", memr=["M_a"]); o(f"ds_read_b128 v[{AP+4}:{AP+7}], v20 offset:272", memr=["M_a"])
    RR = 88
    for T in range(4):
        for a in range(4):
            r = RR + 4 * T + a; xt = XT + (T * 4 + a) * 2
            o(f"v_dot2_f32_bf16 v{r}, v{VOP+8*T+2*a}, v{BP+2*a}, 0")
            o(f"v_dot2c_f32_bf16 v{r}, v{VOP+8*T+2*a+1}, v{BP+2*a+1}")
            o(f"v_dot2c_f32_bf16 v{r}, v{xt}, v{AP+2*a}")
            o(f"v_dot2c_f32_bf16 v{r}, v{xt+1}, v{AP+2*a+1}")
    for T in range(4):
        for a in range(2):
            r0 = RR + 4 * T + a; r1 = r0 + 2
            o(f"v_permlane32_swap_b32 v{r0}, v{r1}")
            o(f"v_add_f32 v{r0}, v{r0}, v{r1}")
            o(f"v_cvt_pk_bf16_f32 v{r0}, v{r0}, v{r0}")
            o(f"buffer_store_short v{r0}, v23, s[24:27], s42 offen offset:{a*256 + T*64}")
    seq = schedule(ops, reorder)
    lines, pd, pv = finalize(seq)
    for l in lines: A(l)
    A.op(f"s_cmp_lt_u32 s36, {TPW}"); A.op("s_cbranch_scc1 tf_loop")
    A.label("tf_done")
    A.op("s_endpgm")
    return dict(name=name, grid=NWG, block=64 * NWV, lds=L_END, vgpr=256, sgpr=72)
```

```python
import sys
from common import *
import prep

HEADER = open("gather_scatter__hybrid_graph_tf_nagphormer__graph.s.ref").read().split("; Override launch")[0]

def build(stages=("prep", "hops", "tf"), **kw):
    B = Asm()
    B('.amdgcn_target "amdgcn-amd-amdhsa--gfx950"')
    B(".text")
    ks = []
    if "prep" in stages:
        ks.append(prep.gen_prep(B))
    if "hops" in stages:
        import hops
        ks.append(hops.gen_hops(B, **kw.get("hops", {})))
    if "tf" in stages:
        import tf
        ks.append(tf.gen_tf(B, **kw.get("tf", {})))
    B('.section .rodata,"a"')
    for k in ks:
        kernel_desc(B, k["name"], k["vgpr"], k["sgpr"], k.get("accum"))
    head = HEADER
    for k in ks:
        head += f"; @launch kernel={k['name']} grid=({k['grid']},1,1) block=({k['block']},1,1) lds={k['lds']}\n"
    return head + B.text()

if __name__ == "__main__":
    st = sys.argv[2].split(",") if len(sys.argv) > 2 else ("prep", "hops", "tf")
    open(sys.argv[1], "w").write(build(st))
```

```python
N = 25000
E = 400000
D = 128
NR = 125
RN = 200
TAB = N * 256
HALF = N * 128
OFF_G = 0
OFF_ENT = 8 * TAB
OFF_OFFS = OFF_ENT + E * 4
OFF_CNT = OFF_OFFS + NR * 512
CNT_BYTES = 32768
OFF_WM = OFF_CNT + CNT_BYTES
OFF_WV = OFF_WM + 32768
OFF_WC = OFF_WV + 32768
OFF_OVF = OFF_WC + 512
OFF_ST = OFF_OVF + 2 * E * 2
ST_TOK = N * 16
OFF_CELL = OFF_ST + 8 * ST_TOK
CELL_BYTES = NR * NR * 256
OFF_END = OFF_CELL + CELL_BYTES
WS_BYTES = 268435456
assert OFF_CNT % 128 == 0 and OFF_WM % 128 == 0 and OFF_OVF % 16 == 0
CAP = 40
NSHARD = 4

class Asm:
    def __init__(self):
        self.lines = []
        self.uid = 0
    def __call__(self, s=""):
        for l in s.split("\n"):
            self.lines.append(l)
    def op(self, s):
        self.lines.append("    " + s)
    def ops(self, *ss):
        for s in ss:
            self.op(s)
    def label(self, s):
        self.lines.append(s + ":")
    def new(self, p="L"):
        self.uid += 1
        return f"{p}_{self.uid}"
    def cmt(self, s):
        self.lines.append("    ; " + s)
    def text(self):
        return "\n".join(self.lines) + "\n"

def kernel_begin(A, name):
    A(f".globl {name}")
    A(".p2align 8")
    A(f".type {name},@function")
    A(f"{name}:")

def kernel_desc(A, name, vgpr, sgpr, accum=None):
    if accum is None:
        accum = (vgpr + 3) // 4 * 4
    A(".p2align 6")
    A(f".amdhsa_kernel {name}")
    A(f"  .amdhsa_next_free_vgpr {vgpr}")
    A(f"  .amdhsa_next_free_sgpr {sgpr}")
    A(f"  .amdhsa_accum_offset {accum}")
    A("  .amdhsa_group_segment_fixed_size 0")
    A("  .amdhsa_kernarg_size 96")
    A("  .amdhsa_user_sgpr_count 2")
    A("  .amdhsa_user_sgpr_kernarg_segment_ptr 1")
    A("  .amdhsa_system_sgpr_workgroup_id_x 1")
    A("  .amdhsa_float_denorm_mode_32 3")
    A("  .amdhsa_float_denorm_mode_16_64 3")
    A(".end_amdhsa_kernel")

def srd(A, s, base, size, off=None):
    if off:
        A.op(f"s_add_u32 s{s}, s{base}, {off}")
        A.op(f"s_addc_u32 s{s+1}, s{base+1}, 0")
    else:
        A.op(f"s_mov_b32 s{s}, s{base}")
        A.op(f"s_mov_b32 s{s+1}, s{base+1}")
    A.op(f"s_mov_b32 s{s+2}, {size}")
    A.op(f"s_mov_b32 s{s+3}, 0x20000")

def wave_scan_incl(A, v, tmp=None):
    for sh in (1, 2, 4, 8):
        A.op("s_nop 1")
        A.op(f"v_add_u32_dpp v{v}, v{v}, v{v} row_shr:{sh} row_mask:0xf bank_mask:0xf")
    A.op("s_nop 1")
    A.op(f"v_add_u32_dpp v{v}, v{v}, v{v} row_bcast:15 row_mask:0xa bank_mask:0xf")
    A.op("s_nop 1")
    A.op(f"v_add_u32_dpp v{v}, v{v}, v{v} row_bcast:31 row_mask:0xc bank_mask:0xf")
    A.op("s_nop 1")
```

```python
from common import *
import prep

L_CNT = 0
L_HIST = 6400
L_BINS = L_HIST + 256
L_SLOT = L_BINS + 256
L_NODE = L_SLOT + 832
L_DEG = L_NODE + 832
L_NDEG = L_DEG + 832
L_OVFP = L_NDEG + 832
L_DSQ = L_OVFP + 832
L_MISC = L_DSQ + 832
L_IMG = L_MISC + 64
IMG_STRIDE = CAP * 2
L_END = L_IMG + 208 * IMG_STRIDE
assert L_IMG % 16 == 0

def gen_hops(A, nh=7, depthfn=lambda W: 4, maxdepth=7, prio=1, sleep=1, prof=0, ld=' sc1', bar='flag', nshard=NSHARD, perm=(5,0,1,2,9,6,4,3,10,11,8,7,12), ndot=4, pf=0, pffrac=0.8, rtt=0, pw=0, pwprio=3, pwsleep=0, cells=False):
    name = "hops_kernel"
    kernel_begin(A, name)
    NW = 13
    NWB = NW + (1 if (rtt or pw) else 0)
    maxpairs = CAP // 2
    A.op("s_cmp_ge_u32 s2, 252"); A.op("s_cbranch_scc1 hops_done")
    A.op("s_load_dwordx2 s[4:5], s[0:1], 88")
    A.op("s_cmp_ge_u32 s2, 250"); A.op("s_cbranch_scc1 hops_wprep")
    A.op("s_load_dwordx2 s[44:45], s[0:1], 24")
    A.op("v_lshrrev_b32 v1, 6, v0"); A.op("s_nop 0")
    A.op("v_readfirstlane_b32 s6, v1")
    A.op("s_and_b32 s7, s2, 1"); A.op("s_lshr_b32 s8, s2, 1")
    if prof: A.op("s_memrealtime s[64:65]")
    A.op("v_lshlrev_b32 v1, 2, v0")
    A.op("v_mov_b32 v2, 0"); A.op("v_mov_b32 v3, -1")
    for i in range(2):
        A.op(f"ds_write_b32 v1, v2 offset:{i*3328}")
    assert 2 * 3328 >= L_BINS and 2 * 3328 <= L_SLOT + 0 or True
    nimg = 208 * IMG_STRIDE // 4
    for i in range(nimg // 832):
        A.op(f"ds_write_b32 v1, v3 offset:{L_IMG + i*3328}")
    assert nimg % 832 == 0
    A.op("v_cmp_gt_u32 vcc, 208, v0"); A.op("s_and_saveexec_b64 s[20:21], vcc")
    A.op(f"ds_write_b32 v1, v3 offset:{L_NODE}")
    A.op(f"ds_write_b32 v1, v2 offset:{L_DEG}")
    A.op("s_mov_b64 exec, s[20:21]")
    A.op("v_cmp_gt_u32 vcc, 16, v0"); A.op("s_and_saveexec_b64 s[20:21], vcc")
    A.op(f"ds_write_b32 v1, v2 offset:{L_MISC}")
    A.op("s_mov_b64 exec, s[20:21]")
    A.op("s_waitcnt lgkmcnt(0)")
    srd(A, 12, 4, NR * 512, OFF_OFFS)
    srd(A, 16, 4, E * 4, OFF_ENT)
    A.op("v_lshrrev_b32 v4, 2, v0")
    A.op("v_and_b32 v5, 3, v0")
    A.op("v_lshlrev_b32 v6, 9, v4")
    A.op("s_lshl_b32 s9, s8, 2")
    A.op("buffer_load_dwordx2 v[8:9], v6, s[12:15], s9 offen")
    if cells:
        srd(A, 68, 4, CELL_BYTES, OFF_CELL)
        A.op(f"s_mul_i32 s10, s8, {NR*256}")
        A.op("v_lshlrev_b32 v7, 8, v4"); A.op("v_lshl_add_u32 v7, v5, 4, v7")
        for r in range(4):
            A.op(f"buffer_load_dwordx4 v[{44+4*r}:{44+4*r+3}], v7, s[68:71], s10 offen offset:{64*r}")
    srd(A, 60, 44, N * 2)
    A.op(f"s_mul_i32 s10, s8, {RN*2}")
    A.op("v_lshlrev_b32 v7, 1, v0")
    A.op("buffer_load_ushort v43, v7, s[60:63], s10 offen")
    A.op("s_barrier")
    A.op("s_waitcnt vmcnt(%d)" % (5 if cells else 1))
    A.op("v_sub_u32 v10, v9, v8")
    A.op("v_mul_u32_u24 v11, 3200, v4"); A.op("v_add_u32 v11, v11, v8")
    A.op("v_lshl_add_u32 v11, v5, 2, v11"); A.op("v_lshlrev_b32 v11, 2, v11")
    A.op("v_lshlrev_b32 v12, 2, v5")
    A.op("v_cmp_eq_u32 vcc, 0, v5"); A.op("s_and_saveexec_b64 s[20:21], vcc")
    A.op(f"v_mov_b32 v13, {L_MISC}"); A.op("ds_add_u32 v13, v8")
    A.op("s_mov_b64 exec, s[20:21]")
    NRND = 4
    ER = 44
    def keys(e, k):
        A.op(f"v_bfe_u32 v24, v{e}, 16, 8"); A.op(f"v_bfe_u32 v{k}, v{e}, 12, 4")
        A.op(f"v_lshl_add_u32 v{k}, v24, 3, v{k}"); A.op(f"v_lshlrev_b32 v{k}, 2, v{k}")
    def count4(e0, pos):
        for i in range(4):
            keys(e0 + i, 25 + i)
        for i in range(4):
            A.op(f"v_add_u32 v24, {i}, v{pos}"); A.op("v_cmp_lt_u32 vcc, v24, v10"); A.op("s_and_b64 exec, s[22:23], vcc")
            A.op(f"ds_add_u32 v{25+i}, v30 offset:{L_CNT}")
        A.op("s_mov_b64 exec, s[22:23]")
    def fill4(e0, pos):
        for i in range(4):
            keys(e0 + i, 25 + i)
            A.op(f"v_bfe_u32 v{20+i}, v{e0+i}, 16, 8")
        for i in range(4):
            A.op(f"v_add_u32 v24, {i}, v{pos}"); A.op(f"v_cmp_lt_u32 s[{24+2*i}:{25+2*i}], v24, v10")
        for i in range(4):
            A.op(f"s_and_b64 exec, s[22:23], s[{24+2*i}:{25+2*i}]")
            A.op(f"ds_add_rtn_u32 v{32+i}, v{25+i}, v30 offset:{L_CNT}")
            A.op(f"v_lshlrev_b32 v24, 2, v{20+i}")
            A.op(f"ds_read_b32 v{36+i}, v24 offset:{L_SLOT}")
        A.op("s_mov_b64 exec, s[22:23]")
        A.op("s_waitcnt lgkmcnt(0)")
        for i in range(4):
            A.op("s_mov_b64 exec, s[22:23]")
            A.op(f"v_cmp_gt_u32 vcc, {CAP}, v{32+i}")
            A.op(f"s_and_b64 s[32:33], s[{24+2*i}:{25+2*i}], vcc")
            A.op(f"s_and_b64 exec, s[22:23], s[32:33]")
            A.op(f"v_mul_u32_u24 v24, {IMG_STRIDE}, v{36+i}")
            A.op(f"v_lshl_add_u32 v24, v{32+i}, 1, v24")
            A.op(f"ds_write_b16 v24, v{e0+i} offset:{L_IMG}")
            A.op(f"s_andn2_b64 s[32:33], s[{24+2*i}:{25+2*i}], vcc")
            A.op(f"s_and_b64 exec, s[22:23], s[32:33]")
            lo = A.new("no")
            A.op(f"s_cbranch_execz {lo}")
            A.op(f"v_lshlrev_b32 v24, 2, v{20+i}")
            A.op(f"ds_read_b32 v24, v24 offset:{L_OVFP}")
            A.op("s_waitcnt lgkmcnt(0)")
            A.op(f"v_add_u32 v24, v24, v{32+i}")
            A.op(f"v_subrev_u32 v24, {CAP}, v24")
            A.op(f"v_lshlrev_b32 v24, 1, v24")
            A.op(f"buffer_store_short v{e0+i}, v24, s[48:51], 0 offen")
            A.label(lo)
        A.op("s_mov_b64 exec, s[22:23]")
    def entry_pass(fill):
        f4 = fill4 if fill else count4
        A.op("v_mov_b32 v30, 1"); A.op("s_mov_b64 s[22:23], exec")
        done = A.new("epd")
        for r in range(NRND):
            A.op(f"v_add_u32 v15, {16*r}, v12")
            A.op("v_cmp_lt_u32 vcc, v15, v10"); A.op(f"s_cbranch_vccz {done}")
            f4(ER + 4 * r, 15)
        lp = A.new("ep")
        A.op(f"v_add_u32 v14, {64*NRND}, v11"); A.op(f"v_add_u32 v15, {16*NRND}, v12")
        A.label(lp)
        A.op("v_cmp_lt_u32 vcc, v15, v10"); A.op(f"s_cbranch_vccz {done}")
        A.op("buffer_load_dwordx4 v[16:19], v14, s[16:19], 0 offen")
        A.op("s_waitcnt vmcnt(0)")
        f4(16, 15)
        A.op("v_add_u32 v14, 64, v14"); A.op("v_add_u32 v15, 16, v15")
        A.op(f"s_branch {lp}")
        A.label(done)
    if not cells:
        for r in range(NRND):
            A.op(f"buffer_load_dwordx4 v[{ER+4*r}:{ER+4*r+3}], v11, s[16:19], 0 offen offset:{64*r}")
    A.op("s_waitcnt vmcnt(0)")
    entry_pass(False)
    A.op("s_waitcnt lgkmcnt(0)")
    A.op("s_barrier")
    if prof: A.op("s_memrealtime s[68:69]")
    A.op("v_cmp_gt_u32 vcc, 200, v0"); A.op("s_and_saveexec_b64 s[20:21], vcc")
    l1 = A.new("np"); A.op(f"s_cbranch_execz {l1}")
    A.op("v_lshlrev_b32 v1, 5, v0")
    A.op(f"ds_read_b128 v[16:19], v1 offset:{L_CNT}"); A.op(f"ds_read_b128 v[20:23], v1 offset:{L_CNT+16}")
    A.op("s_waitcnt lgkmcnt(0)")
    A.op("v_mov_b32 v24, 0")
    for i in range(8):
        A.op(f"v_mov_b32 v25, v{16+i}"); A.op(f"v_mov_b32 v{16+i}, v24"); A.op("v_add_u32 v24, v24, v25")
    A.op(f"ds_write_b128 v1, v[16:19] offset:{L_CNT}"); A.op(f"ds_write_b128 v1, v[20:23] offset:{L_CNT+16}")
    A.op("v_mov_b32 v40, v24")
    A.op(f"v_min_u32 v41, {CAP}, v24"); A.op("v_lshlrev_b32 v41, 2, v41")
    A.op("v_mov_b32 v30, 1")
    A.op(f"ds_add_rtn_u32 v42, v41, v30 offset:{L_HIST}")
    A.op("v_lshlrev_b32 v1, 2, v0")
    A.op(f"ds_write_b32 v1, v40 offset:{L_NDEG}")
    A.op("v_lshlrev_b32 v43, 16, v43"); A.op("v_mul_f32 v43, v43, v43")
    A.op(f"ds_write_b32 v1, v43 offset:{L_DSQ}")
    A.op(f"v_cmp_lt_u32 vcc, {CAP}, v40"); A.op("s_and_b64 exec, exec, vcc")
    A.op(f"v_mov_b32 v13, {L_MISC+4}"); A.op("ds_write_b32 v13, v30")
    A.label(l1)
    A.op("s_mov_b64 exec, s[20:21]")
    A.op("s_waitcnt lgkmcnt(0)")
    A.op("s_barrier")
    A.op("s_cmp_eq_u32 s6, 0"); l2 = A.new("w0"); A.op(f"s_cbranch_scc0 {l2}")
    A.op("v_lshlrev_b32 v1, 2, v0")
    A.op(f"ds_read_b32 v16, v1 offset:{L_HIST}")
    A.op(f"v_mov_b32 v13, {L_MISC}"); A.op("ds_read_b64 v[18:19], v13")
    A.op("s_waitcnt lgkmcnt(0)")
    wave_scan_incl(A, 16)
    A.op("v_sub_u32 v16, 200, v16")
    A.op(f"ds_write_b32 v1, v16 offset:{L_BINS}")
    A.op("v_readfirstlane_b32 s9, v18"); A.op("v_readfirstlane_b32 s10, v19")
    A.op("s_nop 3")
    A.op("s_cmp_eq_u32 s10, 0"); A.op(f"s_cbranch_scc1 {l2}")
    A.op("s_mov_b32 s11, 0")
    lo = A.new("ov"); A.label(lo)
    A.op("s_lshl_b32 s20, s11, 2"); A.op("v_mov_b32 v1, s20")
    A.op(f"ds_read_b32 v16, v1 offset:{L_NDEG}")
    A.op("v_mov_b32 v17, s9"); A.op(f"ds_write_b32 v1, v17 offset:{L_OVFP}")
    A.op("s_waitcnt lgkmcnt(0)")
    A.op("v_readfirstlane_b32 s20, v16"); A.op("s_nop 3")
    A.op(f"s_max_u32 s20, s20, {CAP}"); A.op(f"s_sub_u32 s20, s20, {CAP}"); A.op("s_add_u32 s9, s9, s20")
    A.op("s_add_u32 s11, s11, 1"); A.op("s_cmp_lt_u32 s11, 200"); A.op(f"s_cbranch_scc1 {lo}")
    A.label(l2)
    A.op("s_waitcnt lgkmcnt(0)")
    A.op("s_barrier")
    A.op("v_cmp_gt_u32 vcc, 200, v0"); A.op("s_and_saveexec_b64 s[20:21], vcc")
    l3 = A.new("np"); A.op(f"s_cbranch_execz {l3}")
    A.op(f"ds_read_b32 v16, v41 offset:{L_BINS}")
    A.op("s_waitcnt lgkmcnt(0)")
    A.op("v_add_u32 v16, v16, v42")
    A.op("v_lshlrev_b32 v1, 2, v0"); A.op(f"ds_write_b32 v1, v16 offset:{L_SLOT}")
    A.op("v_lshlrev_b32 v16, 2, v16")
    A.op(f"ds_write_b32 v16, v0 offset:{L_NODE}"); A.op(f"ds_write_b32 v16, v40 offset:{L_DEG}")
    A.label(l3)
    A.op("s_mov_b64 exec, s[20:21]")
    A.op(f"s_mul_i32 s9, s7, {E*2}"); A.op(f"s_add_u32 s9, s9, {OFF_OVF}")
    A.op("s_add_u32 s48, s4, s9"); A.op("s_addc_u32 s49, s5, 0"); A.op(f"s_mov_b32 s50, {E*2}"); A.op("s_mov_b32 s51, 0x20000")
    A.op("s_waitcnt lgkmcnt(0)")
    A.op("s_barrier")
    if prof: A.op("s_memrealtime s[70:71]")
    entry_pass(True)
    A.op("s_waitcnt vmcnt(0) lgkmcnt(0)")
    A.op("s_barrier")
    if prof: A.op("s_memrealtime s[72:73]")
    if rtt:
        A.op(f"s_cmp_eq_u32 s6, {NW}"); A.op("s_cbranch_scc1 hop_rtt")
    if pw:
        A.op(f"s_cmp_eq_u32 s6, {NW}"); A.op("s_cbranch_scc1 hop_pw")
    P = [26, 26 + maxpairs]
    VA = 26 + 2 * maxpairs; VN = VA + 2; VS = VN + 2
    DATA = (VS + 2 + 3) // 4 * 4
    ACC = [10, 18]
    nv = DATA + 8 * maxdepth
    assert nv <= 128
    A.op("v_and_b32 v0, 63, v0")
    A.op("v_and_b32 v8, 7, v0"); A.op("v_lshlrev_b32 v8, 4, v8")
    A.op("v_lshrrev_b32 v5, 3, v0")
    pc = sum(p << (4 * w) for w, p in enumerate(perm))
    A.op(f"s_mov_b32 s58, {pc & 0xffffffff:#x}"); A.op(f"s_mov_b32 s59, {pc >> 32:#x}")
    A.op("s_lshl_b32 s9, s6, 2"); A.op("s_lshr_b64 s[58:59], s[58:59], s9"); A.op("s_and_b32 s56, s58, 15")
    A.op("s_lshl_b32 s9, s56, 4")
    A.op("v_add_u32 v5, s9, v5")
    A.op(f"s_mul_i32 s10, s8, {RN}")
    for i in range(2):
        A.op(f"v_add_u32 v6, {8*i}, v5")
        A.op(f"v_mul_u32_u24 v7, {IMG_STRIDE}, v6")
        A.op("v_lshlrev_b32 v6, 2, v6")
        A.op(f"ds_read_b32 v2, v6 offset:{L_NODE}"); A.op(f"ds_read_b32 v{3+i}, v6 offset:{L_DEG}")
        for p in range(maxpairs):
            A.op(f"ds_read_b32 v{P[i]+p}, v7 offset:{L_IMG + 4*p}")
            if p % 8 == 7: A.op("s_waitcnt lgkmcnt(4)")
        A.op("s_waitcnt lgkmcnt(4)")
        A.op("v_cmp_gt_u32 vcc, 200, v2")
        A.op("v_min_u32 v6, 199, v2"); A.op("v_lshlrev_b32 v6, 2, v6")
        A.op(f"ds_read_b32 v{VS+i}, v6 offset:{L_DSQ}")
        A.op("v_add_u32 v2, s10, v2")
        A.op("v_lshl_add_u32 v2, v2, 7, v8")
        A.op(f"v_cndmask_b32_e64 v{VN+i}, -1, v2, vcc")
    A.op("v_max_u32 v3, v3, v4")
    A.op("s_nop 0")
    A.op("v_readfirstlane_b32 s40, v3")
    A.op("s_nop 3")
    A.op(f"s_cmp_gt_u32 s40, {CAP}"); A.op("s_cselect_b32 s41, 1, 0")
    A.op(f"s_min_u32 s40, s40, {CAP}"); A.op("s_add_u32 s40, s40, 1"); A.op("s_lshr_b32 s40, s40, 1")
    A.op("s_waitcnt lgkmcnt(0)")
    A.op("s_mov_b32 s28, 0x3f80"); A.op("s_mov_b32 s29, 0x3f800000"); A.op("s_mov_b32 s30, 128")
    A.op(f"s_mul_i32 s19, s7, {HALF}")
    A.op("s_add_u32 s20, s4, s19"); A.op("s_addc_u32 s21, s5, 0")
    A.op(f"s_mov_b32 s22, {HALF}"); A.op("s_mov_b32 s23, 0x20000")
    A.op(f"s_add_u32 s24, s20, {TAB}"); A.op("s_addc_u32 s25, s21, 0")
    A.op(f"s_mov_b32 s26, {HALF}"); A.op("s_mov_b32 s27, 0x20000")
    cbytes = nshard * 128 if bar == 'cnt' else 128 * 128
    A.op(f"s_mul_i32 s19, s7, {cbytes}"); A.op(f"s_add_u32 s19, s19, {OFF_CNT}")
    A.op("s_add_u32 s32, s4, s19"); A.op("s_addc_u32 s33, s5, 0")
    A.op(f"s_mov_b32 s34, {cbytes}"); A.op("s_mov_b32 s35, 0x20000")
    A.op(f"s_lshl_b32 s19, s7, 3"); A.op(f"s_add_u32 s19, s19, {OFF_ST + ST_TOK}")
    A.op("s_add_u32 s76, s4, s19"); A.op("s_addc_u32 s77, s5, 0")
    A.op(f"s_mov_b32 s78, {ST_TOK - 8}"); A.op("s_mov_b32 s79, 0x20000")
    A.op("s_mov_b32 s36, 0")
    if prof:
        A.op("s_memrealtime s[74:75]")
        A.op("s_waitcnt lgkmcnt(0)")
        srd(A, 80, 4, 4 << 20, 96 << 20)
        A.op("s_lshl_b32 s84, s2, 4"); A.op("s_add_u32 s84, s84, s6"); A.op("s_lshl_b32 s84, s84, 10")
        A.op("s_mov_b64 exec, 1")
        for qi in range(6):
            A.op(f"v_mov_b32 v6, s{64+2*qi}"); A.op(f"v_mov_b32 v7, s{65+2*qi}"); A.op(f"v_mov_b32 v2, {8*qi}")
            A.op("buffer_store_dwordx2 v[6:7], v2, s[80:83], s84 offen"); A.op("s_nop 1")
        A.op("s_mov_b64 exec, -1")
    def stats():
        A.cmt("row statistics (sum, sum of squares over this half) for the transformer LayerNorm")
        for i in range(2):
            t = DATA + 8 + 2 * i
            A.op(f"v_add_f32 v{t}, v{ACC[i]}, v{ACC[i]+1}"); A.op(f"v_mul_f32 v{t+1}, v{ACC[i]}, v{ACC[i]}")
            A.op(f"v_fmac_f32 v{t+1}, v{ACC[i]+1}, v{ACC[i]+1}")
            for q in range(2, 8):
                A.op(f"v_add_f32 v{t}, v{t}, v{ACC[i]+q}"); A.op(f"v_fmac_f32 v{t+1}, v{ACC[i]+q}, v{ACC[i]+q}")
        for m in ("quad_perm:[1,0,3,2]", "quad_perm:[2,3,0,1]", "row_half_mirror"):
            for q in range(4):
                A.op(f"v_add_f32_dpp v{DATA+8+q}, v{DATA+8+q}, v{DATA+8+q} {m} row_mask:0xf bank_mask:0xf")
        A.op(f"v_lshrrev_b32 v2, 3, v{VN}"); A.op(f"v_lshrrev_b32 v3, 3, v{VN+1}")
        A.op("s_mov_b32 exec_lo, 0x01010101"); A.op("s_mov_b32 exec_hi, 0x01010101")
        A.op(f"buffer_store_dwordx2 v[{DATA+8}:{DATA+9}], v2, s[76:79], 0 offen")
        A.op(f"buffer_store_dwordx2 v[{DATA+10}:{DATA+11}], v3, s[76:79], 0 offen")
        A.op("s_mov_b64 exec, -1")
        A.op(f"s_add_u32 s76, s76, {ST_TOK}"); A.op("s_addc_u32 s77, s77, 0")
    A.label("hop_loop")
    if prof: A.op("s_memrealtime s[64:65]")
    for i in range(2):
        for q in range(8):
            A.op(f"v_mov_b32 v{ACC[i]+q}, 0")
    if pf:
        A.op("s_lshr_b32 s82, s2, 3"); A.op("s_and_b32 s82, s82, 31")
        A.op("s_lshl_b32 s83, s6, 5"); A.op("s_add_u32 s82, s82, s83"); A.op("s_lshl_b32 s82, s82, 7")
        A.op("s_add_u32 s84, s20, s82"); A.op("s_addc_u32 s85, s21, 0")
        for b in range(1, 4):
            A.op(f"s_add_u32 s{84+2*b}, s84, {19*b*53248}"); A.op(f"s_addc_u32 s{85+2*b}, s85, 0")
    def tree(lo, hi):
        if lo == hi:
            A.op(f"s_branch hop_w{lo}"); return
        mid = (lo + hi + 1) // 2
        l = A.new("bt")
        A.op(f"s_cmp_ge_u32 s40, {mid}"); A.op(f"s_cbranch_scc1 {l}")
        tree(lo, mid - 1)
        A.label(l)
        tree(mid, hi)
    tree(0, maxpairs)
    A.label("hop_w0")
    A.op("s_branch hop_fin")
    for n in range(1, maxpairs + 1):
        A.label(f"hop_w{n}")
        steps = 2 * n
        depth = max(1, min(maxdepth, depthfn(steps), steps))
        state = {"p": None}
        def prefetch(j):
            if not pf: return
            ns = max(1, int(steps * pffrac))
            lo = min(60, (60 * j + ns - 1) // ns); hi = min(60, (60 * (j + 1) + ns - 1) // ns)
            for n_ in range(lo, hi):
                b = 84 + 2 * (n_ // 19)
                for sub in range(pf):
                    A.op(f"s_load_dword s{92 + (n_ & 1)}, s[{b}:{b+1}], {(n_ % 19) * 53248 + 64 * sub}")
        def issue(j):
            if prio:
                p = 3 - min(3, (4 * j) // steps)
                if p != state["p"]:
                    A.op(f"s_setprio {p}"); state["p"] = p
            for i in range(2):
                A.op(f"v_mad_u32_u16 v{VA + i}, v{P[i] + j//2}, s30, v8 op_sel:[{j&1},0,0,0]")
                d = DATA + 8 * (j % depth) + 4 * i
                A.op(f"buffer_load_dwordx4 v[{d}:{d+3}], v{VA + i}, s[20:23], 0 offen{ld}")
        for j in range(min(depth, steps)):
            issue(j)
        for j in range(steps):
            prefetch(j)
            out_steps = min(steps, j + depth) - j - 1
            for i in range(2):
                A.op(f"s_waitcnt vmcnt({2*out_steps + (1 - i)})")
                d = DATA + 8 * (j % depth) + 4 * i
                for q in range(ndot):
                    A.op(f"v_dot2c_f32_bf16 v{ACC[i]+2*q}, s28, v{d+q}")
                    A.op(f"v_dot2c_f32_bf16 v{ACC[i]+2*q+1}, s29, v{d+q}")
            if j + depth < steps:
                issue(j + depth)
        if n != maxpairs:
            A.op(f"s_branch hop_fin")
    A.label("hop_fin")
    if pf: A.op("s_waitcnt lgkmcnt(0)")
    if prof: A.op("s_memrealtime s[66:67]")
    if prio: A.op("s_setprio 0")
    A.op("s_cmp_eq_u32 s41, 0"); A.op("s_cbranch_scc1 hop_noovf")
    T = DATA; DD = DATA + 8
    for i in range(2):
        A.op("s_mov_b32 s52, 0")
        lg = A.new("og"); ln = A.new("on"); ll = A.new("ol"); ld = A.new("od")
        A.label(lg)
        A.op(f"s_lshl_b32 s53, s56, 4"); A.op(f"s_add_u32 s53, s53, s52"); A.op(f"s_add_u32 s53, s53, {8*i}")
        A.op("s_lshl_b32 s53, s53, 2"); A.op("v_mov_b32 v2, s53")
        A.op(f"ds_read_b32 v3, v2 offset:{L_DEG}"); A.op(f"ds_read_b32 v4, v2 offset:{L_NODE}")
        A.op("s_waitcnt lgkmcnt(0)")
        A.op("v_readfirstlane_b32 s54, v3"); A.op("v_lshlrev_b32 v4, 2, v4"); A.op("s_nop 2")
        A.op(f"s_cmp_le_u32 s54, {CAP}"); A.op(f"s_cbranch_scc1 {ln}")
        A.op(f"ds_read_b32 v4, v4 offset:{L_OVFP}")
        A.op(f"s_sub_u32 s54, s54, {CAP}")
        for q in range(8):
            A.op(f"v_mov_b32 v{T+q}, 0")
        A.op("v_lshrrev_b32 v5, 3, v0")
        A.op("s_waitcnt lgkmcnt(0)")
        A.label(ll)
        A.op("v_add_u32 v6, v4, v5"); A.op("v_lshlrev_b32 v6, 1, v6")
        A.op("buffer_load_ushort v7, v6, s[48:51], 0 offen sc1")
        A.op("v_cmp_gt_u32 vcc, s54, v5")
        A.op("v_mov_b32 v6, 0xffff")
        A.op("s_waitcnt vmcnt(0)")
        A.op("v_cndmask_b32_e64 v7, v6, v7, vcc")
        A.op("v_mad_u32_u24 v7, v7, s30, v8")
        A.op(f"buffer_load_dwordx4 v[{DD}:{DD+3}], v7, s[20:23], 0 offen sc1")
        A.op("v_add_u32 v5, 8, v5")
        A.op("s_waitcnt vmcnt(0)")
        for q in range(4):
            A.op(f"v_dot2c_f32_bf16 v{T+2*q}, s28, v{DD+q}")
            A.op(f"v_dot2c_f32_bf16 v{T+2*q+1}, s29, v{DD+q}")
        A.op("v_min_u32 v6, v5, v5")
        A.op("v_readfirstlane_b32 s55, v5"); A.op("s_nop 3")
        A.op("s_cmp_lt_u32 s55, s54"); A.op(f"s_cbranch_scc1 {ll}")
        for q in range(8):
            A.op("s_nop 1")
            A.op(f"v_add_f32_dpp v{T+q}, v{T+q}, v{T+q} row_ror:8 row_mask:0xf bank_mask:0xf")
        for q in range(8):
            A.op(f"ds_swizzle_b32 v{DD+q}, v{T+q} offset:0x401f")
        A.op("s_waitcnt lgkmcnt(0)")
        for q in range(8):
            A.op(f"v_add_f32 v{T+q}, v{T+q}, v{DD+q}")
            A.op(f"v_mov_b32 v{DD+q}, v{T+q}")
        A.op("s_nop 1")
        for q in range(8):
            A.op(f"v_permlane32_swap_b32 v{T+q}, v{DD+q}")
        A.op("s_mov_b32 s58, 0xff"); A.op("s_mov_b32 s59, 0"); A.op("s_lshl_b32 s55, s52, 3"); A.op("s_lshl_b64 s[58:59], s[58:59], s55")
        for q in range(8):
            A.op(f"v_add_f32 v{T+q}, v{T+q}, v{DD+q}")
        A.op("s_mov_b64 exec, s[58:59]")
        for q in range(8):
            A.op(f"v_add_f32 v{ACC[i]+q}, v{ACC[i]+q}, v{T+q}")
        A.op("s_mov_b64 exec, -1")
        A.label(ln)
        A.op("s_add_u32 s52, s52, 1"); A.op("s_cmp_lt_u32 s52, 8"); A.op(f"s_cbranch_scc1 {lg}")
    A.label("hop_noovf")
    for i in range(2):
        for q in range(8):
            A.op(f"v_mul_f32 v{ACC[i]+q}, v{VS+i}, v{ACC[i]+q}")
        d = DATA + 4 * i
        for q in range(4):
            A.op(f"v_cvt_pk_bf16_f32 v{d+q}, v{ACC[i]+2*q}, v{ACC[i]+2*q+1}")
        A.op(f"buffer_store_dwordx4 v[{d}:{d+3}], v{VN+i}, s[24:27], 0 offen sc0 sc1")
    A.op("s_add_u32 s36, s36, 1")
    A.op(f"s_add_u32 s20, s20, {TAB}"); A.op("s_addc_u32 s21, s21, 0")
    A.op(f"s_add_u32 s24, s24, {TAB}"); A.op("s_addc_u32 s25, s25, 0")
    A.op(f"s_cmp_ge_u32 s36, {nh}"); A.op("s_cbranch_scc1 hop_last")
    A.op("s_waitcnt vmcnt(0)")
    if prof: A.op("s_memrealtime s[68:69]")
    A.op("s_barrier")
    if prof:
        A.op("s_memrealtime s[70:71]")
        A.op("s_waitcnt lgkmcnt(0)")
        A.op("s_lshl_b32 s85, s36, 6"); A.op("s_add_u32 s85, s85, s84")
        A.op("s_mov_b64 exec, 1")
        for qi in range(4):
            A.op(f"v_mov_b32 v6, s{64+2*qi}"); A.op(f"v_mov_b32 v7, s{65+2*qi}"); A.op(f"v_mov_b32 v2, {8*qi}")
            A.op("buffer_store_dwordx2 v[6:7], v2, s[80:83], s85 offen"); A.op("s_nop 1")
        A.op("s_mov_b64 exec, -1")
    if pw: A.op("s_branch hop_barother")
    A.op("s_cmp_lg_u32 s6, 0"); A.op("s_cbranch_scc1 hop_barother")
    if bar == 'cnt':
        A.op(f"s_and_b32 s9, s8, {nshard-1}"); A.op("s_lshl_b32 s9, s9, 7")
        A.op("v_mov_b32 v2, s9"); A.op("v_mov_b32 v3, 1")
        A.op("s_mov_b64 exec, 1")
        A.op("buffer_atomic_add v3, v2, s[32:35], 0 offen sc1")
        A.op("s_mov_b64 exec, -1")
        A.op(f"v_min_u32 v5, {nshard-1}, v0"); A.op("v_lshlrev_b32 v2, 7, v5")
        A.op(f"v_sub_u32 v5, {NR + nshard - 1}, v5"); A.op(f"v_lshrrev_b32 v5, {nshard.bit_length()-1}, v5")
        A.op("v_mul_lo_u32 v5, v5, s36")
    else:
        A.op("s_lshl_b32 s9, s8, 7")
        A.op("v_mov_b32 v2, s9"); A.op("v_mov_b32 v3, s36")
        A.op("s_mov_b64 exec, 1")
        A.op("buffer_store_dword v3, v2, s[32:35], 0 offen sc0 sc1")
        A.op("s_mov_b64 exec, -1")
        A.op("v_lshlrev_b32 v2, 7, v0")
        A.op("v_add_u32 v3, 64, v0"); A.op(f"v_min_u32 v3, {NR-1}, v3"); A.op("v_lshlrev_b32 v3, 7, v3")
    A.op("v_mov_b32 v4, v2"); A.op("v_mov_b32 v9, v3"); A.op("v_mov_b32 v6, v5")
    stats()
    A.op("v_mov_b32 v2, v4"); A.op("v_mov_b32 v3, v9"); A.op("v_mov_b32 v5, v6")
    A.op("s_mov_b32 s37, 0")
    A.label("hop_poll")
    A.op("buffer_load_dword v4, v2, s[32:35], 0 offen sc0 sc1")
    if bar != 'cnt':
        A.op("buffer_load_dword v5, v3, s[32:35], 0 offen sc0 sc1")
    A.op("s_add_u32 s37, s37, 1"); A.op("s_cmp_ge_u32 s37, 100000"); A.op("s_cbranch_scc1 hop_pollok")
    A.op("s_waitcnt vmcnt(0)")
    if bar == 'cnt':
        A.op("v_cmp_ge_u32 s[38:39], v4, v5")
    else:
        A.op("v_min_u32 v4, v4, v5"); A.op("v_cmp_le_u32 s[38:39], s36, v4")
    A.op("s_nop 3")
    A.op("s_cmp_eq_u64 s[38:39], -1"); A.op("s_cbranch_scc1 hop_pollok")
    if sleep: A.op(f"s_sleep {sleep}")
    A.op("s_branch hop_poll")
    A.label("hop_pollok")
    A.op("s_waitcnt vmcnt(0)")
    A.label("hop_barw")
    A.op("s_barrier")
    A.op("s_branch hop_loop")
    A.label("hop_barother")
    stats()
    A.op("s_branch hop_barw")
    A.label("hop_last")
    stats()
    A.op("s_endpgm")
    if pw:
        A.cmt("helper wave: L2 prefetch of this hop's source half table (own share), barrier flag and poll")
        A.label("hop_pw")
        A.op(f"s_setprio {pwprio}")
        A.op("v_and_b32 v0, 63, v0")
        A.op(f"s_mul_i32 s19, s7, {HALF}")
        A.op("s_add_u32 s20, s4, s19"); A.op("s_addc_u32 s21, s5, 0")
        A.op(f"s_mov_b32 s22, {HALF}"); A.op("s_mov_b32 s23, 0x20000")
        A.op(f"s_mul_i32 s19, s7, {128*128}"); A.op(f"s_add_u32 s19, s19, {OFF_CNT}")
        A.op("s_add_u32 s32, s4, s19"); A.op("s_addc_u32 s33, s5, 0")
        A.op(f"s_mov_b32 s34, {128*128}"); A.op("s_mov_b32 s35, 0x20000")
        A.op("s_lshr_b32 s9, s2, 3"); A.op("s_and_b32 s9, s9, 31"); A.op("s_lshl_b32 s9, s9, 7")
        A.op("v_lshlrev_b32 v2, 12, v0"); A.op("v_add_u32 v2, s9, v2")
        A.op("v_lshlrev_b32 v10, 7, v0")
        A.op("v_add_u32 v11, 64, v0"); A.op(f"v_min_u32 v11, {NR-1}, v11"); A.op("v_lshlrev_b32 v11, 7, v11")
        A.op("s_lshl_b32 s9, s8, 7"); A.op("v_mov_b32 v12, s9")
        A.op("s_mov_b32 s36, 0")
        A.label("pw_hop")
        for i in range(13 if pw == 1 else 0):
            A.op(f"v_add_u32 v3, {i*64*4096}, v2")
            A.op(f"buffer_load_dword v{20+i}, v3, s[20:23], 0 offen sc1")
            if pwsleep: A.op(f"s_sleep {pwsleep}")
        A.op("s_add_u32 s36, s36, 1")
        A.op(f"s_add_u32 s20, s20, {TAB}"); A.op("s_addc_u32 s21, s21, 0")
        A.op(f"s_cmp_ge_u32 s36, {nh}"); A.op("s_cbranch_scc1 hops_done")
        A.op("s_waitcnt vmcnt(0)")
        A.op("s_barrier")
        A.op("v_mov_b32 v13, s36")
        A.op("s_mov_b64 exec, 1")
        A.op("buffer_store_dword v13, v12, s[32:35], 0 offen sc0 sc1")
        A.op("s_mov_b64 exec, -1")
        A.op("s_mov_b32 s37, 0")
        A.label("pw_poll")
        A.op("buffer_load_dword v4, v10, s[32:35], 0 offen sc0 sc1")
        A.op("buffer_load_dword v5, v11, s[32:35], 0 offen sc0 sc1")
        A.op("s_add_u32 s37, s37, 1"); A.op("s_cmp_ge_u32 s37, 100000"); A.op("s_cbranch_scc1 pw_ok")
        A.op("s_waitcnt vmcnt(0)")
        A.op("v_min_u32 v4, v4, v5"); A.op("v_cmp_le_u32 s[38:39], s36, v4")
        A.op("s_nop 3")
        A.op("s_cmp_eq_u64 s[38:39], -1"); A.op("s_cbranch_scc1 pw_ok")
        if sleep: A.op(f"s_sleep {sleep}")
        A.op("s_branch pw_poll")
        A.label("pw_ok")
        A.op("s_waitcnt vmcnt(0)")
        A.op("s_barrier")
        A.op("s_branch pw_hop")
    if rtt:
        A.label("hop_rtt")
        A.op("s_setprio 3")
        srd(A, 80, 4, 4 << 20, 96 << 20)
        srd(A, 32, 4, CNT_BYTES, OFF_CNT)
        A.op("s_lshl_b32 s84, s2, 10")
        A.op("v_and_b32 v0, 63, v0"); A.op("v_lshlrev_b32 v2, 7, v0"); A.op("v_and_b32 v2, 0x3fff, v2")
        A.op("s_mov_b32 s36, 0")
        A.label("rtt_hop")
        for i in range(rtt):
            A.op("s_memrealtime s[64:65]"); A.op("s_waitcnt lgkmcnt(0)")
            A.op("buffer_load_dword v4, v2, s[32:35], 0 offen sc0 sc1")
            A.op("s_waitcnt vmcnt(0)")
            A.op("s_memrealtime s[66:67]"); A.op("s_waitcnt lgkmcnt(0)")
            A.op("s_sub_u32 s66, s66, s64")
            A.op("s_mov_b64 exec, 1")
            A.op("v_mov_b32 v6, s66"); A.op("v_mov_b32 v7, s64"); A.op("s_lshl_b32 s85, s36, 7"); A.op("s_add_u32 s85, s85, s84"); A.op(f"v_mov_b32 v5, {8*i}")
            A.op("buffer_store_dwordx2 v[6:7], v5, s[80:83], s85 offen")
            A.op("s_mov_b64 exec, -1")
            A.op("s_sleep 6")
        A.op("s_add_u32 s36, s36, 1")
        A.op(f"s_cmp_ge_u32 s36, {nh}"); A.op("s_cbranch_scc1 hops_done")
        A.op("s_barrier"); A.op("s_barrier")
        A.op("s_branch rtt_hop")
    A.label("hops_done")
    A.op("s_endpgm")
    A.label("hops_wprep")
    wl = prep.gen_wprep(A, 64 * NW, 250)
    return dict(name=name, grid=252, block=64 * NWB, lds=max(L_END, wl), vgpr=nv, sgpr=96 if (prof or pf or rtt) else 80)
```

```python
from common import *

MAGIC200 = 41944

def pi_expr(A, dst, m, t1):
    A.op(f"v_and_b32 v{dst}, 0x13, v{m}")
    A.op(f"v_and_b32 v{t1}, 4, v{m}")
    A.op(f"v_lshl_or_b32 v{dst}, v{t1}, 1, v{dst}")
    A.op(f"v_and_b32 v{t1}, 8, v{m}")
    A.op(f"v_lshrrev_b32 v{t1}, 1, v{t1}")
    A.op(f"v_or_b32 v{dst}, v{dst}, v{t1}")

def gen_prep(A, skip=(), cells=False):
    name = "prep_kernel"
    kernel_begin(A, name)
    A.op("s_cmp_ge_u32 s2, 251"); A.op("s_cbranch_scc1 prep_done")
    A.op("s_load_dwordx2 s[4:5], s[0:1], 88")
    A.op("s_cmp_ge_u32 s2, 250"); A.op("s_cbranch_scc1 prep_misc")
    A.op("s_cmp_ge_u32 s2, 125"); A.op("s_cbranch_scc1 prep_x")
    if "edge" in skip: A.op("s_endpgm")
    A.op("s_load_dwordx4 s[8:11], s[0:1], 8")
    A.op("v_lshlrev_b32 v1, 2, v0")
    A.op("v_mov_b32 v2, 0")
    A.op("v_cmp_gt_u32 vcc, 128, v0"); A.op("s_and_saveexec_b64 s[20:21], vcc")
    A.op("ds_write_b32 v1, v2")
    A.op("s_mov_b64 exec, s[20:21]")
    A.op("s_waitcnt lgkmcnt(0)")
    srd(A, 12, 8, E * 4)
    srd(A, 16, 10, E * 4)
    A.op("s_mul_i32 s3, s2, 12800")
    A.op("v_lshlrev_b32 v3, 4, v0")
    A.op("buffer_load_dwordx4 v[4:7], v3, s[16:19], s3 offen")
    A.op("buffer_load_dwordx4 v[8:11], v3, s[12:15], s3 offen")
    A.op("s_barrier")
    A.op(f"s_mov_b32 s22, {MAGIC200}")
    A.op("s_waitcnt vmcnt(1)")
    for i in range(4):
        A.op(f"v_mul_u32_u24 v{12+i}, s22, v{4+i}")
        A.op(f"v_lshrrev_b32 v{12+i}, 23, v{12+i}")
        A.op(f"v_mul_u32_u24 v{16+i}, 200, v{12+i}")
        A.op(f"v_sub_u32 v{16+i}, v{4+i}, v{16+i}")
        A.op(f"v_lshlrev_b32 v{12+i}, 2, v{12+i}")
    A.op("v_mov_b32 v2, 1")
    for i in range(4):
        A.op(f"ds_add_rtn_u32 v{20+i}, v{12+i}, v2")
    A.op("s_waitcnt vmcnt(0)")
    for i in range(4):
        A.op(f"v_lshl_or_b32 v{16+i}, v{16+i}, 16, v{8+i}")
        A.op(f"v_lshl_or_b32 v{16+i}, v{12+i}, 22, v{16+i}")
    A.op("s_waitcnt lgkmcnt(0)")
    A.op("s_barrier")
    A.op("v_cmp_gt_u32 vcc, 64, v0"); A.op("s_and_saveexec_b64 s[20:21], vcc")
    l = A.new("es"); A.op(f"s_cbranch_execz {l}")
    A.op("v_lshlrev_b32 v3, 3, v0")
    A.op("ds_read_b64 v[24:25], v3")
    A.op("s_waitcnt lgkmcnt(0)")
    A.op("v_add_u32 v26, v24, v25")
    A.op("v_mov_b32 v27, v26")
    wave_scan_incl(A, 26)
    A.op("v_sub_u32 v26, v26, v27")
    A.op("v_add_u32 v27, v26, v24")
    A.op("ds_write_b64 v3, v[26:27] offset:512")
    srd(A, 24, 4, NR * 512, OFF_OFFS)
    A.op("s_lshl_b32 s23, s2, 9")
    A.op("buffer_store_dwordx2 v[26:27], v3, s[24:27], s23 offen")
    A.label(l)
    A.op("s_mov_b64 exec, s[20:21]")
    A.op("s_waitcnt lgkmcnt(0)")
    A.op("s_barrier")
    for i in range(4):
        A.op(f"ds_read_b32 v{24+i}, v{12+i} offset:512")
    A.op("s_waitcnt lgkmcnt(0)")
    for i in range(4):
        A.op(f"v_add_lshl_u32 v{24+i}, v{24+i}, v{20+i}, 2")
    for i in range(4):
        A.op(f"ds_write_b32 v{24+i}, v{16+i} offset:1024")
    A.op("s_waitcnt lgkmcnt(0)")
    A.op("s_barrier")
    A.op("v_lshlrev_b32 v3, 4, v0")
    A.op("ds_read_b128 v[4:7], v3 offset:1024")
    srd(A, 24, 4, E * 4, OFF_ENT)
    srd(A, 28, 4, CELL_BYTES, OFF_CELL)
    A.op("s_waitcnt lgkmcnt(0)")
    A.op("buffer_store_dwordx4 v[4:7], v3, s[24:27], s3 offen")
    if cells:
        A.cmt("fixed-capacity cells [bucket][chunk][64]: entry at sorted position p of bucket b goes to rank p - offs[b]")
        A.op("v_lshlrev_b32 v2, 2, v0")
        for i in range(4):
            A.op(f"ds_read_b32 v{24+i}, v2 offset:{1024 + 3200*i}")
        A.op("s_waitcnt lgkmcnt(0)")
        for i in range(4):
            A.op(f"v_lshrrev_b32 v{8+i}, 24, v{24+i}")
            A.op(f"v_lshlrev_b32 v{12+i}, 2, v{8+i}")
            A.op(f"ds_read_b32 v{16+i}, v{12+i} offset:512")
        A.op("s_lshl_b32 s23, s2, 8")
        A.op("s_waitcnt lgkmcnt(0)")
        for i in range(4):
            A.op(f"v_add_u32 v20, {800*i}, v0"); A.op(f"v_sub_u32 v20, v20, v{16+i}")
            A.op(f"v_mul_u32_u24 v21, {NR*256}, v{8+i}"); A.op("v_lshl_add_u32 v21, v20, 2, v21")
            A.op("v_cmp_gt_u32 vcc, 64, v20")
            A.op("s_nop 1")
            A.op("v_cndmask_b32_e64 v21, -1, v21, vcc")
            A.op(f"buffer_store_dword v{24+i}, v21, s[28:31], s23 offen")
    A.op("s_endpgm")
    A.label("prep_x")
    if "x" in skip: A.op("s_endpgm")
    A.op("s_load_dwordx2 s[8:9], s[0:1], 0")
    A.op("s_load_dwordx2 s[10:11], s[0:1], 24")
    A.op("s_sub_u32 s3, s2, 125")
    A.op("s_waitcnt lgkmcnt(0)")
    srd(A, 12, 8, TAB)
    srd(A, 16, 10, N * 2)
    srd(A, 24, 4, TAB, OFF_G)
    A.op("s_mul_i32 s20, s3, 51200")
    A.op("s_mul_i32 s21, s3, 400")
    A.op("s_mul_i32 s22, s3, 25600")
    for i in range(4):
        A.op(f"v_add_u32 v1, {800*i}, v0")
        A.op(f"v_lshlrev_b32 v2, 4, v1")
        A.op(f"buffer_load_dwordx4 v[{8+4*i}:{11+4*i}], v2, s[12:15], s20 offen")
        A.op(f"v_lshrrev_b32 v3, 4, v1")
        A.op(f"v_lshlrev_b32 v4, 1, v3")
        A.op(f"buffer_load_ushort v{24+i}, v4, s[16:19], s21 offen")
        A.op(f"v_and_b32 v4, 7, v1"); A.op(f"v_lshlrev_b32 v4, 4, v4")
        A.op(f"v_lshl_add_u32 v4, v3, 7, v4")
        A.op(f"v_bfe_u32 v5, v1, 3, 1")
        A.op(f"s_mov_b32 s23, {HALF}")
        A.op(f"v_mad_u32_u24 v{28+i}, v5, s23, v4")
    A.op("s_mov_b32 s23, 0xffff0000")
    srd(A, 28, 4, ST_TOK, OFF_ST)
    A.op("s_mul_i32 s32, s3, 3200")
    A.op("s_mov_b32 s34, 0x01010101"); A.op("s_mov_b32 s35, 0x01010101")
    for i in range(4):
        A.op(f"s_waitcnt vmcnt({6-2*i})" if i == 0 else f"s_waitcnt vmcnt({2*(3-i) + 2*i})")
        A.op(f"v_lshlrev_b32 v{24+i}, 16, v{24+i}")
        A.op("v_mov_b32 v32, 0"); A.op("v_mov_b32 v33, 0")
        for q in range(4):
            r = 8 + 4 * i + q
            A.op(f"v_lshlrev_b32 v2, 16, v{r}")
            A.op(f"v_and_b32 v3, s23, v{r}")
            A.op("v_add_f32 v32, v32, v2"); A.op("v_fmac_f32 v33, v2, v2")
            A.op("v_add_f32 v32, v32, v3"); A.op("v_fmac_f32 v33, v3, v3")
            A.op(f"v_mul_f32 v2, v2, v{24+i}")
            A.op(f"v_mul_f32 v3, v3, v{24+i}")
            A.op(f"v_cvt_pk_bf16_f32 v{r}, v2, v3")
        A.op(f"buffer_store_dwordx4 v[{8+4*i}:{11+4*i}], v{28+i}, s[24:27], s22 offen")
        for m in ("quad_perm:[1,0,3,2]", "quad_perm:[2,3,0,1]", "row_half_mirror"):
            A.op("s_nop 0")
            A.op(f"v_add_f32_dpp v32, v32, v32 {m} row_mask:0xf bank_mask:0xf")
            A.op(f"v_add_f32_dpp v33, v33, v33 {m} row_mask:0xf bank_mask:0xf")
        A.op(f"v_add_u32 v34, {800*i}, v0"); A.op("v_and_b32 v34, -8, v34")
        A.op("s_mov_b64 s[36:37], exec"); A.op("s_and_b64 exec, exec, s[34:35]")
        A.op("buffer_store_dwordx2 v[32:33], v34, s[28:31], s32 offen")
        A.op("s_mov_b64 exec, s[36:37]")
    A.op("s_endpgm")
    A.label("prep_misc")
    A.op("s_waitcnt lgkmcnt(0)")
    srd(A, 24, 4, CNT_BYTES, OFF_CNT)
    A.op("v_lshlrev_b32 v1, 4, v0")
    for i in range(4):
        A.op(f"v_mov_b32 v{4+i}, 0")
    for i in range(-(-CNT_BYTES // 12800)):
        A.op(f"s_mov_b32 s3, {12800*i}")
        A.op("buffer_store_dwordx4 v[4:7], v1, s[24:27], s3 offen")
    A.op("s_endpgm")
    A.label("prep_done")
    A.op("s_endpgm")
    return dict(name=name, grid=251, block=800, lds=14336, vgpr=40, sgpr=40)

def gen_wprep(A, NT, first):
    LMEAN = 0
    FM = 2048
    STR = 129
    LWO = 68096
    A.op("s_load_dwordx4 s[8:11], s[0:1], 32")
    A.op("s_load_dwordx4 s[12:15], s[0:1], 48")
    A.op("s_load_dwordx2 s[28:29], s[0:1], 64")
    A.op("v_lshrrev_b32 v1, 6, v0"); A.op("s_nop 0")
    A.op("v_readfirstlane_b32 s6, v1")
    A.op("v_and_b32 v30, 63, v0")
    A.op("v_and_b32 v31, 31, v30")
    A.op("v_lshrrev_b32 v32, 5, v30")
    A.op("s_waitcnt lgkmcnt(0)")
    A.op(f"s_cmp_eq_u32 s2, {first}")
    A.op("s_cselect_b32 s16, s8, s12"); A.op("s_cselect_b32 s17, s9, s13")
    A.op("s_mov_b32 s18, 32768"); A.op("s_mov_b32 s19, 0x20000")
    A.op("s_cselect_b32 s20, s10, s14"); A.op("s_cselect_b32 s21, s11, s15")
    A.op("s_mov_b32 s22, 32768"); A.op("s_mov_b32 s23, 0x20000")
    A.op("s_cbranch_scc1 wprep_nostage")
    for i in range(3):
        A.op(f"v_add_u32 v1, {NT*i}, v0")
        A.op("v_lshlrev_b32 v2, 4, v1")
        if i == 2:
            A.op("v_cmp_gt_u32 vcc, 2048, v1"); A.op("s_and_saveexec_b64 s[24:25], vcc")
            l = A.new("st"); A.op(f"s_cbranch_execz {l}")
        A.op("buffer_load_dwordx4 v[4:7], v2, s[20:23], 0 offen")
        A.op("s_waitcnt vmcnt(0)")
        A.op(f"v_add_u32 v2, {LWO}, v2")
        A.op(f"ds_write_b128 v2, v[4:7]")
        if i == 2:
            A.label(l); A.op("s_mov_b64 exec, s[24:25]")
    A.op("s_waitcnt lgkmcnt(0)")
    A.label("wprep_nostage")
    A.op("s_barrier")
    A.op("s_cmp_ge_u32 s6, 8"); A.op("s_cbranch_scc1 wprep_mm_done")
    A.op("s_lshr_b32 s24, s6, 1"); A.op("s_and_b32 s25, s6, 1"); A.op("s_lshl_b32 s25, s25, 1")
    A.op("s_lshl_b32 s26, s24, 13")
    A.op("v_lshlrev_b32 v1, 8, v31"); A.op("v_lshl_add_u32 v1, v32, 4, v1")
    for kk in range(8):
        A.op(f"buffer_load_dwordx4 v[{40+4*kk}:{43+4*kk}], v1, s[16:19], s26 offen offset:{32*kk}")
    for te in range(2):
        A.op(f"s_cmp_eq_u32 s2, {first}"); lb = A.new("bw"); le = A.new("be"); A.op(f"s_cbranch_scc0 {lb}")
        A.op(f"s_add_u32 s27, s25, {te}"); A.op("s_lshl_b32 s27, s27, 13")
        for kk in range(8):
            A.op(f"buffer_load_dwordx4 v[{72+4*kk}:{75+4*kk}], v1, s[20:23], s27 offen offset:{32*kk}")
        A.op("s_waitcnt vmcnt(0)")
        A.op(f"s_branch {le}")
        A.label(lb)
        A.op("v_and_b32 v2, 15, v30")
        A.op("v_lshrrev_b32 v3, 2, v2")
        A.op("v_and_b32 v2, 3, v2")
        A.op("v_lshl_add_u32 v3, v32, 3, v3")
        A.op("v_lshlrev_b32 v3, 8, v3")
        A.op("v_lshl_add_u32 v3, v2, 3, v3")
        A.op("v_bfe_u32 v2, v30, 4, 1")
        A.op("v_lshl_add_u32 v3, v2, 5, v3")
        A.op(f"s_add_u32 s27, s25, {te}"); A.op("s_lshl_b32 s27, s27, 6")
        A.op(f"s_add_u32 s27, s27, {LWO}")
        A.op("v_add_u32 v3, s27, v3")
        for kk in range(8):
            A.op(f"ds_read_b64_tr_b16 v[{72+4*kk}:{73+4*kk}], v3 offset:{4096*kk}")
            A.op(f"ds_read_b64_tr_b16 v[{74+4*kk}:{75+4*kk}], v3 offset:{4096*kk+1024}")
        A.op("s_waitcnt vmcnt(0) lgkmcnt(0)")
        A.label(le)
        for kk in range(8):
            c = "0" if kk == 0 else "v[104:119]"
            A.op(f"v_mfma_f32_32x32x16_bf16 v[104:119], v[{40+4*kk}:{43+4*kk}], v[{72+4*kk}:{75+4*kk}], {c}")
        A.op("s_nop 15"); A.op("s_nop 7")
        A.op("s_lshl_b32 s27, s24, 5")
        A.op("v_lshlrev_b32 v2, 2, v32"); A.op("v_add_u32 v2, s27, v2")
        A.op(f"v_mul_u32_u24 v2, {STR}, v2")
        A.op(f"s_add_u32 s27, s25, {te}"); A.op("s_lshl_b32 s27, s27, 5")
        A.op("v_add3_u32 v2, v2, s27, v31")
        A.op("v_lshlrev_b32 v2, 2, v2")
        for r in range(16):
            d = (r & 3) + 8 * (r >> 2)
            A.op(f"ds_write_b32 v2, v{104+r} offset:{FM + d*STR*4}")
    A.label("wprep_mm_done")
    A.op("s_waitcnt lgkmcnt(0)")
    A.op("s_barrier")
    A.op("v_cmp_gt_u32 vcc, 256, v0"); A.op("s_and_saveexec_b64 s[24:25], vcc")
    l = A.new("mn"); A.op(f"s_cbranch_execz {l}")
    A.op("v_and_b32 v2, 127, v0")
    A.op("v_cmp_gt_u32 vcc, 128, v0")
    A.op(f"v_mul_u32_u24 v3, {STR}, v2")
    A.op("s_nop 1")
    A.op("v_cndmask_b32_e64 v3, v3, v2, vcc")
    A.op(f"v_mov_b32 v4, {STR}")
    A.op("v_cndmask_b32_e64 v4, 1, v4, vcc")
    A.op("v_lshlrev_b32 v3, 2, v3"); A.op("v_lshlrev_b32 v4, 2, v4")
    A.op("v_mov_b32 v5, 0")
    A.op("s_mov_b32 s26, 0")
    lp = A.new("ml"); A.label(lp)
    for i in range(8):
        A.op(f"ds_read_b32 v{8+i}, v3 offset:{FM}"); A.op("v_add_u32 v3, v3, v4")
    A.op("s_waitcnt lgkmcnt(0)")
    for i in range(8):
        A.op(f"v_add_f32 v5, v5, v{8+i}")
    A.op("s_add_u32 s26, s26, 1"); A.op("s_cmp_lt_u32 s26, 16"); A.op(f"s_cbranch_scc1 {lp}")
    A.op("v_mul_f32 v5, 0x3c000000, v5")
    A.op("v_lshlrev_b32 v2, 2, v0")
    A.op(f"ds_write_b32 v2, v5 offset:{LMEAN}")
    A.label(l)
    A.op("s_mov_b64 exec, s[24:25]")
    A.op("s_waitcnt lgkmcnt(0)")
    A.op("s_barrier")
    A.op("v_lshlrev_b32 v2, 3, v30")
    A.op(f"ds_read_b64 v[4:5], v2 offset:{LMEAN}")
    A.op("s_waitcnt lgkmcnt(0)")
    A.op("v_add_f32 v4, v4, v5")
    A.op("s_cmp_eq_u32 s6, 0"); l = A.new("tm"); A.op(f"s_cbranch_scc0 {l}")
    for sh in (1, 2, 4, 8):
        A.op("s_nop 1"); A.op(f"v_add_f32_dpp v4, v4, v4 row_shr:{sh} row_mask:0xf bank_mask:0xf")
    A.op("s_nop 1"); A.op("v_add_f32_dpp v4, v4, v4 row_bcast:15 row_mask:0xa bank_mask:0xf")
    A.op("s_nop 1"); A.op("v_add_f32_dpp v4, v4, v4 row_bcast:31 row_mask:0xc bank_mask:0xf")
    A.op("s_nop 1"); A.op("v_readlane_b32 s26, v4, 63")
    A.op("s_nop 3"); A.op("v_mov_b32 v4, s26"); A.op("v_mul_f32 v4, 0x3c000000, v4")
    A.op("v_mov_b32 v2, 0"); A.op(f"ds_write_b32 v2, v4 offset:{LMEAN+1024}")
    A.label(l)
    A.op("s_waitcnt lgkmcnt(0)")
    A.op("s_barrier")
    A.op(f"s_cmp_eq_u32 s2, {first}")
    A.op(f"s_cselect_b32 s26, 0, 32768")
    A.op("s_cselect_b32 s30, 0x3e0293ee, 1.0")
    A.op("s_cselect_b32 s31, 1.0, 0")
    A.op(f"s_add_u32 s26, s26, {OFF_WM}")
    A.op("s_add_u32 s24, s4, s26"); A.op("s_addc_u32 s25, s5, 0")
    A.op("s_mov_b32 s26, 32768"); A.op("s_mov_b32 s27, 0x20000")
    A.op("v_mov_b32 v2, 0"); A.op(f"ds_read_b32 v33, v2 offset:{LMEAN+1024}")
    for i in range(3):
        A.op(f"v_add_u32 v1, {NT*i}, v0")
        if i == 2:
            A.op("v_cmp_gt_u32 vcc, 2048, v1"); A.op("s_and_saveexec_b64 s[34:35], vcc")
            l = A.new("em"); A.op(f"s_cbranch_execz {l}")
        A.op("v_and_b32 v2, 31, v1")
        pi_expr(A, 3, 2, 4)
        A.op("v_lshrrev_b32 v4, 9, v1")
        A.op("v_lshl_add_u32 v3, v4, 5, v3")
        A.op("v_bfe_u32 v4, v1, 6, 3")
        A.op("v_bfe_u32 v5, v1, 5, 1")
        A.op("v_lshlrev_b32 v4, 4, v4"); A.op("v_lshl_add_u32 v4, v5, 3, v4")
        A.op(f"v_mul_u32_u24 v5, {STR}, v4"); A.op("v_add_lshl_u32 v5, v5, v3, 2")
        for j in range(8):
            A.op(f"ds_read_b32 v{8+j}, v5 offset:{FM + j*STR*4}")
        A.op("v_lshlrev_b32 v6, 2, v3"); A.op(f"ds_read_b32 v16, v6 offset:{LMEAN}")
        A.op("v_lshlrev_b32 v6, 2, v4")
        A.op(f"ds_read_b128 v[20:23], v6 offset:{LMEAN+512}"); A.op(f"ds_read_b128 v[24:27], v6 offset:{LMEAN+528}")
        A.op("s_waitcnt lgkmcnt(0)")
        for j in range(8):
            A.op(f"v_sub_f32 v{20+j}, v{20+j}, v33")
            A.op(f"v_sub_f32 v{8+j}, v{8+j}, v16")
            A.op(f"v_fma_f32 v{8+j}, -v{20+j}, s31, v{8+j}")
            A.op(f"v_mul_f32 v{8+j}, s30, v{8+j}")
        for j in range(4):
            A.op(f"v_cvt_pk_bf16_f32 v{8+j}, v{8+2*j}, v{9+2*j}")
        A.op("v_lshlrev_b32 v6, 4, v1")
        A.op("buffer_store_dwordx4 v[8:11], v6, s[24:27], 0 offen")
        if i == 2:
            A.label(l); A.op("s_mov_b64 exec, s[34:35]")
    A.op(f"s_cmp_eq_u32 s2, {first+1}"); A.op("s_cbranch_scc0 wprep_done")
    A.op("s_cmp_ge_u32 s6, 1"); A.op("s_cbranch_scc1 wprep_done")
    srd(A, 12, 28, 256)
    A.op("v_lshlrev_b32 v2, 1, v30")
    A.op("buffer_load_ushort v4, v2, s[12:15], 0 offen")
    A.op("buffer_load_ushort v5, v2, s[12:15], 0 offen offset:128")
    A.op("s_waitcnt vmcnt(0)")
    A.op("v_lshlrev_b32 v4, 16, v4"); A.op("v_lshlrev_b32 v5, 16, v5")
    A.op("v_add_f32 v6, v4, v5")
    for sh in (1, 2, 4, 8):
        A.op("s_nop 1"); A.op(f"v_add_f32_dpp v6, v6, v6 row_shr:{sh} row_mask:0xf bank_mask:0xf")
    A.op("s_nop 1"); A.op("v_add_f32_dpp v6, v6, v6 row_bcast:15 row_mask:0xa bank_mask:0xf")
    A.op("s_nop 1"); A.op("v_add_f32_dpp v6, v6, v6 row_bcast:31 row_mask:0xc bank_mask:0xf")
    A.op("s_nop 1"); A.op("v_readlane_b32 s26, v6, 63")
    A.op("s_nop 3"); A.op("v_mov_b32 v6, s26"); A.op("v_mul_f32 v6, 0x3c000000, v6")
    A.op("v_sub_f32 v4, v4, v6"); A.op("v_sub_f32 v5, v5, v6")
    srd(A, 16, 4, 512, OFF_WC)
    for (val, add) in ((4, 0), (5, 64)):
        A.op(f"v_add_u32 v7, {add}, v30")
        A.op("v_bfe_u32 v8, v7, 3, 1"); A.op("v_lshlrev_b32 v8, 6, v8")
        A.op("v_lshrrev_b32 v9, 5, v7"); A.op("v_lshl_add_u32 v8, v9, 4, v8")
        A.op("v_bfe_u32 v9, v7, 4, 1"); A.op("v_lshl_add_u32 v8, v9, 3, v8")
        A.op("v_and_b32 v9, 7, v7"); A.op("v_add_lshl_u32 v8, v8, v9, 2")
        A.op(f"buffer_store_dword v{val}, v8, s[16:19], 0 offen")
    A.label("wprep_done")
    A.op("s_endpgm")
    return 100864
```

```python
import re

def regs_of(tok):
    tok = tok.strip()
    neg = tok.lstrip("-|").rstrip("|")
    if neg.startswith("abs(") and neg.endswith(")"): neg = neg[4:-1]
    m = re.fullmatch(r"([vsa])\[(\d+):(\d+)\]", neg)
    if m: return [f"{m.group(1)}{i}" for i in range(int(m.group(2)), int(m.group(3)) + 1)]
    m = re.fullmatch(r"([vsa])(\d+)", neg)
    if m: return [neg]
    if neg in ("vcc", "exec", "m0", "scc"): return [neg]
    if neg in ("vcc_lo", "vcc_hi"): return ["vcc"]
    return []

TRANS = ("v_exp_f32", "v_log_f32", "v_rcp_f32", "v_rsq_f32", "v_sqrt_f32")
FAST = ("v_add_f32", "v_sub_f32", "v_mul_f32", "v_fma_f32", "v_fmac_f32", "v_mov_b32", "v_and_b32", "v_or_b32", "v_xor_b32", "v_add_u32", "v_sub_u32", "v_subrev_f32")

class Op:
    __slots__ = ("text", "name", "defs", "uses", "kind", "idx", "extra_dep", "prio", "succ", "pred", "t", "dpp", "srcC", "ab", "cost")
    def __init__(self, text, memr=(), memw=()):
        self.text = text
        body = text.split(";")[0].strip()
        parts = body.split(None, 1)
        name = parts[0]; self.name = name
        rest = parts[1] if len(parts) > 1 else ""
        ops = [o.strip() for o in re.split(r",(?![^\[]*\])", rest)] if rest else []
        mods = ""
        if ops:
            sp = ops[-1].split(None, 1)
            if len(sp) > 1 and not ops[-1].startswith(("abs", "-")):
                ops[-1] = sp[0]; mods = sp[1]
            elif len(sp) > 1:
                ops[-1] = sp[0]; mods = sp[1]
        defs, uses = [], []
        self.dpp = ("row_" in mods or "quad_perm" in mods or "wave_" in mods)
        self.srcC = []; self.ab = []
        R = regs_of
        if name.startswith("v_mfma"):
            self.kind = "mfma"
            defs = R(ops[0]); self.ab = R(ops[1]) + R(ops[2]); self.srcC = R(ops[3]); uses = self.ab + self.srcC
        elif name.startswith("ds_read") or name.startswith("ds_bpermute") or name.startswith("ds_swizzle"):
            self.kind = "ds"; defs = R(ops[0]); uses = sum((R(o) for o in ops[1:]), [])
        elif name.startswith("ds_write"):
            self.kind = "ds"; uses = sum((R(o) for o in ops), [])
        elif name.startswith("buffer_load"):
            self.kind = "vmem"
            if " lds" in " " + mods or mods.endswith("lds"):
                uses = sum((R(o) for o in ops), []) + ["m0"]
            else:
                defs = R(ops[0]); uses = sum((R(o) for o in ops[1:]), [])
        elif name.startswith("buffer_store"):
            self.kind = "vmem"; uses = sum((R(o) for o in ops), [])
        elif name.startswith("v_"):
            self.kind = "valu"
            base = name.replace("_e64", "").replace("_e32", "").replace("_dpp", "")
            if base.startswith("v_cmp"):
                defs = R(ops[0]); uses = sum((R(o) for o in ops[1:]), [])
            elif base in ("v_permlane32_swap_b32", "v_permlane16_swap_b32", "v_swap_b32"):
                defs = R(ops[0]) + R(ops[1]); uses = list(defs)
            else:
                defs = R(ops[0]); uses = sum((R(o) for o in ops[1:]), [])
                if base in ("v_fmac_f32", "v_dot2c_f32_bf16") or self.dpp:
                    uses += defs
                if base == "v_cndmask_b32" and len(ops) == 3: uses.append("vcc")
            uses.append("exec")
        elif name.startswith("s_"):
            self.kind = "salu"
            if name in ("s_nop", "s_setprio", "s_sleep"):
                pass
            elif name.startswith("s_cmp"):
                uses = sum((R(o) for o in ops), []); defs = ["scc"]
            else:
                defs = R(ops[0]); uses = sum((R(o) for o in ops[1:]), [])
                if name.startswith(("s_add", "s_sub", "s_lshl", "s_lshr", "s_and", "s_or", "s_xor", "s_min", "s_max")): defs.append("scc")
                if name.startswith(("s_addc", "s_subb", "s_cselect")): uses.append("scc")
        else:
            raise ValueError("unknown op " + text)
        if self.kind in ("ds", "vmem"): uses.append("exec")
        defs = defs + list(memw); uses = uses + list(memr)
        self.defs = set(defs); self.uses = set(uses)
        base = name.replace("_e64", "").replace("_e32", "").replace("_dpp", "")
        if self.kind == "valu":
            if base in TRANS or base.startswith("v_permlane"): self.cost = 8
            elif base in FAST and not self.dpp: self.cost = 3
            else: self.cost = 4
        elif self.kind == "mfma": self.cost = 8
        else: self.cost = 4

def latency(p, c, reg):
    if reg[0] == "M": return 4
    if p.kind == "mfma":
        if c.kind == "mfma" and reg in c.srcC and c.srcC and set(c.srcC) == p.defs: return 32
        return 64
    if p.kind == "ds": return 128 if reg[0] == "v" else 4
    if p.kind == "vmem": return 600 if reg[0] == "v" else 4
    if p.name.startswith("v_dot2") and p.name != c.name: return 16
    if p.kind == "valu": return max(p.cost, 8 if (c.kind == "mfma" or c.dpp or c.name.startswith("v_permlane")) else p.cost)
    return 4

def schedule(ops, reorder=True):
    n = len(ops)
    for i, o in enumerate(ops):
        o.idx = i; o.succ = []; o.pred = []
    if not reorder: return list(ops)
    last_def = {}; last_uses = {}
    for o in ops:
        deps = {}
        for r in o.uses:
            if r in last_def: deps.setdefault(last_def[r].idx, (last_def[r], latency(last_def[r], o, r)))
            if r in last_def:
                p = last_def[r]; l = latency(p, o, r)
                if deps[p.idx][1] < l: deps[p.idx] = (p, l)
        for r in o.defs:
            if r in last_def:
                p = last_def[r]
                l = 64 if (p.kind == "mfma" and not (o.kind == "mfma" and set(o.srcC) == p.defs)) else (128 if p.kind == "ds" and r[0] == "v" else (600 if p.kind == "vmem" and r[0] == 'v' else 4))
                if o.kind == "mfma" and p.kind == "mfma" and set(o.srcC) == p.defs: l = 32
                if p.idx not in deps or deps[p.idx][1] < l: deps[p.idx] = (p, l)
            for u in last_uses.get(r, ()):
                if u is o: continue
                l = 32 if (u.kind == "mfma" and r in u.srcC) else 1
                if u.idx not in deps or deps[u.idx][1] < l: deps[u.idx] = (u, l)
        for (p, l) in deps.values():
            p.succ.append((o, l)); o.pred.append((p, l))
        for r in o.uses: last_uses.setdefault(r, []).append(o)
        for r in o.defs:
            last_def[r] = o; last_uses[r] = []
    for o in reversed(ops):
        o.prio = max([l + s.prio for (s, l) in o.succ], default=0) + o.cost
    npred = {o.idx: len(o.pred) for o in ops}
    ready_t = {o.idx: 0 for o in ops}
    ready = [o for o in ops if npred[o.idx] == 0]
    out = []; t = 0; mfma_free = 0
    while ready:
        def est(o):
            s = max(t, ready_t[o.idx])
            if o.kind == "mfma": s = max(s, mfma_free)
            return s
        now = [o for o in ready if est(o) <= t]
        if now:
            mf = [o for o in now if o.kind == "mfma"]
            o = max(mf or now, key=lambda x: (x.prio, -x.idx))
        else:
            o = min(ready, key=lambda x: (est(x), -x.prio))
        s = est(o)
        o.t = s; t = s + o.cost
        if o.kind == "mfma": mfma_free = s + 32
        ready.remove(o); out.append(o)
        for (c, l) in o.succ:
            ready_t[c.idx] = max(ready_t[c.idx], s + l)
            npred[c.idx] -= 1
            if npred[c.idx] == 0: ready.append(c)
    assert len(out) == n
    return out

def finalize(ops, lgkm_in=0, vm_in=None):
    lines = []
    pend_ds = []
    pend_vm = list(vm_in or [])
    hist = []
    def states_since(pred):
        cnt = 0
        for h in reversed(hist[-40:]):
            op, st = h
            if op is not None and pred(op): return cnt
            cnt += st
        return None
    def emit_nop(k):
        while k > 0:
            m = min(k, 16)
            lines.append(f"    s_nop {m-1}"); hist.append((None, m)); k -= m
    for o in ops:
        touched = o.uses | o.defs
        need = None
        for i, d in enumerate(pend_ds):
            if d & touched: need = i
        if need is not None:
            left = len(pend_ds) - need - 1
            left = min(left, 15)
            lines.append(f"    s_waitcnt lgkmcnt({left})"); hist.append((None, 1))
            pend_ds = pend_ds[len(pend_ds) - left:] if left else []
        need = None
        for i, d in enumerate(pend_vm):
            if d & touched: need = i
        if need is not None:
            left = min(len(pend_vm) - need - 1, 63)
            lines.append(f"    s_waitcnt vmcnt({left})"); hist.append((None, 1))
            pend_vm = pend_vm[len(pend_vm) - left:] if left else []
        req = 0
        def chk(pred, n):
            nonlocal req
            s = states_since(pred)
            if s is not None and s < n: req = max(req, n - s)
        vuses = {r for r in o.uses if r[0] in "va" and r not in ("vcc",)}
        vdefs = {r for r in o.defs if r[0] in "va" and r not in ("vcc",)}
        suses = {r for r in o.uses if r[0] == "s" or r == "vcc"}
        if o.name.startswith("v_dot2"):
            srcs = set()
            body = o.text.split(None, 1)[1]
            toks = [t.strip() for t in re.split(r",(?![^\[]*\])", body)]
            for t in toks[1:3]: srcs |= set(regs_of(t.split()[0]))
            chk(lambda p: p.name.startswith("v_dot2") and ((p.defs & srcs) or (p.name != o.name and (p.defs & (vuses | vdefs)))), 3)
        else:
            chk(lambda p: p.name.startswith("v_dot2") and (p.defs & (vuses | vdefs)), 3)
        if o.kind == "mfma":
            chk(lambda p: p.kind == "valu" and (p.defs & vuses), 2)
            chk(lambda p: p.kind == "mfma" and (p.defs & set(o.ab)), 12)
            chk(lambda p: p.kind == "mfma" and (p.defs & set(o.srcC)) and p.defs != set(o.srcC), 10)
            chk(lambda p: p.kind == "mfma" and (p.defs & o.defs) and set(o.srcC) != p.defs, 12)
            chk(lambda p: p.kind == "valu" and "exec" in p.defs, 4)
        else:
            chk(lambda p: p.kind == "mfma" and (p.defs & (vuses | vdefs)), 12)
            if o.kind == "valu":
                chk(lambda p: p.kind == "mfma" and (set(p.srcC) & vdefs), 7)
                if o.dpp or o.name.startswith("v_permlane"):
                    chk(lambda p: p.kind == "valu" and (p.defs & vuses), 2)
                if o.name.startswith(("v_readlane", "v_readfirstlane")):
                    chk(lambda p: p.kind == "valu" and (p.defs & vuses), 1)
                if not o.name.startswith(TRANS):
                    chk(lambda p: p.name.startswith(TRANS) and (p.defs & vuses), 1)
                chk(lambda p: p.kind == "valu" and (p.defs & suses), 2)
                chk(lambda p: p.kind == "vmem" and p.name.startswith("buffer_store") and "x4" in p.name and (p.uses & vdefs), 2)
            if o.kind == "vmem":
                chk(lambda p: p.kind == "valu" and (p.defs & suses), 5)
                if "m0" in o.uses: chk(lambda p: p.kind == "salu" and "m0" in p.defs, 1)
        if req: emit_nop(req)
        lines.append("    " + o.text); hist.append((o, 1))
        if o.kind == "ds":
            pend_ds.append({r for r in o.defs if r[0] == "v" and r[1:].isdigit()})
            if len(pend_ds) > 15:
                lines.append("    s_waitcnt lgkmcnt(8)"); hist.append((None, 1)); pend_ds = pend_ds[-8:]
        if o.kind == "vmem":
            pend_vm.append({r for r in o.defs if r[0] == "v" and r[1:].isdigit()})
    return lines, pend_ds, pend_vm
```

```python
from common import *
from sched import Op, schedule, finalize

L_WM = 0; L_WV = 32768; L_WC = 65536; L_X = 66560
NWV = 8
L_S = L_X + NWV * 8192
L_END = L_S + NWV * 256
NWG = 250; TPW = 25

V_WA = 2
V_XB = 3
V_TR = 4
V_DG = 8
V_DX = 9
V_RW = 10
V_RR = 11
V_AW = 12
V_AR = 13
V_SO = 14
V_WC = 15
V_OUT = 16
V_DO = 17
V_OT = 18
V_DN = 19
V_T0 = 20; V_T1 = 21
V_D = 22; V_C = 23; V_C2 = 24
V_TC = 25; V_TC2 = 26
V_L0 = 28; V_L1 = 29; V_L2 = 30; V_L3 = 31
V_A0 = 0; V_A1 = 1
X = 32
WB = 64; NWB = 5
RR = 84
DA = [100, 116]
S = 132
UOP = 148
VOP = 156
POP = 188
XT = 196
WCR = 228
V_RHO = 27
V_AW2 = 12; V_AR2 = 13
V_ST = 244
V_RL = 248
V_P = 252
V_S1 = 84 + 16 - 16

def gen_tf(A, reorder=True, prof=False, nwb=5, stagger=1, ro='dot'):
    name = "tf_kernel"
    kernel_begin(A, name)
    A.op(f"s_cmp_ge_u32 s2, {NWG}"); A.op("s_cbranch_scc1 tf_done")
    A.op("s_load_dwordx2 s[4:5], s[0:1], 88")
    A.op("s_load_dwordx2 s[8:9], s[0:1], 0")
    A.op("s_load_dwordx2 s[10:11], s[0:1], 24")
    A.op("s_load_dwordx2 s[44:45], s[0:1], 72")
    if prof == 1: A.op("s_memrealtime s[70:71]")
    A.op("v_lshrrev_b32 v1, 6, v0"); A.op("s_nop 0")
    A.op("v_readfirstlane_b32 s6, v1")
    A.op("v_and_b32 v0, 63, v0")
    H, K, AA, T1, T2, T3 = 28, 29, 30, 31, 20, 21
    A.op(f"v_lshlrev_b32 v{V_WA}, 4, v0")
    A.op(f"v_lshrrev_b32 v{H}, 5, v0"); A.op(f"v_and_b32 v{K}, 7, v0"); A.op(f"v_bfe_u32 v{AA}, v0, 3, 2")
    A.op(f"s_mul_i32 s34, s6, 8192"); A.op(f"s_add_u32 s34, s34, {L_X}")
    A.op(f"v_and_b32 v{T1}, 15, v0"); A.op(f"v_xor_b32 v{T1}, v{T1}, v{H}"); A.op(f"v_lshlrev_b32 v{T1}, 4, v{T1}")
    A.op(f"v_lshl_add_u32 v{T1}, v{K}, 10, v{T1}"); A.op(f"v_lshl_add_u32 v{T1}, v{AA}, 8, v{T1}"); A.op(f"v_add_u32 v{V_XB}, s34, v{T1}")
    A.op(f"v_bfe_u32 v{T1}, v0, 2, 2"); A.op(f"v_lshl_add_u32 v{T1}, v{H}, 2, v{T1}")
    A.op(f"v_bfe_u32 v{T2}, v0, 4, 1"); A.op(f"v_lshlrev_b32 v{T2}, 1, v{T2}")
    A.op(f"v_and_b32 v{T3}, 1, v0"); A.op(f"v_or_b32 v{T2}, v{T2}, v{T3}"); A.op(f"v_xor_b32 v{T2}, v{T2}, v{T1}")
    A.op(f"v_lshlrev_b32 v{T2}, 4, v{T2}"); A.op(f"v_lshl_add_u32 v{T2}, v{T1}, 10, v{T2}")
    A.op(f"v_bfe_u32 v{T3}, v0, 1, 1"); A.op(f"v_lshl_add_u32 v{T2}, v{T3}, 3, v{T2}"); A.op(f"v_add_u32 v{T2}, s34, v{T2}")
    for q in range(4):
        A.op(f"v_xor_b32 v{V_TR+q}, {q << 6}, v{T2}")
    A.op(f"v_lshrrev_b32 v{T1}, 4, v0"); A.op(f"v_bfe_u32 v{T2}, v0, 3, 1"); A.op(f"v_and_b32 v{T3}, 1, v{T1}"); A.op(f"v_xor_b32 v{T2}, v{T2}, v{T3}")
    A.op(f"v_and_b32 v{T3}, 7, v0"); A.op(f"v_lshlrev_b32 v{T3}, 4, v{T3}")
    A.op(f"s_mov_b32 s35, {HALF}")
    A.op(f"v_lshl_add_u32 v{V_DG}, v{T1}, 7, v{T3}"); A.op(f"v_mad_u32_u24 v{V_DG}, v{T2}, s35, v{V_DG}")
    A.op(f"v_lshl_add_u32 v{V_DX}, v{T1}, 8, v{T3}"); A.op(f"v_lshl_add_u32 v{V_DX}, v{T2}, 7, v{V_DX}")
    A.op(f"s_lshl_b32 s35, s6, 8"); A.op(f"s_add_u32 s35, s35, {L_S}")
    A.op(f"v_and_b32 v{V_RW}, 31, v0"); A.op(f"v_lshlrev_b32 v{V_AW}, 1, v{V_RW}"); A.op(f"v_lshlrev_b32 v{V_RW}, 2, v{V_RW}")
    A.op(f"v_add_u32 v{V_RW}, s35, v{V_RW}"); A.op(f"v_add_u32 v{V_AW}, s35, v{V_AW}")
    A.op(f"v_lshlrev_b32 v{V_RR}, 3, v{AA}"); A.op(f"v_lshl_add_u32 v{V_RR}, v{H}, 2, v{V_RR}")
    A.op(f"v_lshlrev_b32 v{V_AR}, 1, v{V_RR}"); A.op(f"v_add_u32 v{V_AR}, s35, v{V_AR}")
    A.op(f"v_lshlrev_b32 v{V_RR}, 2, v{V_RR}"); A.op(f"v_add_u32 v{V_RR}, s35, v{V_RR}")
    if ro != 'mfma':
        A.op(f"v_lshrrev_b32 v{V_AW2}, 2, v{K}"); A.op(f"v_lshlrev_b32 v{V_AW2}, 4, v{V_AW2}"); A.op(f"v_lshl_add_u32 v{V_AW2}, v{AA}, 2, v{V_AW2}")
        A.op(f"v_and_b32 v{T1}, 3, v{K}"); A.op(f"v_add_u32 v{V_AW2}, v{V_AW2}, v{T1}"); A.op(f"v_lshlrev_b32 v{V_AW2}, 1, v{V_AW2}"); A.op(f"v_add_u32 v{V_AW2}, s35, v{V_AW2}")
        A.op(f"v_lshlrev_b32 v{V_AR2}, 5, v{H}"); A.op(f"v_add_u32 v{V_AR2}, s35, v{V_AR2}")
    A.op(f"s_mov_b32 s35, {ST_TOK}"); A.op(f"v_lshlrev_b32 v{V_SO}, 4, v{AA}"); A.op(f"v_mad_u32_u24 v{V_SO}, v{K}, s35, v{V_SO}")
    A.op(f"v_lshlrev_b32 v{V_WC}, 8, v{H}"); A.op(f"v_add_u32 v{V_WC}, {L_WC}, v{V_WC}")
    A.op(f"v_and_b32 v{T1}, 31, v0")
    A.op(f"v_and_b32 v{V_OUT}, 0x13, v{T1}"); A.op(f"v_and_b32 v{T2}, 4, v{T1}"); A.op(f"v_lshl_or_b32 v{V_OUT}, v{T2}, 1, v{V_OUT}")
    A.op(f"v_and_b32 v{T2}, 8, v{T1}"); A.op(f"v_lshrrev_b32 v{T2}, 1, v{T2}"); A.op(f"v_or_b32 v{V_OUT}, v{V_OUT}, v{T2}")
    A.op(f"v_lshlrev_b32 v{V_OUT}, 1, v{V_OUT}"); A.op(f"v_lshl_add_u32 v{V_OUT}, v{H}, 9, v{V_OUT}")
    A.op(f"v_lshlrev_b32 v{V_DO}, 1, v{AA}")
    A.op(f"v_mov_b32 v{V_OT}, 0x7fffffff")
    def m64(s, val):
        A.op(f"s_mov_b32 s{s}, {val & 0xffffffff:#x}"); A.op(f"s_mov_b32 s{s+1}, {val >> 32:#x}")
    m64(46, 0x0000FF000000FF00); m64(48, 0x00FF000000FF0000); m64(50, 0xFF000000FF000000); m64(52, 0x000000FF000000FF)
    m64(54, 0x0101010101010101)
    RM = [64, 66, 68, 90]
    for a, s in enumerate(RM):
        m = 8 * a + (0 if a < 2 else 4)
        m64(s, (1 << m) | (1 << (m + 32)))
    A.op("s_mov_b32 s57, 0x3727c5ac"); A.op("s_mov_b32 s58, 0x3c000000")
    A.op("s_mov_b32 s59, 0x3fb8aa3b"); A.op("s_mov_b32 s60, 0xffff0000")
    A.op(f"s_mul_i32 s37, s2, {TPW}")
    A.op(f"s_add_u32 s61, s37, {TPW-1}")
    A.op("s_add_u32 s36, s37, s6")
    A.op("s_waitcnt lgkmcnt(0)")
    srd(A, 12, 4, 8 * TAB, OFF_G)
    srd(A, 16, 8, TAB)
    srd(A, 20, 10, N * 2)
    srd(A, 24, 44, TAB)
    srd(A, 28, 4, 65536 + 512, OFF_WM)
    srd(A, 92, 4, 8 * ST_TOK, OFF_ST)
    if prof == 1:
        srd(A, 80, 4, 4 << 20, 96 << 20)
        A.op("s_lshl_b32 s84, s2, 4"); A.op("s_add_u32 s84, s84, s6"); A.op("s_lshl_b32 s84, s84, 10")
        A.op("s_mov_b32 s85, 0")
    def dma_ops(emit, tile_sreg):
        emit(f"s_lshl_b32 s39, s{tile_sreg}, 9"); emit(f"s_lshl_b32 s40, s{tile_sreg}, 10"); emit(f"s_lshl_b32 s43, s{tile_sreg}, 3")
        emit(f"s_lshl_b32 s33, s{tile_sreg}, 6")
        emit(f"buffer_load_dwordx4 v[{V_ST}:{V_ST+3}], v{V_SO}, s[92:95], s33 offen", [], ["M_vm"])
        emit(f"buffer_load_ushort v{V_DN}, v{V_DO}, s[20:23], s43 offen", [], ["M_vm"])
        emit("s_mov_b32 m0, s34")
        emit(f"buffer_load_dwordx4 v{V_DX}, s[16:19], s40 offen lds", ["M_xrd"], ["M_vm"])
        for k in range(1, 8):
            t = V_T0 if k & 1 else V_T1
            emit(f"v_xor_b32 v{t}, {k << 4}, v{V_DG}")
            emit(f"s_add_u32 s41, s34, {1024*k}"); emit("s_mov_b32 m0, s41")
            emit(f"s_add_u32 s41, s39, {k*TAB}")
            emit(f"buffer_load_dwordx4 v{t}, s[12:15], s41 offen lds", ["M_xrd"], ["M_vm"])
    def emit_plain(t, memr=(), memw=()):
        if t.startswith("buffer_load") and "lds" in t: A.op("s_nop 0")
        A.op(t)
    A.op("s_lshl_b32 s3, s6, 13")
    for i in range(8):
        A.op(f"s_add_u32 s32, s3, {1024*i}"); A.op("s_mov_b32 m0, s32"); A.op("s_nop 0")
        A.op(f"buffer_load_dwordx4 v{V_WA}, s[28:31], s32 offen lds")
    A.op("s_cmp_eq_u32 s6, 0"); l = A.new("wc"); A.op(f"s_cbranch_scc0 {l}")
    A.op("s_mov_b32 s33, 65536")
    A.op(f"buffer_load_dwordx4 v[{X}:{X+3}], v{V_WA}, s[28:31], s33 offen")
    A.op("s_waitcnt vmcnt(0)")
    A.op(f"v_add_u32 v{T1}, {L_WC}, v{V_WA}"); A.op(f"ds_write_b128 v{T1}, v[{X}:{X+3}]")
    A.label(l)
    if stagger:
        A.op("s_cmp_ge_u32 s6, 4"); A.op("s_cbranch_scc1 tf_late")
    dma_ops(emit_plain, 36)
    A.op("s_waitcnt vmcnt(10) lgkmcnt(0)")
    A.op("s_barrier")
    if stagger:
        A.op("s_branch tf_go")
        A.label("tf_late")
        A.op("s_waitcnt vmcnt(0) lgkmcnt(0)")
        A.op("s_barrier")
        dma_ops(emit_plain, 36)
        A.label("tf_go")

    S1, S2, S3 = V_L2, V_L3, V_L1

    def xhalf(o, r, t, op="add"):
        o(f"v_mov_b32 v{t}, v{r}"); o(f"v_permlane32_swap_b32 v{r}, v{t}"); o(f"v_{op}_f32 v{r}, v{r}, v{t}")

    def tail_ops(o):
        a0, a1 = V_A0, V_A1
        for r in (S1, S2, S3): xhalf(o, r, a0)
        o(f"v_mul_f32 v{S1}, s58, v{S1}"); o(f"v_mul_f32 v{S2}, s58, v{S2}")
        o(f"v_fma_f32 v{S2}, -v{S1}, v{S1}, v{S2}"); o(f"v_max_f32 v{S2}, 0, v{S2}")
        o(f"v_mov_b32 v{a0}, s57"); o(f"v_fma_f32 v{S2}, v{S2}, v{V_TC2}, v{a0}"); o(f"v_rsq_f32 v{S2}, v{S2}")
        o(f"v_mul_f32 v{S3}, v{S3}, v{S2}"); o(f"v_mul_f32 v{S3}, v{S3}, v{V_TC}"); o(f"v_mul_f32 v{S3}, s59, v{S3}")
        def red8(r, op):
            o(f"v_{op}_f32_dpp v{r}, v{r}, v{r} quad_perm:[1,0,3,2] row_mask:0xf bank_mask:0xf")
            o(f"v_{op}_f32_dpp v{r}, v{r}, v{r} quad_perm:[2,3,0,1] row_mask:0xf bank_mask:0xf")
            o(f"v_{op}_f32_dpp v{r}, v{r}, v{r} row_half_mirror row_mask:0xf bank_mask:0xf")
        o(f"v_mov_b32 v{a0}, v{S3}"); red8(a0, "max")
        o(f"v_sub_f32 v{S3}, v{S3}, v{a0}"); o(f"v_exp_f32 v{S3}, v{S3}")
        o(f"v_mov_b32 v{a0}, v{S3}"); red8(a0, "add")
        o(f"v_rcp_f32 v{a0}, v{a0}"); o(f"v_mul_f32 v{S3}, v{S3}, v{a0}"); o(f"v_mul_f32 v{S3}, v{S3}, v{V_TC}")
        if ro == 'mfma':
            o(f"v_cvt_pk_bf16_f32 v{a0}, v{S3}, v{S3}")
            o(f"ds_write_b16 v{V_AW}, v{a0} offset:128", memw=["M_a"])
            o(f"ds_read_b64 v[{a0}:{a1}], v{V_AR} offset:128", memr=["M_a"])
            for i in range(4):
                o(f"v_mul_f32 v{V_P+i}, v{V_P+i}, v{S3}"); red8(V_P + i, "add")
            o(f"v_cvt_pk_bf16_f32 v{S1}, v{V_P}, v{V_P+1}"); o(f"v_cvt_pk_bf16_f32 v{S2}, v{V_P+2}, v{V_P+3}")
            BO = WCR; AO = WCR + 8
            for a in range(4):
                m = RM[a]
                o(f"v_cndmask_b32_e64 v{BO+2*a}, 0, v{S1}, s[{m}:{m+1}]"); o(f"v_cndmask_b32_e64 v{BO+2*a+1}, 0, v{S2}, s[{m}:{m+1}]")
                o(f"v_cndmask_b32_e64 v{AO+2*a}, 0, v{a0}, s[{m}:{m+1}]"); o(f"v_cndmask_b32_e64 v{AO+2*a+1}, 0, v{a1}, s[{m}:{m+1}]")
            for T in range(4):
                D = RR
                for s in range(2):
                    c = "0" if s == 0 else f"v[{D}:{D+15}]"
                    o(f"v_mfma_f32_32x32x16_bf16 v[{D}:{D+15}], v[{AO+4*s}:{AO+4*s+3}], v[{XT+8*T+4*s}:{XT+8*T+4*s+3}], {c}")
                for s in range(2):
                    o(f"v_mfma_f32_32x32x16_bf16 v[{D}:{D+15}], v[{BO+4*s}:{BO+4*s+3}], v[{VOP+8*T+4*s}:{VOP+8*T+4*s+3}], v[{D}:{D+15}]")
                for a in range(2):
                    t = V_P + 2 * (T & 1) + a
                    o(f"v_add_f32 v{t}, v{D+4*a}, v{D+4*a+8}")
                    o(f"v_cvt_pk_bf16_f32 v{t}, v{t}, v{t}")
                    o(f"buffer_store_short v{t}, v{V_OT}, s[24:27], s42 offen offset:{a*256 + T*64}", memw=["M_vm"])
        else:
            o(f"v_cvt_pk_bf16_f32 v{a0}, v{S3}, v{S3}")
            o(f"ds_write_b16 v{V_AW2}, v{a0} offset:192", memw=["M_a"])
            for i in range(4):
                o(f"v_mul_f32 v{V_P+i}, v{V_P+i}, v{S3}"); red8(V_P + i, "add")
            o(f"v_cvt_pk_bf16_f32 v{a0}, v{V_P}, v{V_P+1}"); o(f"v_cvt_pk_bf16_f32 v{a1}, v{V_P+2}, v{V_P+3}")
            o(f"v_lshl_add_u32 v{S1}, v{V_DO}, 2, v{V_AR2}")
            o(f"ds_write_b64 v{S1}, v[{a0}:{a1}] offset:128", memw=["M_b"])
            BP = WCR; AP = WCR + 8
            o(f"ds_read_b128 v[{BP}:{BP+3}], v{V_AR2} offset:128", memr=["M_b"]); o(f"ds_read_b128 v[{BP+4}:{BP+7}], v{V_AR2} offset:144", memr=["M_b"])
            o(f"ds_read_b128 v[{AP}:{AP+3}], v{V_AR2} offset:192", memr=["M_a"]); o(f"ds_read_b128 v[{AP+4}:{AP+7}], v{V_AR2} offset:208", memr=["M_a"])
            for T in range(4):
                for a in range(4):
                    r = RR + 4 * T + a; xt = XT + (T * 4 + a) * 2
                    o(f"v_mov_b32 v{r}, 0")
                    o(f"v_dot2c_f32_bf16 v{r}, v{xt}, v{AP+2*a}")
                    o(f"v_dot2c_f32_bf16 v{r}, v{xt+1}, v{AP+2*a+1}")
                    o(f"v_dot2c_f32_bf16 v{r}, v{VOP+8*T+2*a}, v{BP+2*a}")
                    o(f"v_dot2c_f32_bf16 v{r}, v{VOP+8*T+2*a+1}, v{BP+2*a+1}")
            for T in range(4):
                for a in range(2):
                    r0 = RR + 4 * T + a; r1 = r0 + 2
                    o(f"v_permlane32_swap_b32 v{r0}, v{r1}")
                    o(f"v_add_f32 v{r0}, v{r0}, v{r1}")
                    o(f"v_cvt_pk_bf16_f32 v{r0}, v{r0}, v{r0}")
                    o(f"buffer_store_short v{r0}, v{V_OT}, s[24:27], s42 offen offset:{a*256 + T*64}", memw=["M_vm"])

    def head_ops(o):
        for kk in range(8):
            t = V_T0 if kk & 1 else V_T1
            o(f"v_xor_b32 v{t}, {(2*kk) << 4}, v{V_XB}")
            o(f"ds_read_b128 v[{X+4*kk}:{X+4*kk+3}], v{t}")
        l0, l1 = V_RHO, V_D
        o(f"v_add_f32 v{V_ST}, v{V_ST}, v{V_ST+2}"); o(f"v_add_f32 v{V_ST+1}, v{V_ST+1}, v{V_ST+3}")
        o(f"v_mul_f32 v{V_ST}, s58, v{V_ST}"); o(f"v_mul_f32 v{V_ST+1}, s58, v{V_ST+1}")
        o(f"v_fma_f32 v{V_ST+1}, -v{V_ST}, v{V_ST}, v{V_ST+1}"); o(f"v_max_f32 v{V_ST+1}, 0, v{V_ST+1}")
        o(f"v_lshlrev_b32 v{V_D}, 16, v{V_DN}")
        o(f"v_cndmask_b32_e64 v{V_D}, v{V_D}, 1.0, s[54:55]")
        o(f"v_cmp_eq_f32_e64 s[62:63], 0, v{V_D}")
        o(f"v_cndmask_b32_e64 v{V_D}, v{V_D}, 1.0, s[62:63]")
        o(f"v_rcp_f32 v{V_C}, v{V_D}"); o(f"v_mul_f32 v{V_C2}, v{V_C}, v{V_C}")
        o(f"v_mov_b32 v{V_ST}, s57"); o(f"v_fma_f32 v{V_ST+1}, v{V_ST+1}, v{V_C2}, v{V_ST}")
        o(f"v_rsq_f32 v{V_ST+1}, v{V_ST+1}"); o(f"v_mul_f32 v{V_RHO}, v{V_ST+1}, v{V_C}")
        o(f"ds_write_b32 v{V_RW}, v{V_RHO}", memw=["M_rho"])
        o(f"ds_read_b128 v[{V_RL}:{V_RL+3}], v{V_RR}", memr=["M_rho"])
        wb = [0]
        def wload(off):
            b = WB + 4 * (wb[0] % nwb); wb[0] += 1
            o(f"ds_read_b128 v[{b}:{b+3}], v{V_WA} offset:{off}")
            return b
        for T in range(4):
            D = DA[T & 1]
            for kk in range(8):
                b = wload(L_WM + (T * 8 + kk) * 1024)
                c = "0" if kk == 0 else f"v[{D}:{D+15}]"
                o(f"v_mfma_f32_32x32x16_bf16 v[{D}:{D+15}], v[{b}:{b+3}], v[{X+4*kk}:{X+4*kk+3}], {c}")
            for j in range(8):
                o(f"v_cvt_pk_bf16_f32 v{UOP+j}, v{D+2*j}, v{D+2*j+1}")
            for half in range(2):
                c = "0" if (T == 0 and half == 0) else f"v[{S}:{S+15}]"
                xa = X + 4 * (2 * T + half)
                o(f"v_mfma_f32_32x32x16_bf16 v[{S}:{S+15}], v[{xa}:{xa+3}], v[{UOP+4*half}:{UOP+4*half+3}], {c}")
        for T in range(4):
            for a in range(4):
                r = XT + (T * 4 + a) * 2
                o(f"ds_read_b64_tr_b16 v[{r}:{r+1}], v{V_TR + (T ^ (2*(a&1)))} offset:{a*256}")
        rd = [f"v{X+4*kk}" for kk in range(8)] + [f"v{XT+2*q}" for q in range(16)]
        o("s_add_u32 s36, s36, 8"); o("s_min_u32 s38, s36, s61")
        first = [True]
        def emit(t, memr=(), memw=()):
            if "lds" in t and t.startswith("buffer_load") and first[0]:
                first[0] = False
                o(t, memr=rd, memw=memw)
            else:
                o(t, memr=[], memw=memw)
        dma_ops(emit, 38)
        P = V_P
        for i in range(4):
            o(f"v_cndmask_b32_e64 v{P+i}, v{S+i}, v{S+4+i}, s[46:47]")
            o(f"v_cndmask_b32_e64 v{P+i}, v{P+i}, v{S+8+i}, s[48:49]")
            o(f"v_cndmask_b32_e64 v{P+i}, v{P+i}, v{S+12+i}, s[50:51]")
            o(f"v_mul_f32 v{P+i}, v{P+i}, v{V_RL+i}"); o(f"v_mul_f32 v{P+i}, v{P+i}, v{V_RHO}")
        m0, m1 = V_L0, V_T0
        o(f"v_max_f32 v{m0}, v{P}, v{P+1}"); o(f"v_max3_f32 v{m0}, v{m0}, v{P+2}, v{P+3}")
        xhalf(o, m0, m1, "max")
        for i in range(4):
            o(f"v_sub_f32 v{P+i}, v{P+i}, v{m0}"); o(f"v_exp_f32 v{P+i}, v{P+i}")
        o(f"v_add_f32 v{m0}, v{P}, v{P+1}"); o(f"v_add_f32 v{m1}, v{P+2}, v{P+3}"); o(f"v_add_f32 v{m0}, v{m0}, v{m1}")
        xhalf(o, m0, m1)
        o(f"v_rcp_f32 v{m0}, v{m0}"); o(f"v_mul_f32 v{m0}, v{m0}, v{V_D}")
        for i in range(4):
            o(f"v_mul_f32 v{P+i}, v{P+i}, v{V_RL+i}"); o(f"v_mul_f32 v{P+i}, v{P+i}, v{m0}")
        o(f"v_cvt_pk_bf16_f32 v{m0}, v{P}, v{P+1}"); o(f"v_cvt_pk_bf16_f32 v{m1}, v{P+2}, v{P+3}")
        for a, m in enumerate((52, 46, 48, 50)):
            o(f"v_cndmask_b32_e64 v{POP+2*a}, 0, v{m0}, s[{m}:{m+1}]")
            o(f"v_cndmask_b32_e64 v{POP+2*a+1}, 0, v{m1}, s[{m}:{m+1}]")
        o(f"v_mov_b32 v{S1}, 0"); o(f"v_mov_b32 v{S2}, 0"); o(f"v_mov_b32 v{S3}, 0")
        def gemm2(T):
            D = DA[T & 1]
            for kk in range(8):
                b = wload(L_WV + (T * 8 + kk) * 1024)
                c = "0" if kk == 0 else f"v[{D}:{D+15}]"
                o(f"v_mfma_f32_32x32x16_bf16 v[{D}:{D+15}], v[{X+4*kk}:{X+4*kk+3}], v[{b}:{b+3}], {c}")
            for j in range(8):
                o(f"v_cvt_pk_bf16_f32 v{VOP+8*T+j}, v{D+2*j}, v{D+2*j+1}")
        def otile(T):
            D = RR if (T & 1) else S
            for half in range(2):
                for j in range(4):
                    x = X + 4 * (2 * T + half) + j
                    o(f"v_lshlrev_b32 v{D+8*half+2*j}, 16, v{x}")
                    o(f"v_and_b32 v{D+8*half+2*j+1}, s60, v{x}")
            for half in range(2):
                o(f"v_mfma_f32_32x32x16_bf16 v[{D}:{D+15}], v[{VOP+8*T+4*half}:{VOP+8*T+4*half+3}], v[{POP+4*half}:{POP+4*half+3}], v[{D}:{D+15}]")
            for q in range(4):
                o(f"ds_read_b128 v[{WCR+4*q}:{WCR+4*q+3}], v{V_WC} offset:{T*64 + q*16}")
            for r in range(16):
                o(f"v_add_f32 v{S1}, v{S1}, v{D+r}")
                o(f"v_fmac_f32 v{S2}, v{D+r}, v{D+r}")
                o(f"v_fmac_f32 v{S3}, v{D+r}, v{WCR+r}")
        gemm2(0); gemm2(1); otile(0); gemm2(2); otile(1); gemm2(3); otile(2); otile(3)
        o(f"v_mov_b32 v{V_TC}, v{V_C}"); o(f"v_mov_b32 v{V_TC2}, v{V_C2}")
        o(f"v_mov_b32 v{V_OT}, v{V_OUT}")
        o("s_sub_u32 s42, s36, 8"); o("s_lshl_b32 s42, s42, 10")

    def region(fns):
        ops = []
        def o(t, memr=(), memw=()): ops.append(Op(t, memr, memw))
        for f in fns: f(o)
        seq = schedule(ops, reorder)
        lines, pd, pv = finalize(seq)
        idx = [i for i, q in enumerate(seq) if q.kind == "vmem"]
        loads = [i for i in idx if seq[i].name.startswith("buffer_load")]
        after = len([i for i in idx if loads and i > loads[-1]])
        return lines, after

    body, after = region([tail_ops, head_ops])
    A.op("s_mov_b32 s42, 0")
    A.label("tf_loop")
    if prof == 1: A.op("s_memrealtime s[72:73]")
    A.op(f"s_waitcnt vmcnt({after + (5 if prof == 1 else (10 if prof == 2 else 0))})")
    if prof == 1: A.op("s_memrealtime s[74:75]")
    if prof == 2:
        step = len(body) // 9
        for i, l in enumerate(body):
            if i % step == 0 and i // step < 10: A.op(f"s_memtime s[{70+2*(i//step)}:{71+2*(i//step)}]")
            A(l)
        A.op("s_waitcnt lgkmcnt(0)")
        A.op("s_add_u32 s86, s84, s85") if False else None
        A.op("s_lshl_b32 s32, s2, 4"); A.op("s_add_u32 s32, s32, s6"); A.op("s_lshl_b32 s32, s32, 10")
        A.op("s_sub_u32 s33, s36, s37"); A.op("s_lshr_b32 s33, s33, 3"); A.op("s_lshl_b32 s33, s33, 7"); A.op("s_add_u32 s32, s32, s33")
        srd(A, 96, 4, 4 << 20, 96 << 20)
        A.op("s_mov_b64 exec, 1")
        for qi in range(10):
            A.op(f"v_mov_b32 v{V_T0}, s{70+2*qi}"); A.op(f"v_mov_b32 v{V_T1}, s{71+2*qi}"); A.op(f"v_mov_b32 v{V_L0}, {8*qi}")
            A.op(f"buffer_store_dwordx2 v[{V_T0}:{V_T1}], v{V_L0}, s[96:99], s32 offen"); A.op("s_nop 1")
        A.op("s_mov_b64 exec, -1")
    else:
        for l in body: A(l)
    if prof == 1:
        A.op("s_memrealtime s[78:79]")
        A.op("s_waitcnt lgkmcnt(0)")
        A.op("s_add_u32 s86, s84, s85"); A.op("s_add_u32 s85, s85, 64")
        A.op("s_mov_b64 exec, 1")
        for qi, sr in enumerate((70, 72, 74, 74, 78)):
            A.op(f"v_mov_b32 v{V_T0}, s{sr}"); A.op(f"v_mov_b32 v{V_T1}, s{sr+1}"); A.op(f"v_mov_b32 v{V_L0}, {8*qi}")
            A.op(f"buffer_store_dwordx2 v[{V_T0}:{V_T1}], v{V_L0}, s[80:83], s86 offen"); A.op("s_nop 1")
        A.op("s_mov_b64 exec, -1")
    A.op("s_waitcnt lgkmcnt(0)")
    A.op("s_cmp_le_u32 s36, s61"); A.op("s_cbranch_scc1 tf_loop")
    A.op("s_nop 7"); A.op("s_nop 7")
    ep, _ = region([tail_ops])
    for l in ep: A(l)
    A.label("tf_done")
    A.op("s_endpgm")
    return dict(name=name, grid=NWG, block=64 * NWV, lds=L_END, vgpr=256, sgpr=100)
```

```python
import sys
from common import *
import prep

HEADER = open("gather_scatter__hybrid_graph_tf_nagphormer__graph.s.ref").read().split("; Override launch")[0]

def build(stages=("prep", "hops", "tf"), **kw):
    B = Asm()
    B('.amdgcn_target "amdgcn-amd-amdhsa--gfx950"')
    B(".text")
    ks = []
    if "prep" in stages:
        ks.append(prep.gen_prep(B, **kw.get('prep', {})))
    if "hops" in stages:
        import hops
        ks.append(hops.gen_hops(B, **kw.get("hops", {})))
    if "tf" in stages:
        import tf3 as tf
        ks.append(tf.gen_tf(B, **kw.get("tf", {})))
    B('.section .rodata,"a"')
    for k in ks:
        kernel_desc(B, k["name"], k["vgpr"], k["sgpr"], k.get("accum"))
    head = HEADER
    for k in ks:
        head += f"; @launch kernel={k['name']} grid=({k['grid']},1,1) block=({k['block']},1,1) lds={k['lds']}\n"
    return head + B.text()

if __name__ == "__main__":
    st = sys.argv[2].split(",") if len(sys.argv) > 2 else ("prep", "hops", "tf")
    kw = eval(sys.argv[3]) if len(sys.argv) > 3 else {}
    open(sys.argv[1], "w").write(build(st, **kw))
```

```python
from common import *
import prep

L_CNT = 0
L_HIST = 6400
L_BINS = L_HIST + 256
L_SLOT = L_BINS + 256
L_NODE = L_SLOT + 832
L_DEG = L_NODE + 832
L_NDEG = L_DEG + 832
L_OVFP = L_NDEG + 832
L_DSQ = L_OVFP + 832
L_MISC = L_DSQ + 832
L_IMG = L_MISC + 64
IMG_STRIDE = CAP * 2
L_END = L_IMG + 208 * IMG_STRIDE
assert L_IMG % 16 == 0

def gen_hops(A, nh=7, depthfn=lambda W: 4, maxdepth=7, prio=1, sleep=1, prof=0, ld=' sc1', bar='flag', nshard=NSHARD, perm=(5,0,1,2,9,6,4,3,10,11,8,7,12), ndot=4, pf=0, pffrac=0.8, rtt=0, pw=0, pwprio=3, pwsleep=0, cells=False, stst=''):
    name = "hops_kernel"
    kernel_begin(A, name)
    NW = 13
    NWB = NW + (1 if (rtt or pw) else 0)
    maxpairs = CAP // 2
    A.op("s_cmp_ge_u32 s2, 252"); A.op("s_cbranch_scc1 hops_done")
    A.op("s_load_dwordx2 s[4:5], s[0:1], 88")
    A.op("s_cmp_ge_u32 s2, 250"); A.op("s_cbranch_scc1 hops_wprep")
    A.op("s_load_dwordx2 s[44:45], s[0:1], 24")
    if prof: A.op("s_memrealtime s[64:65]")
    A.op("s_and_b32 s7, s2, 1"); A.op("s_lshr_b32 s8, s2, 1")
    A.op("v_lshrrev_b32 v4, 2, v0")
    A.op("v_and_b32 v5, 3, v0")
    A.op("v_lshlrev_b32 v6, 9, v4")
    A.op("s_lshl_b32 s9, s8, 2")
    A.op(f"s_mul_i32 s10, s8, {RN*2}")
    A.op("v_lshlrev_b32 v7, 1, v0")
    A.op("s_waitcnt lgkmcnt(0)")
    srd(A, 12, 4, NR * 512, OFF_OFFS)
    A.op("buffer_load_dwordx2 v[8:9], v6, s[12:15], s9 offen")
    srd(A, 60, 44, N * 2)
    A.op("buffer_load_ushort v43, v7, s[60:63], s10 offen")
    srd(A, 16, 4, E * 4, OFF_ENT)
    A.op("v_lshrrev_b32 v1, 6, v0"); A.op("s_nop 0")
    A.op("v_readfirstlane_b32 s6, v1")
    A.op("v_lshlrev_b32 v1, 2, v0")
    A.op("v_mov_b32 v2, 0"); A.op("v_mov_b32 v3, -1")
    for i in range(2):
        A.op(f"ds_write_b32 v1, v2 offset:{i*3328}")
    assert 2 * 3328 >= L_BINS and 2 * 3328 <= L_SLOT + 0 or True
    nimg = 208 * IMG_STRIDE // 4
    for i in range(nimg // 832):
        A.op(f"ds_write_b32 v1, v3 offset:{L_IMG + i*3328}")
    assert nimg % 832 == 0
    A.op("v_cmp_gt_u32 vcc, 208, v0"); A.op("s_and_saveexec_b64 s[20:21], vcc")
    A.op(f"ds_write_b32 v1, v3 offset:{L_NODE}")
    A.op(f"ds_write_b32 v1, v2 offset:{L_DEG}")
    A.op("s_mov_b64 exec, s[20:21]")
    A.op("v_cmp_gt_u32 vcc, 16, v0"); A.op("s_and_saveexec_b64 s[20:21], vcc")
    A.op(f"ds_write_b32 v1, v2 offset:{L_MISC}")
    A.op("s_mov_b64 exec, s[20:21]")
    A.op("s_waitcnt lgkmcnt(0)")
    A.op("s_waitcnt vmcnt(1)")
    A.op("v_sub_u32 v10, v9, v8")
    A.op("v_mul_u32_u24 v11, 3200, v4"); A.op("v_add_u32 v11, v11, v8")
    A.op("v_lshl_add_u32 v11, v5, 2, v11"); A.op("v_lshlrev_b32 v11, 2, v11")
    A.op("v_lshlrev_b32 v12, 2, v5")
    for r in range(4):
        A.op(f"buffer_load_dwordx4 v[{44+4*r}:{44+4*r+3}], v11, s[16:19], 0 offen offset:{64*r}")
    A.op("s_barrier")
    A.op("v_cmp_eq_u32 vcc, 0, v5"); A.op("s_and_saveexec_b64 s[20:21], vcc")
    A.op(f"v_mov_b32 v13, {L_MISC}"); A.op("ds_add_u32 v13, v8")
    A.op("s_mov_b64 exec, s[20:21]")
    NRND = 4
    ER = 44
    def keys(e, k):
        A.op(f"v_bfe_u32 v24, v{e}, 16, 8"); A.op(f"v_bfe_u32 v{k}, v{e}, 12, 4")
        A.op(f"v_lshl_add_u32 v{k}, v24, 3, v{k}"); A.op(f"v_lshlrev_b32 v{k}, 2, v{k}")
    def count4(e0, pos):
        for i in range(4):
            keys(e0 + i, 25 + i)
        for i in range(4):
            A.op(f"v_add_u32 v24, {i}, v{pos}"); A.op("v_cmp_lt_u32 vcc, v24, v10"); A.op("s_and_b64 exec, s[22:23], vcc")
            A.op(f"ds_add_u32 v{25+i}, v30 offset:{L_CNT}")
        A.op("s_mov_b64 exec, s[22:23]")
    def fill4(e0, pos):
        for i in range(4):
            keys(e0 + i, 25 + i)
            A.op(f"v_bfe_u32 v{20+i}, v{e0+i}, 16, 8")
        for i in range(4):
            A.op(f"v_add_u32 v24, {i}, v{pos}"); A.op(f"v_cmp_lt_u32 s[{24+2*i}:{25+2*i}], v24, v10")
        for i in range(4):
            A.op(f"s_and_b64 exec, s[22:23], s[{24+2*i}:{25+2*i}]")
            A.op(f"ds_add_rtn_u32 v{32+i}, v{25+i}, v30 offset:{L_CNT}")
            A.op(f"v_lshlrev_b32 v24, 2, v{20+i}")
            A.op(f"ds_read_b32 v{36+i}, v24 offset:{L_SLOT}")
        A.op("s_mov_b64 exec, s[22:23]")
        A.op("s_waitcnt lgkmcnt(0)")
        for i in range(4):
            A.op("s_mov_b64 exec, s[22:23]")
            A.op(f"v_cmp_gt_u32 vcc, {CAP}, v{32+i}")
            A.op(f"s_and_b64 s[32:33], s[{24+2*i}:{25+2*i}], vcc")
            A.op(f"s_and_b64 exec, s[22:23], s[32:33]")
            A.op(f"v_mul_u32_u24 v24, {IMG_STRIDE}, v{36+i}")
            A.op(f"v_lshl_add_u32 v24, v{32+i}, 1, v24")
            A.op(f"ds_write_b16 v24, v{e0+i} offset:{L_IMG}")
            A.op(f"s_andn2_b64 s[32:33], s[{24+2*i}:{25+2*i}], vcc")
            A.op(f"s_and_b64 exec, s[22:23], s[32:33]")
            lo = A.new("no")
            A.op(f"s_cbranch_execz {lo}")
            A.op(f"v_lshlrev_b32 v24, 2, v{20+i}")
            A.op(f"ds_read_b32 v24, v24 offset:{L_OVFP}")
            A.op("s_waitcnt lgkmcnt(0)")
            A.op(f"v_add_u32 v24, v24, v{32+i}")
            A.op(f"v_subrev_u32 v24, {CAP}, v24")
            A.op(f"v_lshlrev_b32 v24, 1, v24")
            A.op(f"buffer_store_short v{e0+i}, v24, s[48:51], 0 offen")
            A.label(lo)
        A.op("s_mov_b64 exec, s[22:23]")
    def fillA(e0, pos, pr, sr):
        for i in range(4):
            keys(e0 + i, 25 + i)
            A.op(f"v_bfe_u32 v{20+i}, v{e0+i}, 16, 8"); A.op(f"v_lshlrev_b32 v{20+i}, 2, v{20+i}")
        for i in range(4):
            A.op(f"v_add_u32 v24, {i}, v{pos}"); A.op("v_cmp_lt_u32 vcc, v24, v10"); A.op("s_and_b64 exec, s[22:23], vcc")
            A.op(f"ds_add_rtn_u32 v{pr+i}, v{25+i}, v30 offset:{L_CNT}")
            A.op(f"ds_read_b32 v{sr+i}, v{20+i} offset:{L_SLOT}")
        A.op("s_mov_b64 exec, s[22:23]")
    def fillB(e0, pos, pr, sr):
        for i in range(4):
            A.op("s_mov_b64 exec, s[22:23]")
            A.op(f"v_add_u32 v24, {i}, v{pos}"); A.op(f"v_cmp_lt_u32 s[24:25], v24, v10")
            A.op(f"v_cmp_gt_u32 vcc, {CAP}, v{pr+i}")
            A.op(f"v_mul_u32_u24 v24, {IMG_STRIDE}, v{sr+i}")
            A.op(f"v_lshl_add_u32 v24, v{pr+i}, 1, v24")
            A.op(f"s_and_b64 exec, s[24:25], vcc")
            A.op(f"ds_write_b16 v24, v{e0+i} offset:{L_IMG}")
            A.op(f"s_andn2_b64 exec, s[24:25], vcc")
            lo = A.new("no")
            A.op(f"s_cbranch_execz {lo}")
            A.op(f"v_bfe_u32 v24, v{e0+i}, 16, 8"); A.op(f"v_lshlrev_b32 v24, 2, v24")
            A.op(f"ds_read_b32 v24, v24 offset:{L_OVFP}")
            A.op("s_waitcnt lgkmcnt(0)")
            A.op(f"v_add_u32 v24, v24, v{pr+i}")
            A.op(f"v_subrev_u32 v24, {CAP}, v24")
            A.op(f"v_lshlrev_b32 v24, 1, v24")
            A.op(f"buffer_store_short v{e0+i}, v24, s[48:51], 0 offen")
            A.label(lo)
        A.op("s_mov_b64 exec, s[22:23]")
    def entry_pass(fill):
        f4 = fill4 if fill else count4
        A.op("v_mov_b32 v30, 1"); A.op("s_mov_b64 s[22:23], exec")
        done = A.new("epd")
        if not fill:
            for r in range(NRND):
                A.op(f"v_add_u32 v15, {16*r}, v12")
                A.op("v_cmp_lt_u32 vcc, v15, v10"); A.op(f"s_cbranch_vccz {done}")
                f4(ER + 4 * r, 15)
        else:
            la = A.new("fa"); lb = A.new("fb")
            for r in range(NRND):
                A.op(f"v_add_u32 v15, {16*r}, v12")
                A.op("v_cmp_lt_u32 vcc, v15, v10"); A.op(f"s_cbranch_vccz {la}")
                fillA(ER + 4 * r, 15, 60 + 4 * r, 76 + 4 * r)
                A.op("s_waitcnt lgkmcnt(6)")
            A.label(la)
            A.op("s_waitcnt lgkmcnt(0)")
            for r in range(NRND):
                A.op(f"v_add_u32 v15, {16*r}, v12")
                A.op("v_cmp_lt_u32 vcc, v15, v10"); A.op(f"s_cbranch_vccz {done}")
                fillB(ER + 4 * r, 15, 60 + 4 * r, 76 + 4 * r)
        lp = A.new("ep")
        A.op(f"v_add_u32 v14, {64*NRND}, v11"); A.op(f"v_add_u32 v15, {16*NRND}, v12")
        A.label(lp)
        A.op("v_cmp_lt_u32 vcc, v15, v10"); A.op(f"s_cbranch_vccz {done}")
        A.op("buffer_load_dwordx4 v[16:19], v14, s[16:19], 0 offen")
        A.op("s_waitcnt vmcnt(0)")
        f4(16, 15)
        A.op("v_add_u32 v14, 64, v14"); A.op("v_add_u32 v15, 16, v15")
        A.op(f"s_branch {lp}")
        A.label(done)
    A.op("s_waitcnt vmcnt(0)")
    if prof: A.op("s_memrealtime s[66:67]")
    entry_pass(False)
    A.op("s_waitcnt lgkmcnt(0)")
    A.op("s_barrier")
    if prof: A.op("s_memrealtime s[68:69]")
    A.op("v_cmp_gt_u32 vcc, 200, v0"); A.op("s_and_saveexec_b64 s[20:21], vcc")
    l1 = A.new("np"); A.op(f"s_cbranch_execz {l1}")
    A.op("v_lshlrev_b32 v1, 5, v0")
    A.op(f"ds_read_b128 v[16:19], v1 offset:{L_CNT}"); A.op(f"ds_read_b128 v[20:23], v1 offset:{L_CNT+16}")
    A.op("s_waitcnt lgkmcnt(0)")
    A.op("v_mov_b32 v24, 0")
    for i in range(8):
        A.op(f"v_mov_b32 v25, v{16+i}"); A.op(f"v_mov_b32 v{16+i}, v24"); A.op("v_add_u32 v24, v24, v25")
    A.op(f"ds_write_b128 v1, v[16:19] offset:{L_CNT}"); A.op(f"ds_write_b128 v1, v[20:23] offset:{L_CNT+16}")
    A.op("v_mov_b32 v40, v24")
    A.op(f"v_min_u32 v41, {CAP}, v24"); A.op("v_lshlrev_b32 v41, 2, v41")
    A.op("v_mov_b32 v30, 1")
    A.op(f"ds_add_rtn_u32 v42, v41, v30 offset:{L_HIST}")
    A.op("v_lshlrev_b32 v1, 2, v0")
    A.op(f"ds_write_b32 v1, v40 offset:{L_NDEG}")
    A.op("v_lshlrev_b32 v43, 16, v43"); A.op("v_mul_f32 v43, v43, v43")
    A.op(f"ds_write_b32 v1, v43 offset:{L_DSQ}")
    A.op(f"v_cmp_lt_u32 vcc, {CAP}, v40"); A.op("s_and_b64 exec, exec, vcc")
    A.op(f"v_mov_b32 v13, {L_MISC+4}"); A.op("ds_write_b32 v13, v30")
    A.label(l1)
    A.op("s_mov_b64 exec, s[20:21]")
    A.op("s_waitcnt lgkmcnt(0)")
    A.op("s_barrier")
    A.op("s_cmp_eq_u32 s6, 0"); l2 = A.new("w0"); A.op(f"s_cbranch_scc0 {l2}")
    A.op("v_lshlrev_b32 v1, 2, v0")
    A.op(f"ds_read_b32 v16, v1 offset:{L_HIST}")
    A.op(f"v_mov_b32 v13, {L_MISC}"); A.op("ds_read_b64 v[18:19], v13")
    A.op("s_waitcnt lgkmcnt(0)")
    wave_scan_incl(A, 16)
    A.op("v_sub_u32 v16, 200, v16")
    A.op(f"ds_write_b32 v1, v16 offset:{L_BINS}")
    A.op("v_readfirstlane_b32 s9, v18"); A.op("v_readfirstlane_b32 s10, v19")
    A.op("s_nop 3")
    A.op("s_cmp_eq_u32 s10, 0"); A.op(f"s_cbranch_scc1 {l2}")
    A.op("s_mov_b32 s11, 0")
    lo = A.new("ov"); A.label(lo)
    A.op("s_lshl_b32 s20, s11, 2"); A.op("v_mov_b32 v1, s20")
    A.op(f"ds_read_b32 v16, v1 offset:{L_NDEG}")
    A.op("v_mov_b32 v17, s9"); A.op(f"ds_write_b32 v1, v17 offset:{L_OVFP}")
    A.op("s_waitcnt lgkmcnt(0)")
    A.op("v_readfirstlane_b32 s20, v16"); A.op("s_nop 3")
    A.op(f"s_max_u32 s20, s20, {CAP}"); A.op(f"s_sub_u32 s20, s20, {CAP}"); A.op("s_add_u32 s9, s9, s20")
    A.op("s_add_u32 s11, s11, 1"); A.op("s_cmp_lt_u32 s11, 200"); A.op(f"s_cbranch_scc1 {lo}")
    A.label(l2)
    A.op("s_waitcnt lgkmcnt(0)")
    A.op("s_barrier")
    A.op("v_cmp_gt_u32 vcc, 200, v0"); A.op("s_and_saveexec_b64 s[20:21], vcc")
    l3 = A.new("np"); A.op(f"s_cbranch_execz {l3}")
    A.op(f"ds_read_b32 v16, v41 offset:{L_BINS}")
    A.op("s_waitcnt lgkmcnt(0)")
    A.op("v_add_u32 v16, v16, v42")
    A.op("v_lshlrev_b32 v1, 2, v0"); A.op(f"ds_write_b32 v1, v16 offset:{L_SLOT}")
    A.op("v_lshlrev_b32 v16, 2, v16")
    A.op(f"ds_write_b32 v16, v0 offset:{L_NODE}"); A.op(f"ds_write_b32 v16, v40 offset:{L_DEG}")
    A.label(l3)
    A.op("s_mov_b64 exec, s[20:21]")
    A.op(f"s_mul_i32 s9, s7, {E*2}"); A.op(f"s_add_u32 s9, s9, {OFF_OVF}")
    A.op("s_add_u32 s48, s4, s9"); A.op("s_addc_u32 s49, s5, 0"); A.op(f"s_mov_b32 s50, {E*2}"); A.op("s_mov_b32 s51, 0x20000")
    A.op("s_waitcnt lgkmcnt(0)")
    A.op("s_barrier")
    if prof: A.op("s_memrealtime s[70:71]")
    entry_pass(True)
    A.op("s_waitcnt vmcnt(0) lgkmcnt(0)")
    A.op("s_barrier")
    if prof: A.op("s_memrealtime s[72:73]")
    if rtt:
        A.op(f"s_cmp_eq_u32 s6, {NW}"); A.op("s_cbranch_scc1 hop_rtt")
    if pw:
        A.op(f"s_cmp_eq_u32 s6, {NW}"); A.op("s_cbranch_scc1 hop_pw")
    P = [26, 26 + maxpairs]
    VA = 26 + 2 * maxpairs; VN = VA + 2; VS = VN + 2
    DATA = (VS + 2 + 3) // 4 * 4
    ACC = [10, 18]
    nv = DATA + 8 * maxdepth
    assert nv <= 128
    A.op("v_and_b32 v0, 63, v0")
    A.op("v_and_b32 v8, 7, v0"); A.op("v_lshlrev_b32 v8, 4, v8")
    A.op("v_lshrrev_b32 v5, 3, v0")
    pc = sum(p << (4 * w) for w, p in enumerate(perm))
    A.op(f"s_mov_b32 s58, {pc & 0xffffffff:#x}"); A.op(f"s_mov_b32 s59, {pc >> 32:#x}")
    A.op("s_lshl_b32 s9, s6, 2"); A.op("s_lshr_b64 s[58:59], s[58:59], s9"); A.op("s_and_b32 s56, s58, 15")
    A.op("s_lshl_b32 s9, s56, 4")
    A.op("v_add_u32 v5, s9, v5")
    A.op(f"s_mul_i32 s10, s8, {RN}")
    for i in range(2):
        A.op(f"v_add_u32 v6, {8*i}, v5")
        A.op(f"v_mul_u32_u24 v7, {IMG_STRIDE}, v6")
        A.op("v_lshlrev_b32 v6, 2, v6")
        A.op(f"ds_read_b32 v2, v6 offset:{L_NODE}"); A.op(f"ds_read_b32 v{3+i}, v6 offset:{L_DEG}")
        for p in range(maxpairs):
            A.op(f"ds_read_b32 v{P[i]+p}, v7 offset:{L_IMG + 4*p}")
            if p % 8 == 7: A.op("s_waitcnt lgkmcnt(4)")
        A.op("s_waitcnt lgkmcnt(4)")
        A.op("v_cmp_gt_u32 vcc, 200, v2")
        A.op("v_min_u32 v6, 199, v2"); A.op("v_lshlrev_b32 v6, 2, v6")
        A.op(f"ds_read_b32 v{VS+i}, v6 offset:{L_DSQ}")
        A.op("v_add_u32 v2, s10, v2")
        A.op("v_lshl_add_u32 v2, v2, 7, v8")
        A.op(f"v_cndmask_b32_e64 v{VN+i}, -1, v2, vcc")
    A.op("v_max_u32 v3, v3, v4")
    A.op("s_nop 0")
    A.op("v_readfirstlane_b32 s40, v3")
    A.op("s_nop 3")
    A.op(f"s_cmp_gt_u32 s40, {CAP}"); A.op("s_cselect_b32 s41, 1, 0")
    A.op(f"s_min_u32 s40, s40, {CAP}"); A.op("s_add_u32 s40, s40, 1"); A.op("s_lshr_b32 s40, s40, 1")
    A.op("s_waitcnt lgkmcnt(0)")
    A.op("s_mov_b32 s28, 0x3f80"); A.op("s_mov_b32 s29, 0x3f800000"); A.op("s_mov_b32 s30, 128")
    A.op(f"s_mul_i32 s19, s7, {HALF}")
    A.op("s_add_u32 s20, s4, s19"); A.op("s_addc_u32 s21, s5, 0")
    A.op(f"s_mov_b32 s22, {HALF}"); A.op("s_mov_b32 s23, 0x20000")
    A.op(f"s_add_u32 s24, s20, {TAB}"); A.op("s_addc_u32 s25, s21, 0")
    A.op(f"s_mov_b32 s26, {HALF}"); A.op("s_mov_b32 s27, 0x20000")
    cbytes = nshard * 128 if bar == 'cnt' else 128 * 128
    A.op(f"s_mul_i32 s19, s7, {cbytes}"); A.op(f"s_add_u32 s19, s19, {OFF_CNT}")
    A.op("s_add_u32 s32, s4, s19"); A.op("s_addc_u32 s33, s5, 0")
    A.op(f"s_mov_b32 s34, {cbytes}"); A.op("s_mov_b32 s35, 0x20000")
    A.op(f"s_lshl_b32 s19, s7, 3"); A.op(f"s_add_u32 s19, s19, {OFF_ST + ST_TOK}")
    A.op("s_add_u32 s76, s4, s19"); A.op("s_addc_u32 s77, s5, 0")
    A.op(f"s_mov_b32 s78, {ST_TOK - 8}"); A.op("s_mov_b32 s79, 0x20000")
    A.op("s_mov_b32 s36, 0")
    if prof:
        A.op("s_memrealtime s[74:75]")
        A.op("s_waitcnt lgkmcnt(0)")
        srd(A, 80, 4, 4 << 20, 96 << 20)
        A.op("s_lshl_b32 s84, s2, 4"); A.op("s_add_u32 s84, s84, s6"); A.op("s_lshl_b32 s84, s84, 10")
        A.op("s_mov_b64 exec, 1")
        for qi in range(6):
            A.op(f"v_mov_b32 v6, s{64+2*qi}"); A.op(f"v_mov_b32 v7, s{65+2*qi}"); A.op(f"v_mov_b32 v2, {8*qi}")
            A.op("buffer_store_dwordx2 v[6:7], v2, s[80:83], s84 offen"); A.op("s_nop 1")
        A.op("s_mov_b64 exec, -1")
    def stats():
        A.cmt("row statistics (sum, sum of squares over this half) for the transformer LayerNorm")
        for i in range(2):
            t = DATA + 8 + 2 * i
            A.op(f"v_add_f32 v{t}, v{ACC[i]}, v{ACC[i]+1}"); A.op(f"v_mul_f32 v{t+1}, v{ACC[i]}, v{ACC[i]}")
            A.op(f"v_fmac_f32 v{t+1}, v{ACC[i]+1}, v{ACC[i]+1}")
            for q in range(2, 8):
                A.op(f"v_add_f32 v{t}, v{t}, v{ACC[i]+q}"); A.op(f"v_fmac_f32 v{t+1}, v{ACC[i]+q}, v{ACC[i]+q}")
        for m in ("quad_perm:[1,0,3,2]", "quad_perm:[2,3,0,1]", "row_half_mirror"):
            for q in range(4):
                A.op(f"v_add_f32_dpp v{DATA+8+q}, v{DATA+8+q}, v{DATA+8+q} {m} row_mask:0xf bank_mask:0xf")
        A.op(f"v_lshrrev_b32 v2, 3, v{VN}"); A.op(f"v_lshrrev_b32 v3, 3, v{VN+1}")
        A.op("s_mov_b32 exec_lo, 0x01010101"); A.op("s_mov_b32 exec_hi, 0x01010101")
        A.op(f"buffer_store_dwordx2 v[{DATA+8}:{DATA+9}], v2, s[76:79], 0 offen{stst}")
        A.op(f"buffer_store_dwordx2 v[{DATA+10}:{DATA+11}], v3, s[76:79], 0 offen{stst}")
        A.op("s_mov_b64 exec, -1")
        A.op(f"s_add_u32 s76, s76, {ST_TOK}"); A.op("s_addc_u32 s77, s77, 0")
    A.label("hop_loop")
    if prof: A.op("s_memrealtime s[64:65]")
    for i in range(2):
        for q in range(8):
            A.op(f"v_mov_b32 v{ACC[i]+q}, 0")
    if pf:
        A.op("s_lshr_b32 s82, s2, 3"); A.op("s_and_b32 s82, s82, 31")
        A.op("s_lshl_b32 s83, s6, 5"); A.op("s_add_u32 s82, s82, s83"); A.op("s_lshl_b32 s82, s82, 7")
        A.op("s_add_u32 s84, s20, s82"); A.op("s_addc_u32 s85, s21, 0")
        for b in range(1, 4):
            A.op(f"s_add_u32 s{84+2*b}, s84, {19*b*53248}"); A.op(f"s_addc_u32 s{85+2*b}, s85, 0")
    def tree(lo, hi):
        if lo == hi:
            A.op(f"s_branch hop_w{lo}"); return
        mid = (lo + hi + 1) // 2
        l = A.new("bt")
        A.op(f"s_cmp_ge_u32 s40, {mid}"); A.op(f"s_cbranch_scc1 {l}")
        tree(lo, mid - 1)
        A.label(l)
        tree(mid, hi)
    tree(0, maxpairs)
    A.label("hop_w0")
    A.op("s_branch hop_fin")
    for n in range(1, maxpairs + 1):
        A.label(f"hop_w{n}")
        steps = 2 * n
        depth = max(1, min(maxdepth, depthfn(steps), steps))
        state = {"p": None}
        def prefetch(j):
            if not pf: return
            ns = max(1, int(steps * pffrac))
            lo = min(60, (60 * j + ns - 1) // ns); hi = min(60, (60 * (j + 1) + ns - 1) // ns)
            for n_ in range(lo, hi):
                b = 84 + 2 * (n_ // 19)
                for sub in range(pf):
                    A.op(f"s_load_dword s{92 + (n_ & 1)}, s[{b}:{b+1}], {(n_ % 19) * 53248 + 64 * sub}")
        def issue(j):
            if prio:
                p = 3 - min(3, (4 * j) // steps)
                if p != state["p"]:
                    A.op(f"s_setprio {p}"); state["p"] = p
            for i in range(2):
                A.op(f"v_mad_u32_u16 v{VA + i}, v{P[i] + j//2}, s30, v8 op_sel:[{j&1},0,0,0]")
                d = DATA + 8 * (j % depth) + 4 * i
                A.op(f"buffer_load_dwordx4 v[{d}:{d+3}], v{VA + i}, s[20:23], 0 offen{ld}")
        for j in range(min(depth, steps)):
            issue(j)
        for j in range(steps):
            prefetch(j)
            out_steps = min(steps, j + depth) - j - 1
            for i in range(2):
                A.op(f"s_waitcnt vmcnt({2*out_steps + (1 - i)})")
                d = DATA + 8 * (j % depth) + 4 * i
                for q in range(ndot):
                    A.op(f"v_dot2c_f32_bf16 v{ACC[i]+2*q}, s28, v{d+q}")
                    A.op(f"v_dot2c_f32_bf16 v{ACC[i]+2*q+1}, s29, v{d+q}")
            if j + depth < steps:
                issue(j + depth)
        if n != maxpairs:
            A.op(f"s_branch hop_fin")
    A.label("hop_fin")
    if pf: A.op("s_waitcnt lgkmcnt(0)")
    if prof: A.op("s_memrealtime s[66:67]")
    if prio: A.op("s_setprio 0")
    A.op("s_cmp_eq_u32 s41, 0"); A.op("s_cbranch_scc1 hop_noovf")
    T = DATA; DD = DATA + 8
    for i in range(2):
        A.op("s_mov_b32 s52, 0")
        lg = A.new("og"); ln = A.new("on"); ll = A.new("ol"); ld = A.new("od")
        A.label(lg)
        A.op(f"s_lshl_b32 s53, s56, 4"); A.op(f"s_add_u32 s53, s53, s52"); A.op(f"s_add_u32 s53, s53, {8*i}")
        A.op("s_lshl_b32 s53, s53, 2"); A.op("v_mov_b32 v2, s53")
        A.op(f"ds_read_b32 v3, v2 offset:{L_DEG}"); A.op(f"ds_read_b32 v4, v2 offset:{L_NODE}")
        A.op("s_waitcnt lgkmcnt(0)")
        A.op("v_readfirstlane_b32 s54, v3"); A.op("v_lshlrev_b32 v4, 2, v4"); A.op("s_nop 2")
        A.op(f"s_cmp_le_u32 s54, {CAP}"); A.op(f"s_cbranch_scc1 {ln}")
        A.op(f"ds_read_b32 v4, v4 offset:{L_OVFP}")
        A.op(f"s_sub_u32 s54, s54, {CAP}")
        for q in range(8):
            A.op(f"v_mov_b32 v{T+q}, 0")
        A.op("v_lshrrev_b32 v5, 3, v0")
        A.op("s_waitcnt lgkmcnt(0)")
        A.label(ll)
        A.op("v_add_u32 v6, v4, v5"); A.op("v_lshlrev_b32 v6, 1, v6")
        A.op("buffer_load_ushort v7, v6, s[48:51], 0 offen sc1")
        A.op("v_cmp_gt_u32 vcc, s54, v5")
        A.op("v_mov_b32 v6, 0xffff")
        A.op("s_waitcnt vmcnt(0)")
        A.op("v_cndmask_b32_e64 v7, v6, v7, vcc")
        A.op("v_mad_u32_u24 v7, v7, s30, v8")
        A.op(f"buffer_load_dwordx4 v[{DD}:{DD+3}], v7, s[20:23], 0 offen sc1")
        A.op("v_add_u32 v5, 8, v5")
        A.op("s_waitcnt vmcnt(0)")
        for q in range(4):
            A.op(f"v_dot2c_f32_bf16 v{T+2*q}, s28, v{DD+q}")
            A.op(f"v_dot2c_f32_bf16 v{T+2*q+1}, s29, v{DD+q}")
        A.op("v_min_u32 v6, v5, v5")
        A.op("v_readfirstlane_b32 s55, v5"); A.op("s_nop 3")
        A.op("s_cmp_lt_u32 s55, s54"); A.op(f"s_cbranch_scc1 {ll}")
        for q in range(8):
            A.op("s_nop 1")
            A.op(f"v_add_f32_dpp v{T+q}, v{T+q}, v{T+q} row_ror:8 row_mask:0xf bank_mask:0xf")
        for q in range(8):
            A.op(f"ds_swizzle_b32 v{DD+q}, v{T+q} offset:0x401f")
        A.op("s_waitcnt lgkmcnt(0)")
        for q in range(8):
            A.op(f"v_add_f32 v{T+q}, v{T+q}, v{DD+q}")
            A.op(f"v_mov_b32 v{DD+q}, v{T+q}")
        A.op("s_nop 1")
        for q in range(8):
            A.op(f"v_permlane32_swap_b32 v{T+q}, v{DD+q}")
        A.op("s_mov_b32 s58, 0xff"); A.op("s_mov_b32 s59, 0"); A.op("s_lshl_b32 s55, s52, 3"); A.op("s_lshl_b64 s[58:59], s[58:59], s55")
        for q in range(8):
            A.op(f"v_add_f32 v{T+q}, v{T+q}, v{DD+q}")
        A.op("s_mov_b64 exec, s[58:59]")
        for q in range(8):
            A.op(f"v_add_f32 v{ACC[i]+q}, v{ACC[i]+q}, v{T+q}")
        A.op("s_mov_b64 exec, -1")
        A.label(ln)
        A.op("s_add_u32 s52, s52, 1"); A.op("s_cmp_lt_u32 s52, 8"); A.op(f"s_cbranch_scc1 {lg}")
    A.label("hop_noovf")
    for i in range(2):
        for q in range(8):
            A.op(f"v_mul_f32 v{ACC[i]+q}, v{VS+i}, v{ACC[i]+q}")
        d = DATA + 4 * i
        for q in range(4):
            A.op(f"v_cvt_pk_bf16_f32 v{d+q}, v{ACC[i]+2*q}, v{ACC[i]+2*q+1}")
        A.op(f"buffer_store_dwordx4 v[{d}:{d+3}], v{VN+i}, s[24:27], 0 offen sc0 sc1")
    A.op("s_add_u32 s36, s36, 1")
    A.op(f"s_add_u32 s20, s20, {TAB}"); A.op("s_addc_u32 s21, s21, 0")
    A.op(f"s_add_u32 s24, s24, {TAB}"); A.op("s_addc_u32 s25, s25, 0")
    A.op(f"s_cmp_ge_u32 s36, {nh}"); A.op("s_cbranch_scc1 hop_last")
    A.op("s_waitcnt vmcnt(0)")
    if prof: A.op("s_memrealtime s[68:69]")
    A.op("s_barrier")
    if prof:
        A.op("s_memrealtime s[70:71]")
        A.op("s_waitcnt lgkmcnt(0)")
        A.op("s_lshl_b32 s85, s36, 6"); A.op("s_add_u32 s85, s85, s84")
        A.op("s_mov_b64 exec, 1")
        for qi in range(4):
            A.op(f"v_mov_b32 v6, s{64+2*qi}"); A.op(f"v_mov_b32 v7, s{65+2*qi}"); A.op(f"v_mov_b32 v2, {8*qi}")
            A.op("buffer_store_dwordx2 v[6:7], v2, s[80:83], s85 offen"); A.op("s_nop 1")
        A.op("s_mov_b64 exec, -1")
    if pw: A.op("s_branch hop_barother")
    A.op("s_cmp_lg_u32 s6, 0"); A.op("s_cbranch_scc1 hop_barother")
    if bar == 'cnt':
        A.op(f"s_and_b32 s9, s8, {nshard-1}"); A.op("s_lshl_b32 s9, s9, 7")
        A.op("v_mov_b32 v2, s9"); A.op("v_mov_b32 v3, 1")
        A.op("s_mov_b64 exec, 1")
        A.op("buffer_atomic_add v3, v2, s[32:35], 0 offen sc1")
        A.op("s_mov_b64 exec, -1")
        A.op(f"v_min_u32 v5, {nshard-1}, v0"); A.op("v_lshlrev_b32 v2, 7, v5")
        A.op(f"v_sub_u32 v5, {NR + nshard - 1}, v5"); A.op(f"v_lshrrev_b32 v5, {nshard.bit_length()-1}, v5")
        A.op("v_mul_lo_u32 v5, v5, s36")
    else:
        A.op("s_lshl_b32 s9, s8, 7")
        A.op("v_mov_b32 v2, s9"); A.op("v_mov_b32 v3, s36")
        A.op("s_mov_b64 exec, 1")
        A.op("buffer_store_dword v3, v2, s[32:35], 0 offen sc0 sc1")
        A.op("s_mov_b64 exec, -1")
        A.op("v_lshlrev_b32 v2, 7, v0")
        A.op("v_add_u32 v3, 64, v0"); A.op(f"v_min_u32 v3, {NR-1}, v3"); A.op("v_lshlrev_b32 v3, 7, v3")
    A.op("v_mov_b32 v4, v2"); A.op("v_mov_b32 v9, v3"); A.op("v_mov_b32 v6, v5")
    stats()
    A.op("v_mov_b32 v2, v4"); A.op("v_mov_b32 v3, v9"); A.op("v_mov_b32 v5, v6")
    A.op("s_mov_b32 s37, 0")
    A.label("hop_poll")
    A.op("buffer_load_dword v4, v2, s[32:35], 0 offen sc0 sc1")
    if bar != 'cnt':
        A.op("buffer_load_dword v5, v3, s[32:35], 0 offen sc0 sc1")
    A.op("s_add_u32 s37, s37, 1"); A.op("s_cmp_ge_u32 s37, 100000"); A.op("s_cbranch_scc1 hop_pollok")
    A.op("s_waitcnt vmcnt(0)")
    if bar == 'cnt':
        A.op("v_cmp_ge_u32 s[38:39], v4, v5")
    else:
        A.op("v_min_u32 v4, v4, v5"); A.op("v_cmp_le_u32 s[38:39], s36, v4")
    A.op("s_nop 3")
    A.op("s_cmp_eq_u64 s[38:39], -1"); A.op("s_cbranch_scc1 hop_pollok")
    if sleep: A.op(f"s_sleep {sleep}")
    A.op("s_branch hop_poll")
    A.label("hop_pollok")
    A.op("s_waitcnt vmcnt(0)")
    A.label("hop_barw")
    A.op("s_barrier")
    A.op("s_branch hop_loop")
    A.label("hop_barother")
    stats()
    A.op("s_branch hop_barw")
    A.label("hop_last")
    stats()
    A.op("s_endpgm")
    if pw:
        A.cmt("helper wave: L2 prefetch of this hop's source half table (own share), barrier flag and poll")
        A.label("hop_pw")
        A.op(f"s_setprio {pwprio}")
        A.op("v_and_b32 v0, 63, v0")
        A.op(f"s_mul_i32 s19, s7, {HALF}")
        A.op("s_add_u32 s20, s4, s19"); A.op("s_addc_u32 s21, s5, 0")
        A.op(f"s_mov_b32 s22, {HALF}"); A.op("s_mov_b32 s23, 0x20000")
        A.op(f"s_mul_i32 s19, s7, {128*128}"); A.op(f"s_add_u32 s19, s19, {OFF_CNT}")
        A.op("s_add_u32 s32, s4, s19"); A.op("s_addc_u32 s33, s5, 0")
        A.op(f"s_mov_b32 s34, {128*128}"); A.op("s_mov_b32 s35, 0x20000")
        A.op("s_lshr_b32 s9, s2, 3"); A.op("s_and_b32 s9, s9, 31"); A.op("s_lshl_b32 s9, s9, 7")
        A.op("v_lshlrev_b32 v2, 12, v0"); A.op("v_add_u32 v2, s9, v2")
        A.op("v_lshlrev_b32 v10, 7, v0")
        A.op("v_add_u32 v11, 64, v0"); A.op(f"v_min_u32 v11, {NR-1}, v11"); A.op("v_lshlrev_b32 v11, 7, v11")
        A.op("s_lshl_b32 s9, s8, 7"); A.op("v_mov_b32 v12, s9")
        A.op("s_mov_b32 s36, 0")
        A.label("pw_hop")
        for i in range(13 if pw == 1 else 0):
            A.op(f"v_add_u32 v3, {i*64*4096}, v2")
            A.op(f"buffer_load_dword v{20+i}, v3, s[20:23], 0 offen sc1")
            if pwsleep: A.op(f"s_sleep {pwsleep}")
        A.op("s_add_u32 s36, s36, 1")
        A.op(f"s_add_u32 s20, s20, {TAB}"); A.op("s_addc_u32 s21, s21, 0")
        A.op(f"s_cmp_ge_u32 s36, {nh}"); A.op("s_cbranch_scc1 hops_done")
        A.op("s_waitcnt vmcnt(0)")
        A.op("s_barrier")
        A.op("v_mov_b32 v13, s36")
        A.op("s_mov_b64 exec, 1")
        A.op("buffer_store_dword v13, v12, s[32:35], 0 offen sc0 sc1")
        A.op("s_mov_b64 exec, -1")
        A.op("s_mov_b32 s37, 0")
        A.label("pw_poll")
        A.op("buffer_load_dword v4, v10, s[32:35], 0 offen sc0 sc1")
        A.op("buffer_load_dword v5, v11, s[32:35], 0 offen sc0 sc1")
        A.op("s_add_u32 s37, s37, 1"); A.op("s_cmp_ge_u32 s37, 100000"); A.op("s_cbranch_scc1 pw_ok")
        A.op("s_waitcnt vmcnt(0)")
        A.op("v_min_u32 v4, v4, v5"); A.op("v_cmp_le_u32 s[38:39], s36, v4")
        A.op("s_nop 3")
        A.op("s_cmp_eq_u64 s[38:39], -1"); A.op("s_cbranch_scc1 pw_ok")
        if sleep: A.op(f"s_sleep {sleep}")
        A.op("s_branch pw_poll")
        A.label("pw_ok")
        A.op("s_waitcnt vmcnt(0)")
        A.op("s_barrier")
        A.op("s_branch pw_hop")
    if rtt:
        A.label("hop_rtt")
        A.op("s_setprio 3")
        srd(A, 80, 4, 4 << 20, 96 << 20)
        srd(A, 32, 4, CNT_BYTES, OFF_CNT)
        A.op("s_lshl_b32 s84, s2, 10")
        A.op("v_and_b32 v0, 63, v0"); A.op("v_lshlrev_b32 v2, 7, v0"); A.op("v_and_b32 v2, 0x3fff, v2")
        A.op("s_mov_b32 s36, 0")
        A.label("rtt_hop")
        for i in range(rtt):
            A.op("s_memrealtime s[64:65]"); A.op("s_waitcnt lgkmcnt(0)")
            A.op("buffer_load_dword v4, v2, s[32:35], 0 offen sc0 sc1")
            A.op("s_waitcnt vmcnt(0)")
            A.op("s_memrealtime s[66:67]"); A.op("s_waitcnt lgkmcnt(0)")
            A.op("s_sub_u32 s66, s66, s64")
            A.op("s_mov_b64 exec, 1")
            A.op("v_mov_b32 v6, s66"); A.op("v_mov_b32 v7, s64"); A.op("s_lshl_b32 s85, s36, 7"); A.op("s_add_u32 s85, s85, s84"); A.op(f"v_mov_b32 v5, {8*i}")
            A.op("buffer_store_dwordx2 v[6:7], v5, s[80:83], s85 offen")
            A.op("s_mov_b64 exec, -1")
            A.op("s_sleep 6")
        A.op("s_add_u32 s36, s36, 1")
        A.op(f"s_cmp_ge_u32 s36, {nh}"); A.op("s_cbranch_scc1 hops_done")
        A.op("s_barrier"); A.op("s_barrier")
        A.op("s_branch rtt_hop")
    A.label("hops_done")
    A.op("s_endpgm")
    A.label("hops_wprep")
    wl = prep.gen_wprep(A, 64 * NW, 250)
    return dict(name=name, grid=252, block=64 * NWB, lds=max(L_END, wl), vgpr=nv, sgpr=96 if (prof or pf or rtt) else 80)
```

```python
from common import *

MAGIC200 = 41944

def pi_expr(A, dst, m, t1):
    A.op(f"v_and_b32 v{dst}, 0x13, v{m}")
    A.op(f"v_and_b32 v{t1}, 4, v{m}")
    A.op(f"v_lshl_or_b32 v{dst}, v{t1}, 1, v{dst}")
    A.op(f"v_and_b32 v{t1}, 8, v{m}")
    A.op(f"v_lshrrev_b32 v{t1}, 1, v{t1}")
    A.op(f"v_or_b32 v{dst}, v{dst}, v{t1}")

def gen_prep(A, skip=(), cells=False, st=''):
    name = "prep_kernel"
    kernel_begin(A, name)
    A.op("s_cmp_ge_u32 s2, 251"); A.op("s_cbranch_scc1 prep_done")
    A.op("s_load_dwordx2 s[4:5], s[0:1], 88")
    A.op("s_cmp_ge_u32 s2, 250"); A.op("s_cbranch_scc1 prep_misc")
    A.op("s_cmp_ge_u32 s2, 125"); A.op("s_cbranch_scc1 prep_x")
    if "edge" in skip: A.op("s_endpgm")
    A.op("s_load_dwordx4 s[8:11], s[0:1], 8")
    A.op("v_lshlrev_b32 v1, 2, v0")
    A.op("v_mov_b32 v2, 0")
    A.op("v_cmp_gt_u32 vcc, 128, v0"); A.op("s_and_saveexec_b64 s[20:21], vcc")
    A.op("ds_write_b32 v1, v2")
    A.op("s_mov_b64 exec, s[20:21]")
    A.op("s_waitcnt lgkmcnt(0)")
    srd(A, 12, 8, E * 4)
    srd(A, 16, 10, E * 4)
    A.op("s_mul_i32 s3, s2, 12800")
    A.op("v_lshlrev_b32 v3, 4, v0")
    A.op("buffer_load_dwordx4 v[4:7], v3, s[16:19], s3 offen")
    A.op("buffer_load_dwordx4 v[8:11], v3, s[12:15], s3 offen")
    A.op("s_barrier")
    A.op(f"s_mov_b32 s22, {MAGIC200}")
    A.op("s_waitcnt vmcnt(1)")
    for i in range(4):
        A.op(f"v_mul_u32_u24 v{12+i}, s22, v{4+i}")
        A.op(f"v_lshrrev_b32 v{12+i}, 23, v{12+i}")
        A.op(f"v_mul_u32_u24 v{16+i}, 200, v{12+i}")
        A.op(f"v_sub_u32 v{16+i}, v{4+i}, v{16+i}")
        A.op(f"v_lshlrev_b32 v{12+i}, 2, v{12+i}")
    A.op("v_mov_b32 v2, 1")
    for i in range(4):
        A.op(f"ds_add_rtn_u32 v{20+i}, v{12+i}, v2")
    A.op("s_waitcnt vmcnt(0)")
    for i in range(4):
        A.op(f"v_lshl_or_b32 v{16+i}, v{16+i}, 16, v{8+i}")
        A.op(f"v_lshl_or_b32 v{16+i}, v{12+i}, 22, v{16+i}")
    A.op("s_waitcnt lgkmcnt(0)")
    A.op("s_barrier")
    A.op("v_cmp_gt_u32 vcc, 64, v0"); A.op("s_and_saveexec_b64 s[20:21], vcc")
    l = A.new("es"); A.op(f"s_cbranch_execz {l}")
    A.op("v_lshlrev_b32 v3, 3, v0")
    A.op("ds_read_b64 v[24:25], v3")
    A.op("s_waitcnt lgkmcnt(0)")
    A.op("v_add_u32 v26, v24, v25")
    A.op("v_mov_b32 v27, v26")
    wave_scan_incl(A, 26)
    A.op("v_sub_u32 v26, v26, v27")
    A.op("v_add_u32 v27, v26, v24")
    A.op("ds_write_b64 v3, v[26:27] offset:512")
    srd(A, 24, 4, NR * 512, OFF_OFFS)
    A.op("s_lshl_b32 s23, s2, 9")
    A.op(f"buffer_store_dwordx2 v[26:27], v3, s[24:27], s23 offen{st}")
    A.label(l)
    A.op("s_mov_b64 exec, s[20:21]")
    A.op("s_waitcnt lgkmcnt(0)")
    A.op("s_barrier")
    for i in range(4):
        A.op(f"ds_read_b32 v{24+i}, v{12+i} offset:512")
    A.op("s_waitcnt lgkmcnt(0)")
    for i in range(4):
        A.op(f"v_add_lshl_u32 v{24+i}, v{24+i}, v{20+i}, 2")
    for i in range(4):
        A.op(f"ds_write_b32 v{24+i}, v{16+i} offset:1024")
    A.op("s_waitcnt lgkmcnt(0)")
    A.op("s_barrier")
    A.op("v_lshlrev_b32 v3, 4, v0")
    A.op("ds_read_b128 v[4:7], v3 offset:1024")
    srd(A, 24, 4, E * 4, OFF_ENT)
    srd(A, 28, 4, CELL_BYTES, OFF_CELL)
    A.op("s_waitcnt lgkmcnt(0)")
    A.op(f"buffer_store_dwordx4 v[4:7], v3, s[24:27], s3 offen{st}")
    if cells:
        A.cmt("fixed-capacity cells [bucket][chunk][64]: entry at sorted position p of bucket b goes to rank p - offs[b]")
        A.op("v_lshlrev_b32 v2, 2, v0")
        for i in range(4):
            A.op(f"ds_read_b32 v{24+i}, v2 offset:{1024 + 3200*i}")
        A.op("s_waitcnt lgkmcnt(0)")
        for i in range(4):
            A.op(f"v_lshrrev_b32 v{8+i}, 24, v{24+i}")
            A.op(f"v_lshlrev_b32 v{12+i}, 2, v{8+i}")
            A.op(f"ds_read_b32 v{16+i}, v{12+i} offset:512")
        A.op("s_lshl_b32 s23, s2, 8")
        A.op("s_waitcnt lgkmcnt(0)")
        for i in range(4):
            A.op(f"v_add_u32 v20, {800*i}, v0"); A.op(f"v_sub_u32 v20, v20, v{16+i}")
            A.op(f"v_mul_u32_u24 v21, {NR*256}, v{8+i}"); A.op("v_lshl_add_u32 v21, v20, 2, v21")
            A.op("v_cmp_gt_u32 vcc, 64, v20")
            A.op("s_nop 1")
            A.op("v_cndmask_b32_e64 v21, -1, v21, vcc")
            A.op(f"buffer_store_dword v{24+i}, v21, s[28:31], s23 offen")
    A.op("s_endpgm")
    A.label("prep_x")
    if "x" in skip: A.op("s_endpgm")
    A.op("s_load_dwordx2 s[8:9], s[0:1], 0")
    A.op("s_load_dwordx2 s[10:11], s[0:1], 24")
    A.op("s_sub_u32 s3, s2, 125")
    A.op("s_waitcnt lgkmcnt(0)")
    srd(A, 12, 8, TAB)
    srd(A, 16, 10, N * 2)
    srd(A, 24, 4, TAB, OFF_G)
    A.op("s_mul_i32 s20, s3, 51200")
    A.op("s_mul_i32 s21, s3, 400")
    A.op("s_mul_i32 s22, s3, 25600")
    for i in range(4):
        A.op(f"v_add_u32 v1, {800*i}, v0")
        A.op(f"v_lshlrev_b32 v2, 4, v1")
        A.op(f"buffer_load_dwordx4 v[{8+4*i}:{11+4*i}], v2, s[12:15], s20 offen")
        A.op(f"v_lshrrev_b32 v3, 4, v1")
        A.op(f"v_lshlrev_b32 v4, 1, v3")
        A.op(f"buffer_load_ushort v{24+i}, v4, s[16:19], s21 offen")
        A.op(f"v_and_b32 v4, 7, v1"); A.op(f"v_lshlrev_b32 v4, 4, v4")
        A.op(f"v_lshl_add_u32 v4, v3, 7, v4")
        A.op(f"v_bfe_u32 v5, v1, 3, 1")
        A.op(f"s_mov_b32 s23, {HALF}")
        A.op(f"v_mad_u32_u24 v{28+i}, v5, s23, v4")
    A.op("s_mov_b32 s23, 0xffff0000")
    srd(A, 28, 4, ST_TOK, OFF_ST)
    A.op("s_mul_i32 s32, s3, 3200")
    A.op("s_mov_b32 s34, 0x01010101"); A.op("s_mov_b32 s35, 0x01010101")
    for i in range(4):
        A.op(f"s_waitcnt vmcnt({6-2*i})" if i == 0 else f"s_waitcnt vmcnt({2*(3-i) + 2*i})")
        A.op(f"v_lshlrev_b32 v{24+i}, 16, v{24+i}")
        A.op("v_mov_b32 v32, 0"); A.op("v_mov_b32 v33, 0")
        for q in range(4):
            r = 8 + 4 * i + q
            A.op(f"v_lshlrev_b32 v2, 16, v{r}")
            A.op(f"v_and_b32 v3, s23, v{r}")
            A.op("v_add_f32 v32, v32, v2"); A.op("v_fmac_f32 v33, v2, v2")
            A.op("v_add_f32 v32, v32, v3"); A.op("v_fmac_f32 v33, v3, v3")
            A.op(f"v_mul_f32 v2, v2, v{24+i}")
            A.op(f"v_mul_f32 v3, v3, v{24+i}")
            A.op(f"v_cvt_pk_bf16_f32 v{r}, v2, v3")
        A.op(f"buffer_store_dwordx4 v[{8+4*i}:{11+4*i}], v{28+i}, s[24:27], s22 offen{st}")
        for m in ("quad_perm:[1,0,3,2]", "quad_perm:[2,3,0,1]", "row_half_mirror"):
            A.op("s_nop 0")
            A.op(f"v_add_f32_dpp v32, v32, v32 {m} row_mask:0xf bank_mask:0xf")
            A.op(f"v_add_f32_dpp v33, v33, v33 {m} row_mask:0xf bank_mask:0xf")
        A.op(f"v_add_u32 v34, {800*i}, v0"); A.op("v_and_b32 v34, -8, v34")
        A.op("s_mov_b64 s[36:37], exec"); A.op("s_and_b64 exec, exec, s[34:35]")
        A.op(f"buffer_store_dwordx2 v[32:33], v34, s[28:31], s32 offen{st}")
        A.op("s_mov_b64 exec, s[36:37]")
    A.op("s_endpgm")
    A.label("prep_misc")
    A.op("s_waitcnt lgkmcnt(0)")
    srd(A, 24, 4, CNT_BYTES, OFF_CNT)
    A.op("v_lshlrev_b32 v1, 4, v0")
    for i in range(4):
        A.op(f"v_mov_b32 v{4+i}, 0")
    for i in range(-(-CNT_BYTES // 12800)):
        A.op(f"s_mov_b32 s3, {12800*i}")
        A.op("buffer_store_dwordx4 v[4:7], v1, s[24:27], s3 offen")
    A.op("s_endpgm")
    A.label("prep_done")
    A.op("s_endpgm")
    return dict(name=name, grid=251, block=800, lds=14336, vgpr=40, sgpr=40)

def gen_wprep(A, NT, first):
    LMEAN = 0
    FM = 2048
    STR = 129
    LWO = 68096
    A.op("s_load_dwordx4 s[8:11], s[0:1], 32")
    A.op("s_load_dwordx4 s[12:15], s[0:1], 48")
    A.op("s_load_dwordx2 s[28:29], s[0:1], 64")
    A.op("v_lshrrev_b32 v1, 6, v0"); A.op("s_nop 0")
    A.op("v_readfirstlane_b32 s6, v1")
    A.op("v_and_b32 v30, 63, v0")
    A.op("v_and_b32 v31, 31, v30")
    A.op("v_lshrrev_b32 v32, 5, v30")
    A.op("s_waitcnt lgkmcnt(0)")
    A.op(f"s_cmp_eq_u32 s2, {first}")
    A.op("s_cselect_b32 s16, s8, s12"); A.op("s_cselect_b32 s17, s9, s13")
    A.op("s_mov_b32 s18, 32768"); A.op("s_mov_b32 s19, 0x20000")
    A.op("s_cselect_b32 s20, s10, s14"); A.op("s_cselect_b32 s21, s11, s15")
    A.op("s_mov_b32 s22, 32768"); A.op("s_mov_b32 s23, 0x20000")
    A.op("s_cbranch_scc1 wprep_nostage")
    for i in range(3):
        A.op(f"v_add_u32 v1, {NT*i}, v0")
        A.op("v_lshlrev_b32 v2, 4, v1")
        if i == 2:
            A.op("v_cmp_gt_u32 vcc, 2048, v1"); A.op("s_and_saveexec_b64 s[24:25], vcc")
            l = A.new("st"); A.op(f"s_cbranch_execz {l}")
        A.op("buffer_load_dwordx4 v[4:7], v2, s[20:23], 0 offen")
        A.op("s_waitcnt vmcnt(0)")
        A.op(f"v_add_u32 v2, {LWO}, v2")
        A.op(f"ds_write_b128 v2, v[4:7]")
        if i == 2:
            A.label(l); A.op("s_mov_b64 exec, s[24:25]")
    A.op("s_waitcnt lgkmcnt(0)")
    A.label("wprep_nostage")
    A.op("s_barrier")
    A.op("s_cmp_ge_u32 s6, 8"); A.op("s_cbranch_scc1 wprep_mm_done")
    A.op("s_lshr_b32 s24, s6, 1"); A.op("s_and_b32 s25, s6, 1"); A.op("s_lshl_b32 s25, s25, 1")
    A.op("s_lshl_b32 s26, s24, 13")
    A.op("v_lshlrev_b32 v1, 8, v31"); A.op("v_lshl_add_u32 v1, v32, 4, v1")
    for kk in range(8):
        A.op(f"buffer_load_dwordx4 v[{40+4*kk}:{43+4*kk}], v1, s[16:19], s26 offen offset:{32*kk}")
    for te in range(2):
        A.op(f"s_cmp_eq_u32 s2, {first}"); lb = A.new("bw"); le = A.new("be"); A.op(f"s_cbranch_scc0 {lb}")
        A.op(f"s_add_u32 s27, s25, {te}"); A.op("s_lshl_b32 s27, s27, 13")
        for kk in range(8):
            A.op(f"buffer_load_dwordx4 v[{72+4*kk}:{75+4*kk}], v1, s[20:23], s27 offen offset:{32*kk}")
        A.op("s_waitcnt vmcnt(0)")
        A.op(f"s_branch {le}")
        A.label(lb)
        A.op("v_and_b32 v2, 15, v30")
        A.op("v_lshrrev_b32 v3, 2, v2")
        A.op("v_and_b32 v2, 3, v2")
        A.op("v_lshl_add_u32 v3, v32, 3, v3")
        A.op("v_lshlrev_b32 v3, 8, v3")
        A.op("v_lshl_add_u32 v3, v2, 3, v3")
        A.op("v_bfe_u32 v2, v30, 4, 1")
        A.op("v_lshl_add_u32 v3, v2, 5, v3")
        A.op(f"s_add_u32 s27, s25, {te}"); A.op("s_lshl_b32 s27, s27, 6")
        A.op(f"s_add_u32 s27, s27, {LWO}")
        A.op("v_add_u32 v3, s27, v3")
        for kk in range(8):
            A.op(f"ds_read_b64_tr_b16 v[{72+4*kk}:{73+4*kk}], v3 offset:{4096*kk}")
            A.op(f"ds_read_b64_tr_b16 v[{74+4*kk}:{75+4*kk}], v3 offset:{4096*kk+1024}")
        A.op("s_waitcnt vmcnt(0) lgkmcnt(0)")
        A.label(le)
        for kk in range(8):
            c = "0" if kk == 0 else "v[104:119]"
            A.op(f"v_mfma_f32_32x32x16_bf16 v[104:119], v[{40+4*kk}:{43+4*kk}], v[{72+4*kk}:{75+4*kk}], {c}")
        A.op("s_nop 15"); A.op("s_nop 7")
        A.op("s_lshl_b32 s27, s24, 5")
        A.op("v_lshlrev_b32 v2, 2, v32"); A.op("v_add_u32 v2, s27, v2")
        A.op(f"v_mul_u32_u24 v2, {STR}, v2")
        A.op(f"s_add_u32 s27, s25, {te}"); A.op("s_lshl_b32 s27, s27, 5")
        A.op("v_add3_u32 v2, v2, s27, v31")
        A.op("v_lshlrev_b32 v2, 2, v2")
        for r in range(16):
            d = (r & 3) + 8 * (r >> 2)
            A.op(f"ds_write_b32 v2, v{104+r} offset:{FM + d*STR*4}")
    A.label("wprep_mm_done")
    A.op("s_waitcnt lgkmcnt(0)")
    A.op("s_barrier")
    A.op("v_cmp_gt_u32 vcc, 256, v0"); A.op("s_and_saveexec_b64 s[24:25], vcc")
    l = A.new("mn"); A.op(f"s_cbranch_execz {l}")
    A.op("v_and_b32 v2, 127, v0")
    A.op("v_cmp_gt_u32 vcc, 128, v0")
    A.op(f"v_mul_u32_u24 v3, {STR}, v2")
    A.op("s_nop 1")
    A.op("v_cndmask_b32_e64 v3, v3, v2, vcc")
    A.op(f"v_mov_b32 v4, {STR}")
    A.op("v_cndmask_b32_e64 v4, 1, v4, vcc")
    A.op("v_lshlrev_b32 v3, 2, v3"); A.op("v_lshlrev_b32 v4, 2, v4")
    A.op("v_mov_b32 v5, 0")
    A.op("s_mov_b32 s26, 0")
    lp = A.new("ml"); A.label(lp)
    for i in range(8):
        A.op(f"ds_read_b32 v{8+i}, v3 offset:{FM}"); A.op("v_add_u32 v3, v3, v4")
    A.op("s_waitcnt lgkmcnt(0)")
    for i in range(8):
        A.op(f"v_add_f32 v5, v5, v{8+i}")
    A.op("s_add_u32 s26, s26, 1"); A.op("s_cmp_lt_u32 s26, 16"); A.op(f"s_cbranch_scc1 {lp}")
    A.op("v_mul_f32 v5, 0x3c000000, v5")
    A.op("v_lshlrev_b32 v2, 2, v0")
    A.op(f"ds_write_b32 v2, v5 offset:{LMEAN}")
    A.label(l)
    A.op("s_mov_b64 exec, s[24:25]")
    A.op("s_waitcnt lgkmcnt(0)")
    A.op("s_barrier")
    A.op("v_lshlrev_b32 v2, 3, v30")
    A.op(f"ds_read_b64 v[4:5], v2 offset:{LMEAN}")
    A.op("s_waitcnt lgkmcnt(0)")
    A.op("v_add_f32 v4, v4, v5")
    A.op("s_cmp_eq_u32 s6, 0"); l = A.new("tm"); A.op(f"s_cbranch_scc0 {l}")
    for sh in (1, 2, 4, 8):
        A.op("s_nop 1"); A.op(f"v_add_f32_dpp v4, v4, v4 row_shr:{sh} row_mask:0xf bank_mask:0xf")
    A.op("s_nop 1"); A.op("v_add_f32_dpp v4, v4, v4 row_bcast:15 row_mask:0xa bank_mask:0xf")
    A.op("s_nop 1"); A.op("v_add_f32_dpp v4, v4, v4 row_bcast:31 row_mask:0xc bank_mask:0xf")
    A.op("s_nop 1"); A.op("v_readlane_b32 s26, v4, 63")
    A.op("s_nop 3"); A.op("v_mov_b32 v4, s26"); A.op("v_mul_f32 v4, 0x3c000000, v4")
    A.op("v_mov_b32 v2, 0"); A.op(f"ds_write_b32 v2, v4 offset:{LMEAN+1024}")
    A.label(l)
    A.op("s_waitcnt lgkmcnt(0)")
    A.op("s_barrier")
    A.op(f"s_cmp_eq_u32 s2, {first}")
    A.op(f"s_cselect_b32 s26, 0, 32768")
    A.op("s_cselect_b32 s30, 0x3e0293ee, 1.0")
    A.op("s_cselect_b32 s31, 1.0, 0")
    A.op(f"s_add_u32 s26, s26, {OFF_WM}")
    A.op("s_add_u32 s24, s4, s26"); A.op("s_addc_u32 s25, s5, 0")
    A.op("s_mov_b32 s26, 32768"); A.op("s_mov_b32 s27, 0x20000")
    A.op("v_mov_b32 v2, 0"); A.op(f"ds_read_b32 v33, v2 offset:{LMEAN+1024}")
    for i in range(3):
        A.op(f"v_add_u32 v1, {NT*i}, v0")
        if i == 2:
            A.op("v_cmp_gt_u32 vcc, 2048, v1"); A.op("s_and_saveexec_b64 s[34:35], vcc")
            l = A.new("em"); A.op(f"s_cbranch_execz {l}")
        A.op("v_and_b32 v2, 31, v1")
        pi_expr(A, 3, 2, 4)
        A.op("v_lshrrev_b32 v4, 9, v1")
        A.op("v_lshl_add_u32 v3, v4, 5, v3")
        A.op("v_bfe_u32 v4, v1, 6, 3")
        A.op("v_bfe_u32 v5, v1, 5, 1")
        A.op("v_lshlrev_b32 v4, 4, v4"); A.op("v_lshl_add_u32 v4, v5, 3, v4")
        A.op(f"v_mul_u32_u24 v5, {STR}, v4"); A.op("v_add_lshl_u32 v5, v5, v3, 2")
        for j in range(8):
            A.op(f"ds_read_b32 v{8+j}, v5 offset:{FM + j*STR*4}")
        A.op("v_lshlrev_b32 v6, 2, v3"); A.op(f"ds_read_b32 v16, v6 offset:{LMEAN}")
        A.op("v_lshlrev_b32 v6, 2, v4")
        A.op(f"ds_read_b128 v[20:23], v6 offset:{LMEAN+512}"); A.op(f"ds_read_b128 v[24:27], v6 offset:{LMEAN+528}")
        A.op("s_waitcnt lgkmcnt(0)")
        for j in range(8):
            A.op(f"v_sub_f32 v{20+j}, v{20+j}, v33")
            A.op(f"v_sub_f32 v{8+j}, v{8+j}, v16")
            A.op(f"v_fma_f32 v{8+j}, -v{20+j}, s31, v{8+j}")
            A.op(f"v_mul_f32 v{8+j}, s30, v{8+j}")
        for j in range(4):
            A.op(f"v_cvt_pk_bf16_f32 v{8+j}, v{8+2*j}, v{9+2*j}")
        A.op("v_lshlrev_b32 v6, 4, v1")
        A.op("buffer_store_dwordx4 v[8:11], v6, s[24:27], 0 offen")
        if i == 2:
            A.label(l); A.op("s_mov_b64 exec, s[34:35]")
    A.op(f"s_cmp_eq_u32 s2, {first+1}"); A.op("s_cbranch_scc0 wprep_done")
    A.op("s_cmp_ge_u32 s6, 1"); A.op("s_cbranch_scc1 wprep_done")
    srd(A, 12, 28, 256)
    A.op("v_lshlrev_b32 v2, 1, v30")
    A.op("buffer_load_ushort v4, v2, s[12:15], 0 offen")
    A.op("buffer_load_ushort v5, v2, s[12:15], 0 offen offset:128")
    A.op("s_waitcnt vmcnt(0)")
    A.op("v_lshlrev_b32 v4, 16, v4"); A.op("v_lshlrev_b32 v5, 16, v5")
    A.op("v_add_f32 v6, v4, v5")
    for sh in (1, 2, 4, 8):
        A.op("s_nop 1"); A.op(f"v_add_f32_dpp v6, v6, v6 row_shr:{sh} row_mask:0xf bank_mask:0xf")
    A.op("s_nop 1"); A.op("v_add_f32_dpp v6, v6, v6 row_bcast:15 row_mask:0xa bank_mask:0xf")
    A.op("s_nop 1"); A.op("v_add_f32_dpp v6, v6, v6 row_bcast:31 row_mask:0xc bank_mask:0xf")
    A.op("s_nop 1"); A.op("v_readlane_b32 s26, v6, 63")
    A.op("s_nop 3"); A.op("v_mov_b32 v6, s26"); A.op("v_mul_f32 v6, 0x3c000000, v6")
    A.op("v_sub_f32 v4, v4, v6"); A.op("v_sub_f32 v5, v5, v6")
    srd(A, 16, 4, 512, OFF_WC)
    for (val, add) in ((4, 0), (5, 64)):
        A.op(f"v_add_u32 v7, {add}, v30")
        A.op("v_bfe_u32 v8, v7, 3, 1"); A.op("v_lshlrev_b32 v8, 6, v8")
        A.op("v_lshrrev_b32 v9, 5, v7"); A.op("v_lshl_add_u32 v8, v9, 4, v8")
        A.op("v_bfe_u32 v9, v7, 4, 1"); A.op("v_lshl_add_u32 v8, v9, 3, v8")
        A.op("v_and_b32 v9, 7, v7"); A.op("v_add_lshl_u32 v8, v8, v9, 2")
        A.op(f"buffer_store_dword v{val}, v8, s[16:19], 0 offen")
    A.label("wprep_done")
    A.op("s_endpgm")
    return 100864
```

```python
from common import *
from sched import Op, schedule, finalize

L_WM = 0; L_WV = 32768; L_WC = 65536; L_X = 66560
NWV = 8
L_S = L_X + NWV * 8192
L_END = L_S + NWV * 256
NWG = 250; TPW = 25

V_WA = 2
V_XB = 3
V_TR = 4
V_DG = 8
V_DX = 9
V_RW = 10
V_RR = 11
V_AW = 12
V_AR = 13
V_SO = 14
V_WC = 15
V_OUT = 16
V_DO = 17
V_OT = 18
V_DN = 19
V_T0 = 20; V_T1 = 21
V_D = 22; V_C = 23; V_C2 = 24
V_TC = 25; V_TC2 = 26
V_L0 = 28; V_L1 = 29; V_L2 = 30; V_L3 = 31
V_A0 = 0; V_A1 = 1
X = 32
WB = 64; NWB = 5
RR = 84
DA = [100, 116]
S = 132
UOP = 148
VOP = 156
POP = 188
XT = 196
WCR = 228
V_RHO = 27
V_AW2 = 12; V_AR2 = 13
V_ST = 244
V_RL = 248
V_P = 252
V_S1 = 84 + 16 - 16

def gen_tf(A, reorder=True, prof=False, nwb=5, stagger=1, ro='dot', ost='', wreg=True, pace=0, pa=True, pk=False):
    name = "tf_kernel"
    NWV = 4 if wreg else 8
    L_S = L_X + NWV * 8192
    L_END = L_S + NWV * 256
    if wreg: stagger = 0
    kernel_begin(A, name)
    A.op(f"s_cmp_ge_u32 s2, {NWG}"); A.op("s_cbranch_scc1 tf_done")
    A.op("s_load_dwordx2 s[4:5], s[0:1], 88")
    A.op("s_load_dwordx2 s[8:9], s[0:1], 0")
    A.op("s_load_dwordx2 s[10:11], s[0:1], 24")
    A.op("s_load_dwordx2 s[44:45], s[0:1], 72")
    if prof == 1: A.op("s_memrealtime s[70:71]")
    A.op("v_lshrrev_b32 v1, 6, v0"); A.op("s_nop 0")
    A.op("v_readfirstlane_b32 s6, v1")
    A.op("v_and_b32 v0, 63, v0")
    H, K, AA, T1, T2, T3 = 28, 29, 30, 31, 20, 21
    A.op(f"v_lshlrev_b32 v{V_WA}, 4, v0")
    A.op(f"v_lshrrev_b32 v{H}, 5, v0"); A.op(f"v_and_b32 v{K}, 7, v0"); A.op(f"v_bfe_u32 v{AA}, v0, 3, 2")
    A.op(f"s_mul_i32 s34, s6, 8192"); A.op(f"s_add_u32 s34, s34, {L_X}")
    A.op(f"v_and_b32 v{T1}, 15, v0"); A.op(f"v_xor_b32 v{T1}, v{T1}, v{H}"); A.op(f"v_lshlrev_b32 v{T1}, 4, v{T1}")
    A.op(f"v_lshl_add_u32 v{T1}, v{K}, 10, v{T1}"); A.op(f"v_lshl_add_u32 v{T1}, v{AA}, 8, v{T1}"); A.op(f"v_add_u32 v{V_XB}, s34, v{T1}")
    A.op(f"v_bfe_u32 v{T1}, v0, 2, 2"); A.op(f"v_lshl_add_u32 v{T1}, v{H}, 2, v{T1}")
    A.op(f"v_bfe_u32 v{T2}, v0, 4, 1"); A.op(f"v_lshlrev_b32 v{T2}, 1, v{T2}")
    A.op(f"v_and_b32 v{T3}, 1, v0"); A.op(f"v_or_b32 v{T2}, v{T2}, v{T3}"); A.op(f"v_xor_b32 v{T2}, v{T2}, v{T1}")
    A.op(f"v_lshlrev_b32 v{T2}, 4, v{T2}"); A.op(f"v_lshl_add_u32 v{T2}, v{T1}, 10, v{T2}")
    A.op(f"v_bfe_u32 v{T3}, v0, 1, 1"); A.op(f"v_lshl_add_u32 v{T2}, v{T3}, 3, v{T2}"); A.op(f"v_add_u32 v{T2}, s34, v{T2}")
    for q in range(4):
        A.op(f"v_xor_b32 v{V_TR+q}, {q << 6}, v{T2}")
    A.op(f"v_lshrrev_b32 v{T1}, 4, v0"); A.op(f"v_bfe_u32 v{T2}, v0, 3, 1"); A.op(f"v_and_b32 v{T3}, 1, v{T1}"); A.op(f"v_xor_b32 v{T2}, v{T2}, v{T3}")
    A.op(f"v_and_b32 v{T3}, 7, v0"); A.op(f"v_lshlrev_b32 v{T3}, 4, v{T3}")
    A.op(f"s_mov_b32 s35, {HALF}")
    A.op(f"v_lshl_add_u32 v{V_DG}, v{T1}, 7, v{T3}"); A.op(f"v_mad_u32_u24 v{V_DG}, v{T2}, s35, v{V_DG}")
    A.op(f"v_lshl_add_u32 v{V_DX}, v{T1}, 8, v{T3}"); A.op(f"v_lshl_add_u32 v{V_DX}, v{T2}, 7, v{V_DX}")
    A.op(f"s_lshl_b32 s35, s6, 8"); A.op(f"s_add_u32 s35, s35, {L_S}")
    A.op(f"v_and_b32 v{V_RW}, 31, v0"); A.op(f"v_lshlrev_b32 v{V_AW}, 1, v{V_RW}"); A.op(f"v_lshlrev_b32 v{V_RW}, 2, v{V_RW}")
    A.op(f"v_add_u32 v{V_RW}, s35, v{V_RW}"); A.op(f"v_add_u32 v{V_AW}, s35, v{V_AW}")
    A.op(f"v_lshlrev_b32 v{V_RR}, 3, v{AA}"); A.op(f"v_lshl_add_u32 v{V_RR}, v{H}, 2, v{V_RR}")
    A.op(f"v_lshlrev_b32 v{V_AR}, 1, v{V_RR}"); A.op(f"v_add_u32 v{V_AR}, s35, v{V_AR}")
    A.op(f"v_lshlrev_b32 v{V_RR}, 2, v{V_RR}"); A.op(f"v_add_u32 v{V_RR}, s35, v{V_RR}")
    if ro != 'mfma':
        A.op(f"v_lshrrev_b32 v{V_AW2}, 2, v{K}"); A.op(f"v_lshlrev_b32 v{V_AW2}, 4, v{V_AW2}"); A.op(f"v_lshl_add_u32 v{V_AW2}, v{AA}, 2, v{V_AW2}")
        A.op(f"v_and_b32 v{T1}, 3, v{K}"); A.op(f"v_add_u32 v{V_AW2}, v{V_AW2}, v{T1}"); A.op(f"v_lshlrev_b32 v{V_AW2}, 1, v{V_AW2}"); A.op(f"v_add_u32 v{V_AW2}, s35, v{V_AW2}")
        A.op(f"v_lshlrev_b32 v{V_AR2}, 5, v{H}"); A.op(f"v_add_u32 v{V_AR2}, s35, v{V_AR2}")
    A.op(f"s_mov_b32 s35, {ST_TOK}"); A.op(f"v_lshlrev_b32 v{V_SO}, 4, v{AA}"); A.op(f"v_mad_u32_u24 v{V_SO}, v{K}, s35, v{V_SO}")
    A.op(f"v_lshlrev_b32 v{V_WC}, 8, v{H}"); A.op(f"v_add_u32 v{V_WC}, {L_WC}, v{V_WC}")
    A.op(f"v_and_b32 v{T1}, 31, v0")
    A.op(f"v_and_b32 v{V_OUT}, 0x13, v{T1}"); A.op(f"v_and_b32 v{T2}, 4, v{T1}"); A.op(f"v_lshl_or_b32 v{V_OUT}, v{T2}, 1, v{V_OUT}")
    A.op(f"v_and_b32 v{T2}, 8, v{T1}"); A.op(f"v_lshrrev_b32 v{T2}, 1, v{T2}"); A.op(f"v_or_b32 v{V_OUT}, v{V_OUT}, v{T2}")
    A.op(f"v_lshlrev_b32 v{V_OUT}, 1, v{V_OUT}"); A.op(f"v_lshl_add_u32 v{V_OUT}, v{H}, 9, v{V_OUT}")
    A.op(f"v_lshlrev_b32 v{V_DO}, 1, v{AA}")
    A.op(f"v_mov_b32 v{V_OT}, 0x7fffffff")
    def m64(s, val):
        A.op(f"s_mov_b32 s{s}, {val & 0xffffffff:#x}"); A.op(f"s_mov_b32 s{s+1}, {val >> 32:#x}")
    m64(46, 0x0000FF000000FF00); m64(48, 0x00FF000000FF0000); m64(50, 0xFF000000FF000000); m64(52, 0x000000FF000000FF)
    m64(54, 0x0101010101010101)
    RM = [64, 66, 68, 90]
    for a, s in enumerate(RM):
        m = 8 * a + (0 if a < 2 else 4)
        m64(s, (1 << m) | (1 << (m + 32)))
    A.op("s_mov_b32 s57, 0x3727c5ac"); A.op("s_mov_b32 s58, 0x3c000000")
    A.op("s_mov_b32 s59, 0x3fb8aa3b"); A.op("s_mov_b32 s60, 0xffff0000")
    A.op(f"s_mul_i32 s37, s2, {TPW}")
    A.op(f"s_add_u32 s61, s37, {TPW-1}")
    A.op("s_add_u32 s36, s37, s6")
    A.op("s_waitcnt lgkmcnt(0)")
    srd(A, 12, 4, 8 * TAB, OFF_G)
    srd(A, 16, 8, TAB)
    srd(A, 20, 10, N * 2)
    srd(A, 24, 44, TAB)
    srd(A, 28, 4, 65536 + 512, OFF_WM)
    srd(A, 92, 4, 8 * ST_TOK, OFF_ST)
    if prof == 1:
        srd(A, 80, 4, 4 << 20, 96 << 20)
        A.op("s_lshl_b32 s84, s2, 4"); A.op("s_add_u32 s84, s84, s6"); A.op("s_lshl_b32 s84, s84, 10")
        A.op("s_mov_b32 s85, 0")
    if pa:
        assert wreg
        for k in range(1, 8):
            A.op(f"v_xor_b32 v{63+k}, {k << 4}, v{V_DG}")
            A.op(f"v_add_u32 v{63+k}, {k*TAB - 1024*(k & 3)}, v{63+k}")
        for kk in range(8):
            A.op(f"v_xor_b32 v{72+kk}, {(2*kk) << 4}, v{V_XB}")
        A.op("s_add_u32 s98, s34, 4096")
    def dma_ops(emit, tile_sreg):
        if pa:
            emit(f"s_lshl_b32 s39, s{tile_sreg}, 9"); emit(f"s_lshl_b32 s40, s{tile_sreg}, 10"); emit(f"s_lshl_b32 s43, s{tile_sreg}, 3")
            emit(f"s_lshl_b32 s33, s{tile_sreg}, 6")
            emit(f"buffer_load_dwordx4 v[{V_ST}:{V_ST+3}], v{V_SO}, s[92:95], s33 offen", [], ["M_vm"])
            emit(f"buffer_load_ushort v{V_DN}, v{V_DO}, s[20:23], s43 offen", [], ["M_vm"])
            emit("s_mov_b32 m0, s34")
            emit(f"buffer_load_dwordx4 v{V_DX}, s[16:19], s40 offen lds", ["M_xrd"], ["M_vm"])
            for k in range(1, 8):
                if k == 4: emit("s_mov_b32 m0, s98")
                off = f" offset:{1024*(k & 3)}" if (k & 3) else ""
                emit(f"buffer_load_dwordx4 v{63+k}, s[12:15], s39 offen{off} lds", ["M_xrd"], ["M_vm"])
            return
        dma_ops0(emit, tile_sreg)
    def dma_ops0(emit, tile_sreg):
        emit(f"s_lshl_b32 s39, s{tile_sreg}, 9"); emit(f"s_lshl_b32 s40, s{tile_sreg}, 10"); emit(f"s_lshl_b32 s43, s{tile_sreg}, 3")
        emit(f"s_lshl_b32 s33, s{tile_sreg}, 6")
        emit(f"buffer_load_dwordx4 v[{V_ST}:{V_ST+3}], v{V_SO}, s[92:95], s33 offen", [], ["M_vm"])
        emit(f"buffer_load_ushort v{V_DN}, v{V_DO}, s[20:23], s43 offen", [], ["M_vm"])
        emit("s_mov_b32 m0, s34")
        emit(f"buffer_load_dwordx4 v{V_DX}, s[16:19], s40 offen lds", ["M_xrd"], ["M_vm"])
        for k in range(1, 8):
            t = V_T0 if k & 1 else V_T1
            emit(f"v_xor_b32 v{t}, {k << 4}, v{V_DG}")
            emit(f"s_add_u32 s41, s34, {1024*k}"); emit("s_mov_b32 m0, s41")
            emit(f"s_add_u32 s41, s39, {k*TAB}")
            emit(f"buffer_load_dwordx4 v{t}, s[12:15], s41 offen lds", ["M_xrd"], ["M_vm"])
    def emit_plain(t, memr=(), memw=()):
        if t.startswith("buffer_load") and "lds" in t: A.op("s_nop 0")
        A.op(t)
    A.op(f"s_mul_i32 s3, s6, {65536 // NWV}")
    for i in range(64 // NWV):
        A.op(f"s_add_u32 s32, s3, {1024*i}"); A.op("s_mov_b32 m0, s32"); A.op("s_nop 0")
        A.op(f"buffer_load_dwordx4 v{V_WA}, s[28:31], s32 offen lds")
    A.op("s_cmp_eq_u32 s6, 0"); l = A.new("wc"); A.op(f"s_cbranch_scc0 {l}")
    A.op("s_mov_b32 s33, 65536")
    A.op(f"buffer_load_dwordx4 v[{X}:{X+3}], v{V_WA}, s[28:31], s33 offen")
    A.op("s_waitcnt vmcnt(0)")
    A.op(f"v_add_u32 v{T1}, {L_WC}, v{V_WA}"); A.op(f"ds_write_b128 v{T1}, v[{X}:{X+3}]")
    A.label(l)
    if stagger:
        A.op("s_cmp_ge_u32 s6, 4"); A.op("s_cbranch_scc1 tf_late")
    dma_ops(emit_plain, 36)
    A.op("s_waitcnt vmcnt(10) lgkmcnt(0)")
    A.op("s_barrier")
    if stagger:
        A.op("s_branch tf_go")
        A.label("tf_late")
        A.op("s_waitcnt vmcnt(0) lgkmcnt(0)")
        A.op("s_barrier")
        dma_ops(emit_plain, 36)
        A.label("tf_go")

    if wreg:
        A.cmt("weights LDS -> AGPRs (kept for the whole kernel)")
        for i in range(64):
            A.op(f"ds_read_b128 a[{4*i}:{4*i+3}], v{V_WA} offset:{1024*i}")
            if i % 8 == 7: A.op("s_waitcnt lgkmcnt(4)")
        A.op("s_waitcnt lgkmcnt(0)")
    S1, S2, S3 = V_L2, V_L3, V_L1

    def xhalf(o, r, t, op="add"):
        o(f"v_mov_b32 v{t}, v{r}"); o(f"v_permlane32_swap_b32 v{r}, v{t}"); o(f"v_{op}_f32 v{r}, v{r}, v{t}")

    def tail_ops(o):
        a0, a1 = V_A0, V_A1
        for r in (S1, S2, S3): xhalf(o, r, a0)
        o(f"v_mul_f32 v{S1}, s58, v{S1}"); o(f"v_mul_f32 v{S2}, s58, v{S2}")
        o(f"v_fma_f32 v{S2}, -v{S1}, v{S1}, v{S2}"); o(f"v_max_f32 v{S2}, 0, v{S2}")
        o(f"v_mov_b32 v{a0}, s57"); o(f"v_fma_f32 v{S2}, v{S2}, v{V_TC2}, v{a0}"); o(f"v_rsq_f32 v{S2}, v{S2}")
        o(f"v_mul_f32 v{S3}, v{S3}, v{S2}"); o(f"v_mul_f32 v{S3}, v{S3}, v{V_TC}"); o(f"v_mul_f32 v{S3}, s59, v{S3}")
        def red8(r, op):
            o(f"v_{op}_f32_dpp v{r}, v{r}, v{r} quad_perm:[1,0,3,2] row_mask:0xf bank_mask:0xf")
            o(f"v_{op}_f32_dpp v{r}, v{r}, v{r} quad_perm:[2,3,0,1] row_mask:0xf bank_mask:0xf")
            o(f"v_{op}_f32_dpp v{r}, v{r}, v{r} row_half_mirror row_mask:0xf bank_mask:0xf")
        o(f"v_mov_b32 v{a0}, v{S3}"); red8(a0, "max")
        o(f"v_sub_f32 v{S3}, v{S3}, v{a0}"); o(f"v_exp_f32 v{S3}, v{S3}")
        o(f"v_mov_b32 v{a0}, v{S3}"); red8(a0, "add")
        o(f"v_rcp_f32 v{a0}, v{a0}"); o(f"v_mul_f32 v{S3}, v{S3}, v{a0}"); o(f"v_mul_f32 v{S3}, v{S3}, v{V_TC}")
        if ro == 'mfma':
            o(f"v_cvt_pk_bf16_f32 v{a0}, v{S3}, v{S3}")
            o(f"ds_write_b16 v{V_AW}, v{a0} offset:128", memw=["M_a"])
            o(f"ds_read_b64 v[{a0}:{a1}], v{V_AR} offset:128", memr=["M_a"])
            for i in range(4):
                o(f"v_mul_f32 v{V_P+i}, v{V_P+i}, v{S3}"); red8(V_P + i, "add")
            o(f"v_cvt_pk_bf16_f32 v{S1}, v{V_P}, v{V_P+1}"); o(f"v_cvt_pk_bf16_f32 v{S2}, v{V_P+2}, v{V_P+3}")
            BO = WCR; AO = WCR + 8
            for a in range(4):
                m = RM[a]
                o(f"v_cndmask_b32_e64 v{BO+2*a}, 0, v{S1}, s[{m}:{m+1}]"); o(f"v_cndmask_b32_e64 v{BO+2*a+1}, 0, v{S2}, s[{m}:{m+1}]")
                o(f"v_cndmask_b32_e64 v{AO+2*a}, 0, v{a0}, s[{m}:{m+1}]"); o(f"v_cndmask_b32_e64 v{AO+2*a+1}, 0, v{a1}, s[{m}:{m+1}]")
            for T in range(4):
                D = RR
                for s in range(2):
                    c = "0" if s == 0 else f"v[{D}:{D+15}]"
                    o(f"v_mfma_f32_32x32x16_bf16 v[{D}:{D+15}], v[{AO+4*s}:{AO+4*s+3}], v[{XT+8*T+4*s}:{XT+8*T+4*s+3}], {c}")
                for s in range(2):
                    o(f"v_mfma_f32_32x32x16_bf16 v[{D}:{D+15}], v[{BO+4*s}:{BO+4*s+3}], v[{VOP+8*T+4*s}:{VOP+8*T+4*s+3}], v[{D}:{D+15}]")
                for a in range(2):
                    t = V_P + 2 * (T & 1) + a
                    o(f"v_add_f32 v{t}, v{D+4*a}, v{D+4*a+8}")
                    o(f"v_cvt_pk_bf16_f32 v{t}, v{t}, v{t}")
                    o(f"buffer_store_short v{t}, v{V_OT}, s[24:27], s42 offen offset:{a*256 + T*64}{ost}", memw=["M_vm"])
        else:
            o(f"v_cvt_pk_bf16_f32 v{a0}, v{S3}, v{S3}")
            o(f"ds_write_b16 v{V_AW2}, v{a0} offset:192", memw=["M_a"])
            for i in range(4):
                o(f"v_mul_f32 v{V_P+i}, v{V_P+i}, v{S3}"); red8(V_P + i, "add")
            o(f"v_cvt_pk_bf16_f32 v{a0}, v{V_P}, v{V_P+1}"); o(f"v_cvt_pk_bf16_f32 v{a1}, v{V_P+2}, v{V_P+3}")
            o(f"v_lshl_add_u32 v{S1}, v{V_DO}, 2, v{V_AR2}")
            o(f"ds_write_b64 v{S1}, v[{a0}:{a1}] offset:128", memw=["M_b"])
            BP = WCR; AP = WCR + 8
            o(f"ds_read_b128 v[{BP}:{BP+3}], v{V_AR2} offset:128", memr=["M_b"]); o(f"ds_read_b128 v[{BP+4}:{BP+7}], v{V_AR2} offset:144", memr=["M_b"])
            o(f"ds_read_b128 v[{AP}:{AP+3}], v{V_AR2} offset:192", memr=["M_a"]); o(f"ds_read_b128 v[{AP+4}:{AP+7}], v{V_AR2} offset:208", memr=["M_a"])
            for T in range(4):
                for a in range(4):
                    r = RR + 4 * T + a; xt = XT + (T * 4 + a) * 2
                    if pa:
                        o(f"v_dot2_f32_bf16 v{r}, v{xt}, v{AP+2*a}, 0")
                    else:
                        o(f"v_mov_b32 v{r}, 0")
                        o(f"v_dot2c_f32_bf16 v{r}, v{xt}, v{AP+2*a}")
                    o(f"v_dot2c_f32_bf16 v{r}, v{xt+1}, v{AP+2*a+1}")
                    o(f"v_dot2c_f32_bf16 v{r}, v{VOP+8*T+2*a}, v{BP+2*a}")
                    o(f"v_dot2c_f32_bf16 v{r}, v{VOP+8*T+2*a+1}, v{BP+2*a+1}")
            for T in range(4):
                for a in range(2):
                    r0 = RR + 4 * T + a; r1 = r0 + 2
                    o(f"v_permlane32_swap_b32 v{r0}, v{r1}")
                    o(f"v_add_f32 v{r0}, v{r0}, v{r1}")
                    o(f"v_cvt_pk_bf16_f32 v{r0}, v{r0}, v{r0}")
                    o(f"buffer_store_short v{r0}, v{V_OT}, s[24:27], s42 offen offset:{a*256 + T*64}{ost}", memw=["M_vm"])

    def head_ops(o):
        for kk in range(8):
            if pa:
                o(f"ds_read_b128 v[{X+4*kk}:{X+4*kk+3}], v{72+kk}")
                continue
            t = V_T0 if kk & 1 else V_T1
            o(f"v_xor_b32 v{t}, {(2*kk) << 4}, v{V_XB}")
            o(f"ds_read_b128 v[{X+4*kk}:{X+4*kk+3}], v{t}")
        l0, l1 = V_RHO, V_D
        o(f"v_add_f32 v{V_ST}, v{V_ST}, v{V_ST+2}"); o(f"v_add_f32 v{V_ST+1}, v{V_ST+1}, v{V_ST+3}")
        o(f"v_mul_f32 v{V_ST}, s58, v{V_ST}"); o(f"v_mul_f32 v{V_ST+1}, s58, v{V_ST+1}")
        o(f"v_fma_f32 v{V_ST+1}, -v{V_ST}, v{V_ST}, v{V_ST+1}"); o(f"v_max_f32 v{V_ST+1}, 0, v{V_ST+1}")
        o(f"v_lshlrev_b32 v{V_D}, 16, v{V_DN}")
        o(f"v_cndmask_b32_e64 v{V_D}, v{V_D}, 1.0, s[54:55]")
        o(f"v_cmp_eq_f32_e64 s[62:63], 0, v{V_D}")
        o(f"v_cndmask_b32_e64 v{V_D}, v{V_D}, 1.0, s[62:63]")
        o(f"v_rcp_f32 v{V_C}, v{V_D}"); o(f"v_mul_f32 v{V_C2}, v{V_C}, v{V_C}")
        o(f"v_mov_b32 v{V_ST}, s57"); o(f"v_fma_f32 v{V_ST+1}, v{V_ST+1}, v{V_C2}, v{V_ST}")
        o(f"v_rsq_f32 v{V_ST+1}, v{V_ST+1}"); o(f"v_mul_f32 v{V_RHO}, v{V_ST+1}, v{V_C}")
        o(f"ds_write_b32 v{V_RW}, v{V_RHO}", memw=["M_rho"])
        o(f"ds_read_b128 v[{V_RL}:{V_RL+3}], v{V_RR}", memr=["M_rho"])
        wb = [0]
        def wload(off):
            if wreg:
                i = off // 1024
                return f"a[{4*i}:{4*i+3}]"
            b = WB + 4 * (wb[0] % nwb); wb[0] += 1
            o(f"ds_read_b128 v[{b}:{b+3}], v{V_WA} offset:{off}")
            return f"v[{b}:{b+3}]"
        for T in range(4):
            D = DA[T & 1]
            for kk in range(8):
                b = wload(L_WM + (T * 8 + kk) * 1024)
                c = "0" if kk == 0 else f"v[{D}:{D+15}]"
                o(f"v_mfma_f32_32x32x16_bf16 v[{D}:{D+15}], {b}, v[{X+4*kk}:{X+4*kk+3}], {c}")
            for j in range(8):
                o(f"v_cvt_pk_bf16_f32 v{UOP+j}, v{D+2*j}, v{D+2*j+1}")
            for half in range(2):
                c = "0" if (T == 0 and half == 0) else f"v[{S}:{S+15}]"
                xa = X + 4 * (2 * T + half)
                o(f"v_mfma_f32_32x32x16_bf16 v[{S}:{S+15}], v[{xa}:{xa+3}], v[{UOP+4*half}:{UOP+4*half+3}], {c}")
        for T in range(4):
            for a in range(4):
                r = XT + (T * 4 + a) * 2
                o(f"ds_read_b64_tr_b16 v[{r}:{r+1}], v{V_TR + (T ^ (2*(a&1)))} offset:{a*256}")
        rd = [f"v{X+4*kk}" for kk in range(8)] + [f"v{XT+2*q}" for q in range(16)]
        o(f"s_add_u32 s36, s36, {NWV}"); o("s_min_u32 s38, s36, s61")
        first = [True]
        def emit(t, memr=(), memw=()):
            if "lds" in t and t.startswith("buffer_load") and first[0]:
                first[0] = False
                o(t, memr=rd, memw=memw)
            else:
                o(t, memr=[], memw=memw)
        dma_ops(emit, 38)
        P = V_P
        for i in range(4):
            o(f"v_cndmask_b32_e64 v{P+i}, v{S+i}, v{S+4+i}, s[46:47]")
            o(f"v_cndmask_b32_e64 v{P+i}, v{P+i}, v{S+8+i}, s[48:49]")
            o(f"v_cndmask_b32_e64 v{P+i}, v{P+i}, v{S+12+i}, s[50:51]")
            o(f"v_mul_f32 v{P+i}, v{P+i}, v{V_RL+i}"); o(f"v_mul_f32 v{P+i}, v{P+i}, v{V_RHO}")
        m0, m1 = V_L0, V_T0
        o(f"v_max_f32 v{m0}, v{P}, v{P+1}"); o(f"v_max3_f32 v{m0}, v{m0}, v{P+2}, v{P+3}")
        xhalf(o, m0, m1, "max")
        for i in range(4):
            o(f"v_sub_f32 v{P+i}, v{P+i}, v{m0}"); o(f"v_exp_f32 v{P+i}, v{P+i}")
        o(f"v_add_f32 v{m0}, v{P}, v{P+1}"); o(f"v_add_f32 v{m1}, v{P+2}, v{P+3}"); o(f"v_add_f32 v{m0}, v{m0}, v{m1}")
        xhalf(o, m0, m1)
        o(f"v_rcp_f32 v{m0}, v{m0}"); o(f"v_mul_f32 v{m0}, v{m0}, v{V_D}")
        for i in range(4):
            o(f"v_mul_f32 v{P+i}, v{P+i}, v{V_RL+i}"); o(f"v_mul_f32 v{P+i}, v{P+i}, v{m0}")
        o(f"v_cvt_pk_bf16_f32 v{m0}, v{P}, v{P+1}"); o(f"v_cvt_pk_bf16_f32 v{m1}, v{P+2}, v{P+3}")
        for a, m in enumerate((52, 46, 48, 50)):
            o(f"v_cndmask_b32_e64 v{POP+2*a}, 0, v{m0}, s[{m}:{m+1}]")
            o(f"v_cndmask_b32_e64 v{POP+2*a+1}, 0, v{m1}, s[{m}:{m+1}]")
        PK3 = 20
        if pk:
            assert pa
            for r in (80, 81, 82, 83, PK3, PK3 + 1): o(f"v_mov_b32 v{r}, 0")
        else:
            o(f"v_mov_b32 v{S1}, 0"); o(f"v_mov_b32 v{S2}, 0"); o(f"v_mov_b32 v{S3}, 0")
        def gemm2(T):
            D = DA[T & 1]
            for kk in range(8):
                b = wload(L_WV + (T * 8 + kk) * 1024)
                c = "0" if kk == 0 else f"v[{D}:{D+15}]"
                dep = [f"M_o{T-1}"] if (pace and kk == 0 and T >= 1) else []
                o(f"v_mfma_f32_32x32x16_bf16 v[{D}:{D+15}], v[{X+4*kk}:{X+4*kk+3}], {b}, {c}", memr=dep)
            for j in range(8):
                o(f"v_cvt_pk_bf16_f32 v{VOP+8*T+j}, v{D+2*j}, v{D+2*j+1}")
        def otile(T):
            D = RR if (T & 1) else S
            for half in range(2):
                for j in range(4):
                    x = X + 4 * (2 * T + half) + j
                    o(f"v_lshlrev_b32 v{D+8*half+2*j}, 16, v{x}")
                    o(f"v_and_b32 v{D+8*half+2*j+1}, s60, v{x}")
            for half in range(2):
                o(f"v_mfma_f32_32x32x16_bf16 v[{D}:{D+15}], v[{VOP+8*T+4*half}:{VOP+8*T+4*half+3}], v[{POP+4*half}:{POP+4*half+3}], v[{D}:{D+15}]", memw=([f"M_o{T}"] if half == 1 else []))
            for q in range(4):
                o(f"ds_read_b128 v[{WCR+4*q}:{WCR+4*q+3}], v{V_WC} offset:{T*64 + q*16}")
            if pk:
                for r in range(0, 16, 2):
                    o(f"v_pk_add_f32 v[80:81], v[80:81], v[{D+r}:{D+r+1}]")
                    o(f"v_pk_fma_f32 v[82:83], v[{D+r}:{D+r+1}], v[{D+r}:{D+r+1}], v[82:83]")
                    o(f"v_pk_fma_f32 v[64+16:64+17], v[{D+r}:{D+r+1}], v[{WCR+r}:{WCR+r+1}], v[64+16:64+17]".replace("v[64+16:64+17]", "v[0:1]") if False else f"v_pk_fma_f32 v[{PK3}:{PK3+1}], v[{D+r}:{D+r+1}], v[{WCR+r}:{WCR+r+1}], v[{PK3}:{PK3+1}]")
            else:
              for r in range(16):
                o(f"v_add_f32 v{S1}, v{S1}, v{D+r}")
                o(f"v_fmac_f32 v{S2}, v{D+r}, v{D+r}")
                o(f"v_fmac_f32 v{S3}, v{D+r}, v{WCR+r}")
        if pace:
            gemm2(0); otile(0); gemm2(1); otile(1); gemm2(2); otile(2); gemm2(3); otile(3)
        else:
            gemm2(0); gemm2(1); otile(0); gemm2(2); otile(1); gemm2(3); otile(2); otile(3)
        if pk:
            o(f"v_add_f32 v{S1}, v80, v81"); o(f"v_add_f32 v{S2}, v82, v83"); o(f"v_add_f32 v{S3}, v{PK3}, v{PK3+1}")
        o(f"v_mov_b32 v{V_TC}, v{V_C}"); o(f"v_mov_b32 v{V_TC2}, v{V_C2}")
        o(f"v_mov_b32 v{V_OT}, v{V_OUT}")
        o(f"s_sub_u32 s42, s36, {NWV}"); o("s_lshl_b32 s42, s42, 10")

    def region(fns):
        ops = []
        def o(t, memr=(), memw=()): ops.append(Op(t, memr, memw))
        for f in fns: f(o)
        seq = schedule(ops, reorder)
        lines, pd, pv = finalize(seq)
        idx = [i for i, q in enumerate(seq) if q.kind == "vmem"]
        loads = [i for i in idx if seq[i].name.startswith("buffer_load")]
        after = len([i for i in idx if loads and i > loads[-1]])
        return lines, after

    body, after = region([tail_ops, head_ops])
    A.op("s_mov_b32 s42, 0")
    A.label("tf_loop")
    if prof == 1: A.op("s_memrealtime s[72:73]")
    A.op(f"s_waitcnt vmcnt({after + (5 if prof == 1 else (10 if prof == 2 else 0))})")
    if prof == 1: A.op("s_memrealtime s[74:75]")
    if prof == 2:
        step = len(body) // 9
        for i, l in enumerate(body):
            if i % step == 0 and i // step < 10: A.op(f"s_memtime s[{70+2*(i//step)}:{71+2*(i//step)}]")
            A(l)
        A.op("s_waitcnt lgkmcnt(0)")
        A.op("s_add_u32 s86, s84, s85") if False else None
        A.op("s_lshl_b32 s32, s2, 4"); A.op("s_add_u32 s32, s32, s6"); A.op("s_lshl_b32 s32, s32, 10")
        A.op("s_sub_u32 s33, s36, s37"); A.op(f"s_lshr_b32 s33, s33, {2 if wreg else 3}"); A.op("s_lshl_b32 s33, s33, 7"); A.op("s_add_u32 s32, s32, s33")
        srd(A, 96, 4, 4 << 20, 96 << 20)
        A.op("s_mov_b64 exec, 1")
        for qi in range(10):
            A.op(f"v_mov_b32 v{V_T0}, s{70+2*qi}"); A.op(f"v_mov_b32 v{V_T1}, s{71+2*qi}"); A.op(f"v_mov_b32 v{V_L0}, {8*qi}")
            A.op(f"buffer_store_dwordx2 v[{V_T0}:{V_T1}], v{V_L0}, s[96:99], s32 offen"); A.op("s_nop 1")
        A.op("s_mov_b64 exec, -1")
    else:
        for l in body: A(l)
    if prof == 1:
        A.op("s_memrealtime s[78:79]")
        A.op("s_waitcnt lgkmcnt(0)")
        A.op("s_add_u32 s86, s84, s85"); A.op("s_add_u32 s85, s85, 64")
        A.op("s_mov_b64 exec, 1")
        for qi, sr in enumerate((70, 72, 74, 74, 78)):
            A.op(f"v_mov_b32 v{V_T0}, s{sr}"); A.op(f"v_mov_b32 v{V_T1}, s{sr+1}"); A.op(f"v_mov_b32 v{V_L0}, {8*qi}")
            A.op(f"buffer_store_dwordx2 v[{V_T0}:{V_T1}], v{V_L0}, s[80:83], s86 offen"); A.op("s_nop 1")
        A.op("s_mov_b64 exec, -1")
    A.op("s_waitcnt lgkmcnt(0)")
    A.op("s_cmp_le_u32 s36, s61"); A.op("s_cbranch_scc1 tf_loop")
    A.op("s_nop 7"); A.op("s_nop 7")
    ep, _ = region([tail_ops])
    for l in ep: A(l)
    A.label("tf_done")
    A.op("s_endpgm")
    return dict(name=name, grid=NWG, block=64 * NWV, lds=L_END, vgpr=512 if wreg else 256, accum=256, sgpr=100)
```

```python
N = 25000
E = 400000
D = 128
NR = 125
RN = 200
TAB = N * 256
HALF = N * 128
OFF_G = 0
OFF_ENT = 8 * TAB
NCH = 250
CHE = E // NCH
OFF_OFFS = OFF_ENT + E * 4
OFF_CNT = OFF_OFFS + NCH * 512
CNT_BYTES = 32768
OFF_WM = OFF_CNT + CNT_BYTES
OFF_WV = OFF_WM + 32768
OFF_WC = OFF_WV + 32768
OFF_OVF = OFF_WC + 512
OFF_ST = OFF_OVF + 2 * E * 2
ST_TOK = N * 16
OFF_CELL = OFF_ST + 8 * ST_TOK
CELL_BYTES = NR * NR * 256
OFF_END = OFF_CELL + CELL_BYTES
WS_BYTES = 268435456
assert OFF_CNT % 128 == 0 and OFF_WM % 128 == 0 and OFF_OVF % 16 == 0
CAP = 40
NSHARD = 4

class Asm:
    def __init__(self):
        self.lines = []
        self.uid = 0
    def __call__(self, s=""):
        for l in s.split("\n"):
            self.lines.append(l)
    def op(self, s):
        self.lines.append("    " + s)
    def ops(self, *ss):
        for s in ss:
            self.op(s)
    def label(self, s):
        self.lines.append(s + ":")
    def new(self, p="L"):
        self.uid += 1
        return f"{p}_{self.uid}"
    def cmt(self, s):
        self.lines.append("    ; " + s)
    def text(self):
        return "\n".join(self.lines) + "\n"

def kernel_begin(A, name):
    A(f".globl {name}")
    A(".p2align 8")
    A(f".type {name},@function")
    A(f"{name}:")

def kernel_desc(A, name, vgpr, sgpr, accum=None):
    if accum is None:
        accum = (vgpr + 3) // 4 * 4
    A(".p2align 6")
    A(f".amdhsa_kernel {name}")
    A(f"  .amdhsa_next_free_vgpr {vgpr}")
    A(f"  .amdhsa_next_free_sgpr {sgpr}")
    A(f"  .amdhsa_accum_offset {accum}")
    A("  .amdhsa_group_segment_fixed_size 0")
    A("  .amdhsa_kernarg_size 96")
    A("  .amdhsa_user_sgpr_count 2")
    A("  .amdhsa_user_sgpr_kernarg_segment_ptr 1")
    A("  .amdhsa_system_sgpr_workgroup_id_x 1")
    A("  .amdhsa_float_denorm_mode_32 3")
    A("  .amdhsa_float_denorm_mode_16_64 3")
    A(".end_amdhsa_kernel")

def srd(A, s, base, size, off=None):
    if off:
        A.op(f"s_add_u32 s{s}, s{base}, {off}")
        A.op(f"s_addc_u32 s{s+1}, s{base+1}, 0")
    else:
        A.op(f"s_mov_b32 s{s}, s{base}")
        A.op(f"s_mov_b32 s{s+1}, s{base+1}")
    A.op(f"s_mov_b32 s{s+2}, {size}")
    A.op(f"s_mov_b32 s{s+3}, 0x20000")

def wave_scan_incl(A, v, tmp=None):
    for sh in (1, 2, 4, 8):
        A.op("s_nop 1")
        A.op(f"v_add_u32_dpp v{v}, v{v}, v{v} row_shr:{sh} row_mask:0xf bank_mask:0xf")
    A.op("s_nop 1")
    A.op(f"v_add_u32_dpp v{v}, v{v}, v{v} row_bcast:15 row_mask:0xa bank_mask:0xf")
    A.op("s_nop 1")
    A.op(f"v_add_u32_dpp v{v}, v{v}, v{v} row_bcast:31 row_mask:0xc bank_mask:0xf")
    A.op("s_nop 1")
```

```python
from common import *
import prep

L_CNT = 0
NB = 8
BSH = 11 if NB == 16 else 12
L_HIST = 200 * NB * 4
L_BINS = L_HIST + 256
L_SLOT = L_BINS + 256
L_NODE = L_SLOT + 832
L_DEG = L_NODE + 832
L_NDEG = L_DEG + 832
L_OVFP = L_NDEG + 832
L_DSQ = L_OVFP + 832
L_MISC = L_DSQ + 832
L_IMG = L_MISC + 64
IMG_STRIDE = CAP * 2
L_END = L_IMG + 208 * IMG_STRIDE
assert L_IMG % 16 == 0

def gen_hops(A, nh=7, depthfn=lambda W: 4, maxdepth=7, prio=1, sleep=1, prof=0, ld=' sc1', bar='flag', nshard=NSHARD, perm=(5,0,1,2,9,6,4,3,10,11,8,7,12), ndot=4, pf=0, pffrac=0.8, rtt=0, pw=0, pwprio=3, pwsleep=0, cells=False, stst='', stag=0, qbar=0, samesrc=0):
    name = "hops_kernel"
    kernel_begin(A, name)
    NW = 13
    NWB = NW + (1 if (rtt or pw) else 0)
    maxpairs = CAP // 2
    A.op("s_cmp_ge_u32 s2, 252"); A.op("s_cbranch_scc1 hops_done")
    A.op("s_load_dwordx2 s[4:5], s[0:1], 88")
    A.op("s_cmp_ge_u32 s2, 250"); A.op("s_cbranch_scc1 hops_wprep")
    A.op("s_load_dwordx2 s[44:45], s[0:1], 24")
    if prof: A.op("s_memrealtime s[64:65]")
    A.op("s_and_b32 s7, s2, 1"); A.op("s_lshr_b32 s8, s2, 1")
    A.op("v_mul_u32_u24 v4, 21846, v0"); A.op("v_lshrrev_b32 v4, 16, v4")
    A.op("v_mul_u32_u24 v5, 3, v4"); A.op("v_sub_u32 v5, v0, v5")
    A.op("v_lshlrev_b32 v6, 9, v4")
    A.op("s_lshl_b32 s9, s8, 2")
    A.op(f"s_mul_i32 s10, s8, {RN*2}")
    A.op("v_lshlrev_b32 v7, 1, v0")
    A.op("s_waitcnt lgkmcnt(0)")
    srd(A, 12, 4, NCH * 512, OFF_OFFS)
    A.op("buffer_load_dwordx2 v[8:9], v6, s[12:15], s9 offen")
    srd(A, 60, 44, N * 2)
    A.op("buffer_load_ushort v43, v7, s[60:63], s10 offen")
    srd(A, 16, 4, E * 4, OFF_ENT)
    A.op("v_lshrrev_b32 v1, 6, v0"); A.op("s_nop 0")
    A.op("v_readfirstlane_b32 s6, v1")
    A.op("v_lshlrev_b32 v1, 2, v0")
    A.op("v_mov_b32 v2, 0"); A.op("v_mov_b32 v3, -1")
    for i in range(-(-L_BINS // 3328)):
        A.op(f"ds_write_b32 v1, v2 offset:{i*3328}")
    nimg = 208 * IMG_STRIDE // 4
    for i in range(nimg // 832):
        A.op(f"ds_write_b32 v1, v3 offset:{L_IMG + i*3328}")
    assert nimg % 832 == 0
    A.op("v_cmp_gt_u32 vcc, 208, v0"); A.op("s_and_saveexec_b64 s[20:21], vcc")
    A.op(f"ds_write_b32 v1, v3 offset:{L_NODE}")
    A.op(f"ds_write_b32 v1, v2 offset:{L_DEG}")
    A.op("s_mov_b64 exec, s[20:21]")
    A.op("v_cmp_gt_u32 vcc, 16, v0"); A.op("s_and_saveexec_b64 s[20:21], vcc")
    A.op(f"ds_write_b32 v1, v2 offset:{L_MISC}")
    A.op("s_mov_b64 exec, s[20:21]")
    A.op("s_waitcnt lgkmcnt(0)")
    A.op("s_waitcnt vmcnt(1)")
    A.op("v_sub_u32 v10, v9, v8")
    A.op(f"v_mul_u32_u24 v11, {CHE}, v4"); A.op("v_add_u32 v11, v11, v8")
    A.op("v_lshl_add_u32 v11, v5, 2, v11"); A.op("v_lshlrev_b32 v11, 2, v11")
    A.op("v_lshlrev_b32 v12, 2, v5")
    for r in range(3):
        A.op(f"buffer_load_dwordx4 v[{44+4*r}:{44+4*r+3}], v11, s[16:19], 0 offen offset:{48*r}")
    A.op("s_barrier")
    A.op("v_cmp_eq_u32 vcc, 0, v5"); A.op("s_and_saveexec_b64 s[20:21], vcc")
    A.op(f"v_mov_b32 v13, {L_MISC}"); A.op("ds_add_u32 v13, v8")
    A.op("s_mov_b64 exec, s[20:21]")
    NRND = 3
    RS = 12
    ER = 44
    def keys(e, k):
        A.op(f"v_bfe_u32 v24, v{e}, 16, 8"); A.op(f"v_bfe_u32 v{k}, v{e}, {BSH}, {16-BSH}")
        A.op(f"v_lshl_add_u32 v{k}, v24, {NB.bit_length()-1}, v{k}"); A.op(f"v_lshlrev_b32 v{k}, 2, v{k}")
    def count4(e0, pos):
        for i in range(4):
            keys(e0 + i, 25 + i)
        for i in range(4):
            A.op(f"v_add_u32 v24, {i}, v{pos}"); A.op("v_cmp_lt_u32 vcc, v24, v10"); A.op("s_and_b64 exec, s[22:23], vcc")
            A.op(f"ds_add_u32 v{25+i}, v30 offset:{L_CNT}")
        A.op("s_mov_b64 exec, s[22:23]")
    def fill4(e0, pos):
        for i in range(4):
            keys(e0 + i, 25 + i)
            A.op(f"v_bfe_u32 v{20+i}, v{e0+i}, 16, 8")
        for i in range(4):
            A.op(f"v_add_u32 v24, {i}, v{pos}"); A.op(f"v_cmp_lt_u32 s[{24+2*i}:{25+2*i}], v24, v10")
        for i in range(4):
            A.op(f"s_and_b64 exec, s[22:23], s[{24+2*i}:{25+2*i}]")
            A.op(f"ds_add_rtn_u32 v{32+i}, v{25+i}, v30 offset:{L_CNT}")
            A.op(f"v_lshlrev_b32 v24, 2, v{20+i}")
            A.op(f"ds_read_b32 v{36+i}, v24 offset:{L_SLOT}")
        A.op("s_mov_b64 exec, s[22:23]")
        A.op("s_waitcnt lgkmcnt(0)")
        for i in range(4):
            A.op("s_mov_b64 exec, s[22:23]")
            A.op(f"v_cmp_gt_u32 vcc, {CAP}, v{32+i}")
            A.op(f"s_and_b64 s[32:33], s[{24+2*i}:{25+2*i}], vcc")
            A.op(f"s_and_b64 exec, s[22:23], s[32:33]")
            A.op(f"v_mul_u32_u24 v24, {IMG_STRIDE}, v{36+i}")
            A.op(f"v_lshl_add_u32 v24, v{32+i}, 1, v24")
            A.op(f"ds_write_b16 v24, v{e0+i} offset:{L_IMG}")
            A.op(f"s_andn2_b64 s[32:33], s[{24+2*i}:{25+2*i}], vcc")
            A.op(f"s_and_b64 exec, s[22:23], s[32:33]")
            lo = A.new("no")
            A.op(f"s_cbranch_execz {lo}")
            A.op(f"v_lshlrev_b32 v24, 2, v{20+i}")
            A.op(f"ds_read_b32 v24, v24 offset:{L_OVFP}")
            A.op("s_waitcnt lgkmcnt(0)")
            A.op(f"v_add_u32 v24, v24, v{32+i}")
            A.op(f"v_subrev_u32 v24, {CAP}, v24")
            A.op(f"v_lshlrev_b32 v24, 1, v24")
            A.op(f"buffer_store_short v{e0+i}, v24, s[48:51], 0 offen")
            A.label(lo)
        A.op("s_mov_b64 exec, s[22:23]")
    def fillA(e0, pos, pr, sr):
        for i in range(4):
            keys(e0 + i, 25 + i)
            A.op(f"v_bfe_u32 v{20+i}, v{e0+i}, 16, 8"); A.op(f"v_lshlrev_b32 v{20+i}, 2, v{20+i}")
        for i in range(4):
            A.op(f"v_add_u32 v24, {i}, v{pos}"); A.op("v_cmp_lt_u32 vcc, v24, v10"); A.op("s_and_b64 exec, s[22:23], vcc")
            A.op(f"ds_add_rtn_u32 v{pr+i}, v{25+i}, v30 offset:{L_CNT}")
            A.op(f"ds_read_b32 v{sr+i}, v{20+i} offset:{L_SLOT}")
        A.op("s_mov_b64 exec, s[22:23]")
    def fillB(e0, pos, pr, sr):
        for i in range(4):
            A.op("s_mov_b64 exec, s[22:23]")
            A.op(f"v_add_u32 v24, {i}, v{pos}"); A.op(f"v_cmp_lt_u32 s[24:25], v24, v10")
            A.op(f"v_cmp_gt_u32 vcc, {CAP}, v{pr+i}")
            A.op(f"v_mul_u32_u24 v24, {IMG_STRIDE}, v{sr+i}")
            A.op(f"v_lshl_add_u32 v24, v{pr+i}, 1, v24")
            A.op(f"s_and_b64 exec, s[24:25], vcc")
            A.op(f"ds_write_b16 v24, v{e0+i} offset:{L_IMG}")
            A.op(f"s_andn2_b64 exec, s[24:25], vcc")
            lo = A.new("no")
            A.op(f"s_cbranch_execz {lo}")
            A.op(f"v_bfe_u32 v24, v{e0+i}, 16, 8"); A.op(f"v_lshlrev_b32 v24, 2, v24")
            A.op(f"ds_read_b32 v24, v24 offset:{L_OVFP}")
            A.op("s_waitcnt lgkmcnt(0)")
            A.op(f"v_add_u32 v24, v24, v{pr+i}")
            A.op(f"v_subrev_u32 v24, {CAP}, v24")
            A.op(f"v_lshlrev_b32 v24, 1, v24")
            A.op(f"buffer_store_short v{e0+i}, v24, s[48:51], 0 offen")
            A.label(lo)
        A.op("s_mov_b64 exec, s[22:23]")
    def entry_pass(fill):
        f4 = fill4 if fill else count4
        A.op("v_mov_b32 v30, 1"); A.op("s_mov_b64 s[22:23], exec")
        done = A.new("epd")
        if not fill:
            for r in range(NRND):
                A.op(f"v_add_u32 v15, {RS*r}, v12")
                A.op("v_cmp_lt_u32 vcc, v15, v10"); A.op(f"s_cbranch_vccz {done}")
                f4(ER + 4 * r, 15)
        else:
            la = A.new("fa"); lb = A.new("fb")
            for r in range(NRND):
                A.op(f"v_add_u32 v15, {RS*r}, v12")
                A.op("v_cmp_lt_u32 vcc, v15, v10"); A.op(f"s_cbranch_vccz {la}")
                fillA(ER + 4 * r, 15, 60 + 4 * r, 76 + 4 * r)
                A.op("s_waitcnt lgkmcnt(6)")
            A.label(la)
            A.op("s_waitcnt lgkmcnt(0)")
            for r in range(NRND):
                A.op(f"v_add_u32 v15, {RS*r}, v12")
                A.op("v_cmp_lt_u32 vcc, v15, v10"); A.op(f"s_cbranch_vccz {done}")
                fillB(ER + 4 * r, 15, 60 + 4 * r, 76 + 4 * r)
        lp = A.new("ep")
        A.op(f"v_add_u32 v14, {4*RS*NRND}, v11"); A.op(f"v_add_u32 v15, {RS*NRND}, v12")
        A.label(lp)
        A.op("v_cmp_lt_u32 vcc, v15, v10"); A.op(f"s_cbranch_vccz {done}")
        A.op("buffer_load_dwordx4 v[16:19], v14, s[16:19], 0 offen")
        A.op("s_waitcnt vmcnt(0)")
        f4(16, 15)
        A.op(f"v_add_u32 v14, {4*RS}, v14"); A.op(f"v_add_u32 v15, {RS}, v15")
        A.op(f"s_branch {lp}")
        A.label(done)
    A.op("s_waitcnt vmcnt(0)")
    if prof: A.op("s_memrealtime s[66:67]")
    entry_pass(False)
    A.op("s_waitcnt lgkmcnt(0)")
    A.op("s_barrier")
    if prof: A.op("s_memrealtime s[68:69]")
    A.op("v_cmp_gt_u32 vcc, 200, v0"); A.op("s_and_saveexec_b64 s[20:21], vcc")
    l1 = A.new("np"); A.op(f"s_cbranch_execz {l1}")
    A.op(f"v_lshlrev_b32 v1, {(NB*4).bit_length()-1}, v0")
    CB = 60
    for q in range(NB // 4):
        A.op(f"ds_read_b128 v[{CB+4*q}:{CB+4*q+3}], v1 offset:{L_CNT+16*q}")
    A.op("s_waitcnt lgkmcnt(0)")
    A.op("v_mov_b32 v24, 0")
    for i in range(NB):
        A.op(f"v_mov_b32 v25, v{CB+i}"); A.op(f"v_mov_b32 v{CB+i}, v24"); A.op("v_add_u32 v24, v24, v25")
    for q in range(NB // 4):
        A.op(f"ds_write_b128 v1, v[{CB+4*q}:{CB+4*q+3}] offset:{L_CNT+16*q}")
    A.op("v_mov_b32 v40, v24")
    A.op(f"v_min_u32 v41, {CAP}, v24"); A.op("v_lshlrev_b32 v41, 2, v41")
    A.op("v_mov_b32 v30, 1")
    A.op(f"ds_add_rtn_u32 v42, v41, v30 offset:{L_HIST}")
    A.op("v_lshlrev_b32 v1, 2, v0")
    A.op(f"ds_write_b32 v1, v40 offset:{L_NDEG}")
    A.op("v_lshlrev_b32 v43, 16, v43"); A.op("v_mul_f32 v43, v43, v43")
    A.op(f"ds_write_b32 v1, v43 offset:{L_DSQ}")
    A.op(f"v_cmp_lt_u32 vcc, {CAP}, v40"); A.op("s_and_b64 exec, exec, vcc")
    A.op(f"v_mov_b32 v13, {L_MISC+4}"); A.op("ds_write_b32 v13, v30")
    A.label(l1)
    A.op("s_mov_b64 exec, s[20:21]")
    A.op("s_waitcnt lgkmcnt(0)")
    A.op("s_barrier")
    A.op("s_cmp_eq_u32 s6, 0"); l2 = A.new("w0"); A.op(f"s_cbranch_scc0 {l2}")
    A.op("v_lshlrev_b32 v1, 2, v0")
    A.op(f"ds_read_b32 v16, v1 offset:{L_HIST}")
    A.op(f"v_mov_b32 v13, {L_MISC}"); A.op("ds_read_b64 v[18:19], v13")
    A.op("s_waitcnt lgkmcnt(0)")
    wave_scan_incl(A, 16)
    A.op("v_sub_u32 v16, 200, v16")
    A.op(f"ds_write_b32 v1, v16 offset:{L_BINS}")
    A.op("v_readfirstlane_b32 s9, v18"); A.op("v_readfirstlane_b32 s10, v19")
    A.op("s_nop 3")
    A.op("s_cmp_eq_u32 s10, 0"); A.op(f"s_cbranch_scc1 {l2}")
    A.op("s_mov_b32 s11, 0")
    lo = A.new("ov"); A.label(lo)
    A.op("s_lshl_b32 s20, s11, 2"); A.op("v_mov_b32 v1, s20")
    A.op(f"ds_read_b32 v16, v1 offset:{L_NDEG}")
    A.op("v_mov_b32 v17, s9"); A.op(f"ds_write_b32 v1, v17 offset:{L_OVFP}")
    A.op("s_waitcnt lgkmcnt(0)")
    A.op("v_readfirstlane_b32 s20, v16"); A.op("s_nop 3")
    A.op(f"s_max_u32 s20, s20, {CAP}"); A.op(f"s_sub_u32 s20, s20, {CAP}"); A.op("s_add_u32 s9, s9, s20")
    A.op("s_add_u32 s11, s11, 1"); A.op("s_cmp_lt_u32 s11, 200"); A.op(f"s_cbranch_scc1 {lo}")
    A.label(l2)
    A.op("s_waitcnt lgkmcnt(0)")
    A.op("s_barrier")
    A.op("v_cmp_gt_u32 vcc, 200, v0"); A.op("s_and_saveexec_b64 s[20:21], vcc")
    l3 = A.new("np"); A.op(f"s_cbranch_execz {l3}")
    A.op(f"ds_read_b32 v16, v41 offset:{L_BINS}")
    A.op("s_waitcnt lgkmcnt(0)")
    A.op("v_add_u32 v16, v16, v42")
    A.op("v_lshlrev_b32 v1, 2, v0"); A.op(f"ds_write_b32 v1, v16 offset:{L_SLOT}")
    A.op("v_lshlrev_b32 v16, 2, v16")
    A.op(f"ds_write_b32 v16, v0 offset:{L_NODE}"); A.op(f"ds_write_b32 v16, v40 offset:{L_DEG}")
    A.label(l3)
    A.op("s_mov_b64 exec, s[20:21]")
    A.op(f"s_mul_i32 s9, s7, {E*2}"); A.op(f"s_add_u32 s9, s9, {OFF_OVF}")
    A.op("s_add_u32 s48, s4, s9"); A.op("s_addc_u32 s49, s5, 0"); A.op(f"s_mov_b32 s50, {E*2}"); A.op("s_mov_b32 s51, 0x20000")
    A.op("s_waitcnt lgkmcnt(0)")
    A.op("s_barrier")
    if prof: A.op("s_memrealtime s[70:71]")
    entry_pass(True)
    A.op("s_waitcnt vmcnt(0) lgkmcnt(0)")
    A.op("s_barrier")
    if prof: A.op("s_memrealtime s[72:73]")
    if rtt:
        A.op(f"s_cmp_eq_u32 s6, {NW}"); A.op("s_cbranch_scc1 hop_rtt")
    if pw:
        A.op(f"s_cmp_eq_u32 s6, {NW}"); A.op("s_cbranch_scc1 hop_pw")
    P = [26, 26 + maxpairs]
    VA = 26 + 2 * maxpairs; VN = VA + 2; VS = VN + 2
    DATA = (VS + 2 + 3) // 4 * 4
    ACC = [10, 18]
    nv = DATA + 8 * maxdepth
    assert nv <= 128
    A.op("v_and_b32 v0, 63, v0")
    A.op("v_and_b32 v8, 7, v0"); A.op("v_lshlrev_b32 v8, 4, v8")
    A.op("v_lshrrev_b32 v5, 3, v0")
    pc = sum(p << (4 * w) for w, p in enumerate(perm))
    A.op(f"s_mov_b32 s58, {pc & 0xffffffff:#x}"); A.op(f"s_mov_b32 s59, {pc >> 32:#x}")
    A.op("s_lshl_b32 s9, s6, 2"); A.op("s_lshr_b64 s[58:59], s[58:59], s9"); A.op("s_and_b32 s56, s58, 15")
    A.op("s_lshl_b32 s9, s56, 4")
    A.op("v_add_u32 v5, s9, v5")
    A.op(f"s_mul_i32 s10, s8, {RN}")
    for i in range(2):
        A.op(f"v_add_u32 v6, {8*i}, v5")
        A.op(f"v_mul_u32_u24 v7, {IMG_STRIDE}, v6")
        A.op("v_lshlrev_b32 v6, 2, v6")
        A.op(f"ds_read_b32 v2, v6 offset:{L_NODE}"); A.op(f"ds_read_b32 v{3+i}, v6 offset:{L_DEG}")
        for p in range(maxpairs):
            A.op(f"ds_read_b32 v{P[i]+p}, v7 offset:{L_IMG + 4*p}")
            if p % 8 == 7: A.op("s_waitcnt lgkmcnt(4)")
        A.op("s_waitcnt lgkmcnt(4)")
        A.op("v_cmp_gt_u32 vcc, 200, v2")
        A.op("v_min_u32 v6, 199, v2"); A.op("v_lshlrev_b32 v6, 2, v6")
        A.op(f"ds_read_b32 v{VS+i}, v6 offset:{L_DSQ}")
        A.op("v_add_u32 v2, s10, v2")
        A.op("v_lshl_add_u32 v2, v2, 7, v8")
        A.op(f"v_cndmask_b32_e64 v{VN+i}, -1, v2, vcc")
    A.op("v_max_u32 v3, v3, v4")
    A.op("s_nop 0")
    A.op("v_readfirstlane_b32 s40, v3")
    A.op("s_nop 3")
    A.op(f"s_cmp_gt_u32 s40, {CAP}"); A.op("s_cselect_b32 s41, 1, 0")
    A.op(f"s_min_u32 s40, s40, {CAP}"); A.op("s_add_u32 s40, s40, 1"); A.op("s_lshr_b32 s40, s40, 1")
    A.op("s_waitcnt lgkmcnt(0)")
    A.op("s_mov_b32 s28, 0x3f80"); A.op("s_mov_b32 s29, 0x3f800000"); A.op("s_mov_b32 s30, 128")
    A.op(f"s_mul_i32 s19, s7, {HALF}")
    A.op("s_add_u32 s20, s4, s19"); A.op("s_addc_u32 s21, s5, 0")
    A.op(f"s_mov_b32 s22, {HALF}"); A.op("s_mov_b32 s23, 0x20000")
    A.op(f"s_add_u32 s24, s20, {TAB}"); A.op("s_addc_u32 s25, s21, 0")
    A.op(f"s_mov_b32 s26, {HALF}"); A.op("s_mov_b32 s27, 0x20000")
    cbytes = nshard * 128 if bar == 'cnt' else 128 * 128
    A.op(f"s_mul_i32 s19, s7, {cbytes}"); A.op(f"s_add_u32 s19, s19, {OFF_CNT}")
    A.op("s_add_u32 s32, s4, s19"); A.op("s_addc_u32 s33, s5, 0")
    A.op(f"s_mov_b32 s34, {cbytes}"); A.op("s_mov_b32 s35, 0x20000")
    A.op(f"s_lshl_b32 s19, s7, 3"); A.op(f"s_add_u32 s19, s19, {OFF_ST + ST_TOK}")
    A.op("s_add_u32 s76, s4, s19"); A.op("s_addc_u32 s77, s5, 0")
    A.op(f"s_mov_b32 s78, {ST_TOK - 8}"); A.op("s_mov_b32 s79, 0x20000")
    A.op("s_mov_b32 s36, 0")
    if prof:
        A.op("s_memrealtime s[74:75]")
        A.op("s_waitcnt lgkmcnt(0)")
        srd(A, 80, 4, 4 << 20, 96 << 20)
        A.op("s_lshl_b32 s84, s2, 4"); A.op("s_add_u32 s84, s84, s6"); A.op("s_lshl_b32 s84, s84, 10")
        A.op("s_mov_b64 exec, 1")
        for qi in range(6):
            A.op(f"v_mov_b32 v6, s{64+2*qi}"); A.op(f"v_mov_b32 v7, s{65+2*qi}"); A.op(f"v_mov_b32 v2, {8*qi}")
            A.op("buffer_store_dwordx2 v[6:7], v2, s[80:83], s84 offen"); A.op("s_nop 1")
        A.op("s_mov_b64 exec, -1")
    def stats():
        A.cmt("row statistics (sum, sum of squares over this half) for the transformer LayerNorm")
        for i in range(2):
            t = DATA + 8 + 2 * i
            A.op(f"v_add_f32 v{t}, v{ACC[i]}, v{ACC[i]+1}"); A.op(f"v_mul_f32 v{t+1}, v{ACC[i]}, v{ACC[i]}")
            A.op(f"v_fmac_f32 v{t+1}, v{ACC[i]+1}, v{ACC[i]+1}")
            for q in range(2, 8):
                A.op(f"v_add_f32 v{t}, v{t}, v{ACC[i]+q}"); A.op(f"v_fmac_f32 v{t+1}, v{ACC[i]+q}, v{ACC[i]+q}")
        for m in ("quad_perm:[1,0,3,2]", "quad_perm:[2,3,0,1]", "row_half_mirror"):
            for q in range(4):
                A.op(f"v_add_f32_dpp v{DATA+8+q}, v{DATA+8+q}, v{DATA+8+q} {m} row_mask:0xf bank_mask:0xf")
        A.op(f"v_lshrrev_b32 v2, 3, v{VN}"); A.op(f"v_lshrrev_b32 v3, 3, v{VN+1}")
        A.op("s_mov_b32 exec_lo, 0x01010101"); A.op("s_mov_b32 exec_hi, 0x01010101")
        A.op(f"buffer_store_dwordx2 v[{DATA+8}:{DATA+9}], v2, s[76:79], 0 offen{stst}")
        A.op(f"buffer_store_dwordx2 v[{DATA+10}:{DATA+11}], v3, s[76:79], 0 offen{stst}")
        A.op("s_mov_b64 exec, -1")
        A.op(f"s_add_u32 s76, s76, {ST_TOK}"); A.op("s_addc_u32 s77, s77, 0")
    if stag:
        A.op("s_cmp_eq_u32 s7, 0"); A.op("s_cbranch_scc1 hop_nostag")
        for i in range(stag): A.op("s_sleep 16")
        A.label("hop_nostag")
    A.label("hop_loop")
    if prof: A.op("s_memrealtime s[64:65]")
    for i in range(2):
        for q in range(8):
            A.op(f"v_mov_b32 v{ACC[i]+q}, 0")
    if pf:
        A.op("s_lshr_b32 s82, s2, 3"); A.op("s_and_b32 s82, s82, 31")
        A.op("s_lshl_b32 s83, s6, 5"); A.op("s_add_u32 s82, s82, s83"); A.op("s_lshl_b32 s82, s82, 7")
        A.op("s_add_u32 s84, s20, s82"); A.op("s_addc_u32 s85, s21, 0")
        for b in range(1, 4):
            A.op(f"s_add_u32 s{84+2*b}, s84, {19*b*53248}"); A.op(f"s_addc_u32 s{85+2*b}, s85, 0")
    def tree(lo, hi):
        if lo == hi:
            A.op(f"s_branch hop_w{lo}"); return
        mid = (lo + hi + 1) // 2
        l = A.new("bt")
        A.op(f"s_cmp_ge_u32 s40, {mid}"); A.op(f"s_cbranch_scc1 {l}")
        tree(lo, mid - 1)
        A.label(l)
        tree(mid, hi)
    tree(0, maxpairs)
    A.label("hop_w0")
    for i in range(max(0, qbar - 1)): A.op("s_barrier")
    A.op("s_branch hop_fin")
    for n in range(1, maxpairs + 1):
        A.label(f"hop_w{n}")
        steps = 2 * n
        depth = max(1, min(maxdepth, depthfn(steps), steps))
        state = {"p": None}
        def prefetch(j):
            if not pf: return
            ns = max(1, int(steps * pffrac))
            lo = min(60, (60 * j + ns - 1) // ns); hi = min(60, (60 * (j + 1) + ns - 1) // ns)
            for n_ in range(lo, hi):
                b = 84 + 2 * (n_ // 19)
                for sub in range(pf):
                    A.op(f"s_load_dword s{92 + (n_ & 1)}, s[{b}:{b+1}], {(n_ % 19) * 53248 + 64 * sub}")
        nbar = [0]
        def issue(j):
            if qbar:
                qd = min(qbar - 1, (qbar * j) // steps)
                while nbar[0] < qd:
                    A.op("s_barrier"); nbar[0] += 1
            if prio:
                p = 3 - min(3, (4 * j) // steps)
                if p != state["p"]:
                    A.op(f"s_setprio {p}"); state["p"] = p
            for i in range(2):
                A.op(f"v_mad_u32_u16 v{VA + i}, v{P[i] + j//2}, s30, v8 op_sel:[{j&1},0,0,0]")
                d = DATA + 8 * (j % depth) + 4 * i
                A.op(f"buffer_load_dwordx4 v[{d}:{d+3}], v{VA + i}, s[20:23], 0 offen{ld}")
        for j in range(min(depth, steps)):
            issue(j)
        for j in range(steps):
            prefetch(j)
            out_steps = min(steps, j + depth) - j - 1
            for i in range(2):
                A.op(f"s_waitcnt vmcnt({2*out_steps + (1 - i)})")
                d = DATA + 8 * (j % depth) + 4 * i
                for q in range(ndot):
                    A.op(f"v_dot2c_f32_bf16 v{ACC[i]+2*q}, s28, v{d+q}")
                    A.op(f"v_dot2c_f32_bf16 v{ACC[i]+2*q+1}, s29, v{d+q}")
            if j + depth < steps:
                issue(j + depth)
        while qbar and nbar[0] < qbar - 1:
            A.op("s_barrier"); nbar[0] += 1
        if n != maxpairs:
            A.op(f"s_branch hop_fin")
    A.label("hop_fin")
    if pf: A.op("s_waitcnt lgkmcnt(0)")
    if prof: A.op("s_memrealtime s[66:67]")
    if prio: A.op("s_setprio 0")
    A.op("s_cmp_eq_u32 s41, 0"); A.op("s_cbranch_scc1 hop_noovf")
    T = DATA; DD = DATA + 8
    for i in range(2):
        A.op("s_mov_b32 s52, 0")
        lg = A.new("og"); ln = A.new("on"); ll = A.new("ol"); ld = A.new("od")
        A.label(lg)
        A.op(f"s_lshl_b32 s53, s56, 4"); A.op(f"s_add_u32 s53, s53, s52"); A.op(f"s_add_u32 s53, s53, {8*i}")
        A.op("s_lshl_b32 s53, s53, 2"); A.op("v_mov_b32 v2, s53")
        A.op(f"ds_read_b32 v3, v2 offset:{L_DEG}"); A.op(f"ds_read_b32 v4, v2 offset:{L_NODE}")
        A.op("s_waitcnt lgkmcnt(0)")
        A.op("v_readfirstlane_b32 s54, v3"); A.op("v_lshlrev_b32 v4, 2, v4"); A.op("s_nop 2")
        A.op(f"s_cmp_le_u32 s54, {CAP}"); A.op(f"s_cbranch_scc1 {ln}")
        A.op(f"ds_read_b32 v4, v4 offset:{L_OVFP}")
        A.op(f"s_sub_u32 s54, s54, {CAP}")
        for q in range(8):
            A.op(f"v_mov_b32 v{T+q}, 0")
        A.op("v_lshrrev_b32 v5, 3, v0")
        A.op("s_waitcnt lgkmcnt(0)")
        A.label(ll)
        A.op("v_add_u32 v6, v4, v5"); A.op("v_lshlrev_b32 v6, 1, v6")
        A.op("buffer_load_ushort v7, v6, s[48:51], 0 offen sc1")
        A.op("v_cmp_gt_u32 vcc, s54, v5")
        A.op("v_mov_b32 v6, 0xffff")
        A.op("s_waitcnt vmcnt(0)")
        A.op("v_cndmask_b32_e64 v7, v6, v7, vcc")
        A.op("v_mad_u32_u24 v7, v7, s30, v8")
        A.op(f"buffer_load_dwordx4 v[{DD}:{DD+3}], v7, s[20:23], 0 offen sc1")
        A.op("v_add_u32 v5, 8, v5")
        A.op("s_waitcnt vmcnt(0)")
        for q in range(4):
            A.op(f"v_dot2c_f32_bf16 v{T+2*q}, s28, v{DD+q}")
            A.op(f"v_dot2c_f32_bf16 v{T+2*q+1}, s29, v{DD+q}")
        A.op("v_min_u32 v6, v5, v5")
        A.op("v_readfirstlane_b32 s55, v5"); A.op("s_nop 3")
        A.op("s_cmp_lt_u32 s55, s54"); A.op(f"s_cbranch_scc1 {ll}")
        for q in range(8):
            A.op("s_nop 1")
            A.op(f"v_add_f32_dpp v{T+q}, v{T+q}, v{T+q} row_ror:8 row_mask:0xf bank_mask:0xf")
        for q in range(8):
            A.op(f"ds_swizzle_b32 v{DD+q}, v{T+q} offset:0x401f")
        A.op("s_waitcnt lgkmcnt(0)")
        for q in range(8):
            A.op(f"v_add_f32 v{T+q}, v{T+q}, v{DD+q}")
            A.op(f"v_mov_b32 v{DD+q}, v{T+q}")
        A.op("s_nop 1")
        for q in range(8):
            A.op(f"v_permlane32_swap_b32 v{T+q}, v{DD+q}")
        A.op("s_mov_b32 s58, 0xff"); A.op("s_mov_b32 s59, 0"); A.op("s_lshl_b32 s55, s52, 3"); A.op("s_lshl_b64 s[58:59], s[58:59], s55")
        for q in range(8):
            A.op(f"v_add_f32 v{T+q}, v{T+q}, v{DD+q}")
        A.op("s_mov_b64 exec, s[58:59]")
        for q in range(8):
            A.op(f"v_add_f32 v{ACC[i]+q}, v{ACC[i]+q}, v{T+q}")
        A.op("s_mov_b64 exec, -1")
        A.label(ln)
        A.op("s_add_u32 s52, s52, 1"); A.op("s_cmp_lt_u32 s52, 8"); A.op(f"s_cbranch_scc1 {lg}")
    A.label("hop_noovf")
    for i in range(2):
        for q in range(8):
            A.op(f"v_mul_f32 v{ACC[i]+q}, v{VS+i}, v{ACC[i]+q}")
        d = DATA + 4 * i
        for q in range(4):
            A.op(f"v_cvt_pk_bf16_f32 v{d+q}, v{ACC[i]+2*q}, v{ACC[i]+2*q+1}")
        A.op(f"buffer_store_dwordx4 v[{d}:{d+3}], v{VN+i}, s[24:27], 0 offen sc0 sc1")
    A.op("s_add_u32 s36, s36, 1")
    if not samesrc:
        A.op(f"s_add_u32 s20, s20, {TAB}"); A.op("s_addc_u32 s21, s21, 0")
    A.op(f"s_add_u32 s24, s24, {TAB}"); A.op("s_addc_u32 s25, s25, 0")
    A.op(f"s_cmp_ge_u32 s36, {nh}"); A.op("s_cbranch_scc1 hop_last")
    A.op("s_waitcnt vmcnt(0)")
    if prof: A.op("s_memrealtime s[68:69]")
    A.op("s_barrier")
    if prof:
        A.op("s_memrealtime s[70:71]")
        A.op("s_waitcnt lgkmcnt(0)")
        A.op("s_lshl_b32 s85, s36, 6"); A.op("s_add_u32 s85, s85, s84")
        A.op("s_mov_b64 exec, 1")
        for qi in range(4):
            A.op(f"v_mov_b32 v6, s{64+2*qi}"); A.op(f"v_mov_b32 v7, s{65+2*qi}"); A.op(f"v_mov_b32 v2, {8*qi}")
            A.op("buffer_store_dwordx2 v[6:7], v2, s[80:83], s85 offen"); A.op("s_nop 1")
        A.op("s_mov_b64 exec, -1")
    if pw: A.op("s_branch hop_barother")
    A.op("s_cmp_lg_u32 s6, 0"); A.op("s_cbranch_scc1 hop_barother")
    if bar == 'cnt':
        A.op(f"s_and_b32 s9, s8, {nshard-1}"); A.op("s_lshl_b32 s9, s9, 7")
        A.op("v_mov_b32 v2, s9"); A.op("v_mov_b32 v3, 1")
        A.op("s_mov_b64 exec, 1")
        A.op("buffer_atomic_add v3, v2, s[32:35], 0 offen sc1")
        A.op("s_mov_b64 exec, -1")
        A.op(f"v_min_u32 v5, {nshard-1}, v0"); A.op("v_lshlrev_b32 v2, 7, v5")
        A.op(f"v_sub_u32 v5, {NR + nshard - 1}, v5"); A.op(f"v_lshrrev_b32 v5, {nshard.bit_length()-1}, v5")
        A.op("v_mul_lo_u32 v5, v5, s36")
    else:
        A.op("s_lshl_b32 s9, s8, 7")
        A.op("v_mov_b32 v2, s9"); A.op("v_mov_b32 v3, s36")
        A.op("s_mov_b64 exec, 1")
        A.op("buffer_store_dword v3, v2, s[32:35], 0 offen sc0 sc1")
        A.op("s_mov_b64 exec, -1")
        A.op("v_lshlrev_b32 v2, 7, v0")
        A.op("v_add_u32 v3, 64, v0"); A.op(f"v_min_u32 v3, {NR-1}, v3"); A.op("v_lshlrev_b32 v3, 7, v3")
    A.op("v_mov_b32 v4, v2"); A.op("v_mov_b32 v9, v3"); A.op("v_mov_b32 v6, v5")
    stats()
    A.op("v_mov_b32 v2, v4"); A.op("v_mov_b32 v3, v9"); A.op("v_mov_b32 v5, v6")
    A.op("s_mov_b32 s37, 0")
    A.label("hop_poll")
    A.op("buffer_load_dword v4, v2, s[32:35], 0 offen sc0 sc1")
    if bar != 'cnt':
        A.op("buffer_load_dword v5, v3, s[32:35], 0 offen sc0 sc1")
    A.op("s_add_u32 s37, s37, 1"); A.op("s_cmp_ge_u32 s37, 100000"); A.op("s_cbranch_scc1 hop_pollok")
    A.op("s_waitcnt vmcnt(0)")
    if bar == 'cnt':
        A.op("v_cmp_ge_u32 s[38:39], v4, v5")
    else:
        A.op("v_min_u32 v4, v4, v5"); A.op("v_cmp_le_u32 s[38:39], s36, v4")
    A.op("s_nop 3")
    A.op("s_cmp_eq_u64 s[38:39], -1"); A.op("s_cbranch_scc1 hop_pollok")
    if sleep: A.op(f"s_sleep {sleep}")
    A.op("s_branch hop_poll")
    A.label("hop_pollok")
    A.op("s_waitcnt vmcnt(0)")
    A.label("hop_barw")
    A.op("s_barrier")
    A.op("s_branch hop_loop")
    A.label("hop_barother")
    stats()
    A.op("s_branch hop_barw")
    A.label("hop_last")
    stats()
    A.op("s_endpgm")
    if pw:
        A.cmt("helper wave: L2 prefetch of this hop's source half table (own share), barrier flag and poll")
        A.label("hop_pw")
        A.op(f"s_setprio {pwprio}")
        A.op("v_and_b32 v0, 63, v0")
        A.op(f"s_mul_i32 s19, s7, {HALF}")
        A.op("s_add_u32 s20, s4, s19"); A.op("s_addc_u32 s21, s5, 0")
        A.op(f"s_mov_b32 s22, {HALF}"); A.op("s_mov_b32 s23, 0x20000")
        A.op(f"s_mul_i32 s19, s7, {128*128}"); A.op(f"s_add_u32 s19, s19, {OFF_CNT}")
        A.op("s_add_u32 s32, s4, s19"); A.op("s_addc_u32 s33, s5, 0")
        A.op(f"s_mov_b32 s34, {128*128}"); A.op("s_mov_b32 s35, 0x20000")
        A.op("s_lshr_b32 s9, s2, 3"); A.op("s_and_b32 s9, s9, 31"); A.op("s_lshl_b32 s9, s9, 7")
        A.op("v_lshlrev_b32 v2, 12, v0"); A.op("v_add_u32 v2, s9, v2")
        A.op("v_lshlrev_b32 v10, 7, v0")
        A.op("v_add_u32 v11, 64, v0"); A.op(f"v_min_u32 v11, {NR-1}, v11"); A.op("v_lshlrev_b32 v11, 7, v11")
        A.op("s_lshl_b32 s9, s8, 7"); A.op("v_mov_b32 v12, s9")
        A.op("s_mov_b32 s36, 0")
        A.label("pw_hop")
        for i in range(13 if pw == 1 else 0):
            A.op(f"v_add_u32 v3, {i*64*4096}, v2")
            A.op(f"buffer_load_dword v{20+i}, v3, s[20:23], 0 offen sc1")
            if pwsleep: A.op(f"s_sleep {pwsleep}")
        A.op("s_add_u32 s36, s36, 1")
        A.op(f"s_add_u32 s20, s20, {TAB}"); A.op("s_addc_u32 s21, s21, 0")
        A.op(f"s_cmp_ge_u32 s36, {nh}"); A.op("s_cbranch_scc1 hops_done")
        A.op("s_waitcnt vmcnt(0)")
        A.op("s_barrier")
        A.op("v_mov_b32 v13, s36")
        A.op("s_mov_b64 exec, 1")
        A.op("buffer_store_dword v13, v12, s[32:35], 0 offen sc0 sc1")
        A.op("s_mov_b64 exec, -1")
        A.op("s_mov_b32 s37, 0")
        A.label("pw_poll")
        A.op("buffer_load_dword v4, v10, s[32:35], 0 offen sc0 sc1")
        A.op("buffer_load_dword v5, v11, s[32:35], 0 offen sc0 sc1")
        A.op("s_add_u32 s37, s37, 1"); A.op("s_cmp_ge_u32 s37, 100000"); A.op("s_cbranch_scc1 pw_ok")
        A.op("s_waitcnt vmcnt(0)")
        A.op("v_min_u32 v4, v4, v5"); A.op("v_cmp_le_u32 s[38:39], s36, v4")
        A.op("s_nop 3")
        A.op("s_cmp_eq_u64 s[38:39], -1"); A.op("s_cbranch_scc1 pw_ok")
        if sleep: A.op(f"s_sleep {sleep}")
        A.op("s_branch pw_poll")
        A.label("pw_ok")
        A.op("s_waitcnt vmcnt(0)")
        A.op("s_barrier")
        A.op("s_branch pw_hop")
    if rtt:
        A.label("hop_rtt")
        A.op("s_setprio 3")
        srd(A, 80, 4, 4 << 20, 96 << 20)
        srd(A, 32, 4, CNT_BYTES, OFF_CNT)
        A.op("s_lshl_b32 s84, s2, 10")
        A.op("v_and_b32 v0, 63, v0"); A.op("v_lshlrev_b32 v2, 7, v0"); A.op("v_and_b32 v2, 0x3fff, v2")
        A.op("s_mov_b32 s36, 0")
        A.label("rtt_hop")
        for i in range(rtt):
            A.op("s_memrealtime s[64:65]"); A.op("s_waitcnt lgkmcnt(0)")
            A.op("buffer_load_dword v4, v2, s[32:35], 0 offen sc0 sc1")
            A.op("s_waitcnt vmcnt(0)")
            A.op("s_memrealtime s[66:67]"); A.op("s_waitcnt lgkmcnt(0)")
            A.op("s_sub_u32 s66, s66, s64")
            A.op("s_mov_b64 exec, 1")
            A.op("v_mov_b32 v6, s66"); A.op("v_mov_b32 v7, s64"); A.op("s_lshl_b32 s85, s36, 7"); A.op("s_add_u32 s85, s85, s84"); A.op(f"v_mov_b32 v5, {8*i}")
            A.op("buffer_store_dwordx2 v[6:7], v5, s[80:83], s85 offen")
            A.op("s_mov_b64 exec, -1")
            A.op("s_sleep 6")
        A.op("s_add_u32 s36, s36, 1")
        A.op(f"s_cmp_ge_u32 s36, {nh}"); A.op("s_cbranch_scc1 hops_done")
        A.op("s_barrier"); A.op("s_barrier")
        A.op("s_branch rtt_hop")
    A.label("hops_done")
    A.op("s_endpgm")
    A.label("hops_wprep")
    wl = prep.gen_wprep(A, 64 * NW, 250)
    return dict(name=name, grid=252, block=64 * NWB, lds=max(L_END, wl), vgpr=nv, sgpr=96 if (prof or pf or rtt) else 80)
```

```python
from common import *

MAGIC200 = 41944

def pi_expr(A, dst, m, t1):
    A.op(f"v_and_b32 v{dst}, 0x13, v{m}")
    A.op(f"v_and_b32 v{t1}, 4, v{m}")
    A.op(f"v_lshl_or_b32 v{dst}, v{t1}, 1, v{dst}")
    A.op(f"v_and_b32 v{t1}, 8, v{m}")
    A.op(f"v_lshrrev_b32 v{t1}, 1, v{t1}")
    A.op(f"v_or_b32 v{dst}, v{dst}, v{t1}")

def gen_prep(A, skip=(), cells=False, st='', prof=0):
    name = "prep_kernel"
    kernel_begin(A, name)
    def dump(n):
        if not prof: return
        A.op("s_waitcnt lgkmcnt(0)")
        srd(A, 52, 4, 4 << 20, 96 << 20)
        A.op("v_lshrrev_b32 v38, 6, v0"); A.op("s_nop 0"); A.op("v_readfirstlane_b32 s56, v38"); A.op("s_nop 3")
        A.op("s_lshl_b32 s57, s2, 4"); A.op("s_add_u32 s57, s57, s56"); A.op("s_lshl_b32 s57, s57, 6")
        A.op("s_mov_b64 exec, 1")
        for qi in range(n):
            A.op(f"v_mov_b32 v36, s{40+2*qi}"); A.op(f"v_mov_b32 v37, s{41+2*qi}"); A.op(f"v_mov_b32 v38, {8*qi}")
            A.op("buffer_store_dwordx2 v[36:37], v38, s[52:55], s57 offen"); A.op("s_nop 1")
    if prof: A.op("s_memrealtime s[40:41]")
    A.op("s_cmp_ge_u32 s2, 251"); A.op("s_cbranch_scc1 prep_done")
    A.op("s_load_dwordx2 s[4:5], s[0:1], 88")
    A.op("s_cmp_ge_u32 s2, 250"); A.op("s_cbranch_scc1 prep_misc")
    A.op("s_load_dwordx4 s[8:11], s[0:1], 8")
    A.op("s_load_dwordx2 s[36:37], s[0:1], 0")
    A.op("s_load_dwordx2 s[38:39], s[0:1], 24")
    A.op("v_lshlrev_b32 v1, 2, v0"); A.op("v_mov_b32 v2, 0"); A.op("v_lshlrev_b32 v3, 4, v0")
    A.op("s_waitcnt lgkmcnt(0)")
    srd(A, 12, 8, E * 4)
    srd(A, 16, 10, E * 4)
    A.op(f"s_mul_i32 s3, s2, {CHE*4}")
    A.op("v_cmp_gt_u32 vcc, 400, v0"); A.op("s_mov_b64 s[46:47], vcc")
    A.op("s_and_saveexec_b64 s[20:21], s[46:47]")
    le = A.new("el"); A.op(f"s_cbranch_execz {le}")
    A.op("buffer_load_dwordx4 v[4:7], v3, s[16:19], s3 offen")
    A.op("buffer_load_dwordx4 v[8:11], v3, s[12:15], s3 offen")
    A.label(le)
    A.op("s_mov_b64 exec, s[20:21]")
    srd(A, 40, 36, TAB)
    srd(A, 48, 38, N * 2)
    A.op("s_mul_i32 s22, s2, 25600")
    A.op("s_mul_i32 s23, s2, 200")
    for i in range(2):
        A.op(f"v_add_u32 v28, {800*i}, v0")
        A.op(f"v_lshlrev_b32 v29, 4, v28")
        A.op(f"buffer_load_dwordx4 v[{32+4*i}:{35+4*i}], v29, s[40:43], s22 offen")
        A.op(f"v_lshrrev_b32 v30, 4, v28"); A.op("v_lshlrev_b32 v30, 1, v30")
        A.op(f"buffer_load_ushort v{40+i}, v30, s[48:51], s23 offen")
    A.op("v_cmp_gt_u32 vcc, 128, v0"); A.op("s_and_saveexec_b64 s[20:21], vcc")
    A.op("ds_write_b32 v1, v2")
    A.op("s_mov_b64 exec, s[20:21]")
    A.op("s_waitcnt lgkmcnt(0)")
    A.op("s_barrier")
    A.op(f"s_mov_b32 s24, {MAGIC200}")
    A.op("s_waitcnt vmcnt(4)")
    A.op("s_mov_b64 s[20:21], exec"); A.op("s_and_b64 exec, exec, s[46:47]")
    for i in range(4):
        A.op(f"v_mul_u32_u24 v{12+i}, s24, v{4+i}")
        A.op(f"v_lshrrev_b32 v{12+i}, 23, v{12+i}")
        A.op(f"v_mul_u32_u24 v{16+i}, 200, v{12+i}")
        A.op(f"v_sub_u32 v{16+i}, v{4+i}, v{16+i}")
        A.op(f"v_lshlrev_b32 v{12+i}, 2, v{12+i}")
    A.op("v_mov_b32 v2, 1")
    for i in range(4):
        A.op(f"ds_add_rtn_u32 v{20+i}, v{12+i}, v2")
    for i in range(4):
        A.op(f"v_lshl_or_b32 v{16+i}, v{16+i}, 16, v{8+i}")
    A.op("s_mov_b64 exec, s[20:21]")
    A.op("s_waitcnt lgkmcnt(0)")
    A.op("s_barrier")
    A.op("v_cmp_gt_u32 vcc, 64, v0"); A.op("s_and_saveexec_b64 s[20:21], vcc")
    l = A.new("es"); A.op(f"s_cbranch_execz {l}")
    A.op("v_lshlrev_b32 v3, 3, v0")
    A.op("ds_read_b64 v[24:25], v3")
    A.op("s_waitcnt lgkmcnt(0)")
    A.op("v_add_u32 v26, v24, v25")
    A.op("v_mov_b32 v27, v26")
    wave_scan_incl(A, 26)
    A.op("v_sub_u32 v26, v26, v27")
    A.op("v_add_u32 v27, v26, v24")
    A.op("ds_write_b64 v3, v[26:27] offset:512")
    srd(A, 24, 4, NCH * 512, OFF_OFFS)
    A.op("s_lshl_b32 s28, s2, 9")
    A.op(f"buffer_store_dwordx2 v[26:27], v3, s[24:27], s28 offen{st}")
    A.label(l)
    A.op("s_mov_b64 exec, s[20:21]")
    srd(A, 24, 4, TAB, OFF_G)
    srd(A, 52, 4, ST_TOK, OFF_ST)
    A.op("s_mul_i32 s29, s2, 12800")
    A.op("s_mul_i32 s30, s2, 1600")
    A.op("s_mov_b32 s31, 0xffff0000"); A.op(f"s_mov_b32 s32, {HALF}")
    A.op("s_mov_b32 s34, 0x01010101"); A.op("s_mov_b32 s35, 0x01010101")
    for i in range(2):
        A.op("s_waitcnt vmcnt(2)")
        A.op(f"v_lshlrev_b32 v{40+i}, 16, v{40+i}")
        A.op("v_mov_b32 v44, 0"); A.op("v_mov_b32 v45, 0")
        for q in range(4):
            r = 32 + 4 * i + q
            A.op(f"v_lshlrev_b32 v28, 16, v{r}")
            A.op(f"v_and_b32 v29, s31, v{r}")
            A.op("v_add_f32 v44, v44, v28"); A.op("v_fmac_f32 v45, v28, v28")
            A.op("v_add_f32 v44, v44, v29"); A.op("v_fmac_f32 v45, v29, v29")
            A.op(f"v_mul_f32 v28, v28, v{40+i}")
            A.op(f"v_mul_f32 v29, v29, v{40+i}")
            A.op(f"v_cvt_pk_bf16_f32 v{r}, v28, v29")
        A.op(f"v_add_u32 v28, {800*i}, v0")
        A.op("v_and_b32 v29, 7, v28"); A.op("v_lshlrev_b32 v29, 4, v29")
        A.op("v_lshrrev_b32 v30, 4, v28"); A.op("v_lshl_add_u32 v29, v30, 7, v29")
        A.op("v_bfe_u32 v30, v28, 3, 1"); A.op("v_mad_u32_u24 v29, v30, s32, v29")
        A.op(f"buffer_store_dwordx4 v[{32+4*i}:{35+4*i}], v29, s[24:27], s29 offen{st}")
        for m in ("quad_perm:[1,0,3,2]", "quad_perm:[2,3,0,1]", "row_half_mirror"):
            A.op("s_nop 0")
            A.op(f"v_add_f32_dpp v44, v44, v44 {m} row_mask:0xf bank_mask:0xf")
            A.op(f"v_add_f32_dpp v45, v45, v45 {m} row_mask:0xf bank_mask:0xf")
        A.op("v_and_b32 v28, -8, v28")
        A.op("s_mov_b64 s[20:21], exec"); A.op("s_and_b64 exec, exec, s[34:35]")
        A.op(f"buffer_store_dwordx2 v[44:45], v28, s[52:55], s30 offen{st}")
        A.op("s_mov_b64 exec, s[20:21]")
    A.op("s_waitcnt lgkmcnt(0)")
    A.op("s_barrier")
    A.op("s_mov_b64 s[20:21], exec"); A.op("s_and_b64 exec, exec, s[46:47]")
    for i in range(4):
        A.op(f"ds_read_b32 v{24+i}, v{12+i} offset:512")
    A.op("s_waitcnt lgkmcnt(0)")
    for i in range(4):
        A.op(f"v_add_lshl_u32 v{24+i}, v{24+i}, v{20+i}, 2")
    for i in range(4):
        A.op(f"ds_write_b32 v{24+i}, v{16+i} offset:1024")
    A.op("s_mov_b64 exec, s[20:21]")
    A.op("s_waitcnt lgkmcnt(0)")
    A.op("s_barrier")
    A.op("s_and_b64 exec, exec, s[46:47]")
    A.op("s_cbranch_execz prep_done")
    A.op("v_lshlrev_b32 v3, 4, v0")
    A.op("ds_read_b128 v[4:7], v3 offset:1024")
    srd(A, 24, 4, E * 4, OFF_ENT)
    A.op("s_waitcnt lgkmcnt(0)")
    A.op(f"buffer_store_dwordx4 v[4:7], v3, s[24:27], s3 offen{st}")
    A.op("s_endpgm")
    A.label("prep_misc")
    A.op("s_waitcnt lgkmcnt(0)")
    srd(A, 24, 4, CNT_BYTES, OFF_CNT)
    A.op("v_lshlrev_b32 v1, 4, v0")
    for i in range(4):
        A.op(f"v_mov_b32 v{4+i}, 0")
    for i in range(-(-CNT_BYTES // 12800)):
        A.op(f"s_mov_b32 s3, {12800*i}")
        A.op("buffer_store_dwordx4 v[4:7], v1, s[24:27], s3 offen")
    A.op("s_endpgm")
    A.label("prep_done")
    A.op("s_endpgm")
    return dict(name=name, grid=251, block=800, lds=8192, vgpr=48, sgpr=64)

def gen_wprep(A, NT, first):
    LMEAN = 0
    FM = 2048
    STR = 129
    LWO = 68096
    A.op("s_load_dwordx4 s[8:11], s[0:1], 32")
    A.op("s_load_dwordx4 s[12:15], s[0:1], 48")
    A.op("s_load_dwordx2 s[28:29], s[0:1], 64")
    A.op("v_lshrrev_b32 v1, 6, v0"); A.op("s_nop 0")
    A.op("v_readfirstlane_b32 s6, v1")
    A.op("v_and_b32 v30, 63, v0")
    A.op("v_and_b32 v31, 31, v30")
    A.op("v_lshrrev_b32 v32, 5, v30")
    A.op("s_waitcnt lgkmcnt(0)")
    A.op(f"s_cmp_eq_u32 s2, {first}")
    A.op("s_cselect_b32 s16, s8, s12"); A.op("s_cselect_b32 s17, s9, s13")
    A.op("s_mov_b32 s18, 32768"); A.op("s_mov_b32 s19, 0x20000")
    A.op("s_cselect_b32 s20, s10, s14"); A.op("s_cselect_b32 s21, s11, s15")
    A.op("s_mov_b32 s22, 32768"); A.op("s_mov_b32 s23, 0x20000")
    A.op("s_cbranch_scc1 wprep_nostage")
    for i in range(3):
        A.op(f"v_add_u32 v1, {NT*i}, v0")
        A.op("v_lshlrev_b32 v2, 4, v1")
        if i == 2:
            A.op("v_cmp_gt_u32 vcc, 2048, v1"); A.op("s_and_saveexec_b64 s[24:25], vcc")
            l = A.new("st"); A.op(f"s_cbranch_execz {l}")
        A.op("buffer_load_dwordx4 v[4:7], v2, s[20:23], 0 offen")
        A.op("s_waitcnt vmcnt(0)")
        A.op(f"v_add_u32 v2, {LWO}, v2")
        A.op(f"ds_write_b128 v2, v[4:7]")
        if i == 2:
            A.label(l); A.op("s_mov_b64 exec, s[24:25]")
    A.op("s_waitcnt lgkmcnt(0)")
    A.label("wprep_nostage")
    A.op("s_barrier")
    A.op("s_cmp_ge_u32 s6, 8"); A.op("s_cbranch_scc1 wprep_mm_done")
    A.op("s_lshr_b32 s24, s6, 1"); A.op("s_and_b32 s25, s6, 1"); A.op("s_lshl_b32 s25, s25, 1")
    A.op("s_lshl_b32 s26, s24, 13")
    A.op("v_lshlrev_b32 v1, 8, v31"); A.op("v_lshl_add_u32 v1, v32, 4, v1")
    for kk in range(8):
        A.op(f"buffer_load_dwordx4 v[{40+4*kk}:{43+4*kk}], v1, s[16:19], s26 offen offset:{32*kk}")
    for te in range(2):
        A.op(f"s_cmp_eq_u32 s2, {first}"); lb = A.new("bw"); le = A.new("be"); A.op(f"s_cbranch_scc0 {lb}")
        A.op(f"s_add_u32 s27, s25, {te}"); A.op("s_lshl_b32 s27, s27, 13")
        for kk in range(8):
            A.op(f"buffer_load_dwordx4 v[{72+4*kk}:{75+4*kk}], v1, s[20:23], s27 offen offset:{32*kk}")
        A.op("s_waitcnt vmcnt(0)")
        A.op(f"s_branch {le}")
        A.label(lb)
        A.op("v_and_b32 v2, 15, v30")
        A.op("v_lshrrev_b32 v3, 2, v2")
        A.op("v_and_b32 v2, 3, v2")
        A.op("v_lshl_add_u32 v3, v32, 3, v3")
        A.op("v_lshlrev_b32 v3, 8, v3")
        A.op("v_lshl_add_u32 v3, v2, 3, v3")
        A.op("v_bfe_u32 v2, v30, 4, 1")
        A.op("v_lshl_add_u32 v3, v2, 5, v3")
        A.op(f"s_add_u32 s27, s25, {te}"); A.op("s_lshl_b32 s27, s27, 6")
        A.op(f"s_add_u32 s27, s27, {LWO}")
        A.op("v_add_u32 v3, s27, v3")
        for kk in range(8):
            A.op(f"ds_read_b64_tr_b16 v[{72+4*kk}:{73+4*kk}], v3 offset:{4096*kk}")
            A.op(f"ds_read_b64_tr_b16 v[{74+4*kk}:{75+4*kk}], v3 offset:{4096*kk+1024}")
        A.op("s_waitcnt vmcnt(0) lgkmcnt(0)")
        A.label(le)
        for kk in range(8):
            c = "0" if kk == 0 else "v[104:119]"
            A.op(f"v_mfma_f32_32x32x16_bf16 v[104:119], v[{40+4*kk}:{43+4*kk}], v[{72+4*kk}:{75+4*kk}], {c}")
        A.op("s_nop 15"); A.op("s_nop 7")
        A.op("s_lshl_b32 s27, s24, 5")
        A.op("v_lshlrev_b32 v2, 2, v32"); A.op("v_add_u32 v2, s27, v2")
        A.op(f"v_mul_u32_u24 v2, {STR}, v2")
        A.op(f"s_add_u32 s27, s25, {te}"); A.op("s_lshl_b32 s27, s27, 5")
        A.op("v_add3_u32 v2, v2, s27, v31")
        A.op("v_lshlrev_b32 v2, 2, v2")
        for r in range(16):
            d = (r & 3) + 8 * (r >> 2)
            A.op(f"ds_write_b32 v2, v{104+r} offset:{FM + d*STR*4}")
    A.label("wprep_mm_done")
    A.op("s_waitcnt lgkmcnt(0)")
    A.op("s_barrier")
    A.op("v_cmp_gt_u32 vcc, 256, v0"); A.op("s_and_saveexec_b64 s[24:25], vcc")
    l = A.new("mn"); A.op(f"s_cbranch_execz {l}")
    A.op("v_and_b32 v2, 127, v0")
    A.op("v_cmp_gt_u32 vcc, 128, v0")
    A.op(f"v_mul_u32_u24 v3, {STR}, v2")
    A.op("s_nop 1")
    A.op("v_cndmask_b32_e64 v3, v3, v2, vcc")
    A.op(f"v_mov_b32 v4, {STR}")
    A.op("v_cndmask_b32_e64 v4, 1, v4, vcc")
    A.op("v_lshlrev_b32 v3, 2, v3"); A.op("v_lshlrev_b32 v4, 2, v4")
    A.op("v_mov_b32 v5, 0")
    A.op("s_mov_b32 s26, 0")
    lp = A.new("ml"); A.label(lp)
    for i in range(8):
        A.op(f"ds_read_b32 v{8+i}, v3 offset:{FM}"); A.op("v_add_u32 v3, v3, v4")
    A.op("s_waitcnt lgkmcnt(0)")
    for i in range(8):
        A.op(f"v_add_f32 v5, v5, v{8+i}")
    A.op("s_add_u32 s26, s26, 1"); A.op("s_cmp_lt_u32 s26, 16"); A.op(f"s_cbranch_scc1 {lp}")
    A.op("v_mul_f32 v5, 0x3c000000, v5")
    A.op("v_lshlrev_b32 v2, 2, v0")
    A.op(f"ds_write_b32 v2, v5 offset:{LMEAN}")
    A.label(l)
    A.op("s_mov_b64 exec, s[24:25]")
    A.op("s_waitcnt lgkmcnt(0)")
    A.op("s_barrier")
    A.op("v_lshlrev_b32 v2, 3, v30")
    A.op(f"ds_read_b64 v[4:5], v2 offset:{LMEAN}")
    A.op("s_waitcnt lgkmcnt(0)")
    A.op("v_add_f32 v4, v4, v5")
    A.op("s_cmp_eq_u32 s6, 0"); l = A.new("tm"); A.op(f"s_cbranch_scc0 {l}")
    for sh in (1, 2, 4, 8):
        A.op("s_nop 1"); A.op(f"v_add_f32_dpp v4, v4, v4 row_shr:{sh} row_mask:0xf bank_mask:0xf")
    A.op("s_nop 1"); A.op("v_add_f32_dpp v4, v4, v4 row_bcast:15 row_mask:0xa bank_mask:0xf")
    A.op("s_nop 1"); A.op("v_add_f32_dpp v4, v4, v4 row_bcast:31 row_mask:0xc bank_mask:0xf")
    A.op("s_nop 1"); A.op("v_readlane_b32 s26, v4, 63")
    A.op("s_nop 3"); A.op("v_mov_b32 v4, s26"); A.op("v_mul_f32 v4, 0x3c000000, v4")
    A.op("v_mov_b32 v2, 0"); A.op(f"ds_write_b32 v2, v4 offset:{LMEAN+1024}")
    A.label(l)
    A.op("s_waitcnt lgkmcnt(0)")
    A.op("s_barrier")
    A.op(f"s_cmp_eq_u32 s2, {first}")
    A.op(f"s_cselect_b32 s26, 0, 32768")
    A.op("s_cselect_b32 s30, 0x3e0293ee, 1.0")
    A.op("s_cselect_b32 s31, 1.0, 0")
    A.op(f"s_add_u32 s26, s26, {OFF_WM}")
    A.op("s_add_u32 s24, s4, s26"); A.op("s_addc_u32 s25, s5, 0")
    A.op("s_mov_b32 s26, 32768"); A.op("s_mov_b32 s27, 0x20000")
    A.op("v_mov_b32 v2, 0"); A.op(f"ds_read_b32 v33, v2 offset:{LMEAN+1024}")
    for i in range(3):
        A.op(f"v_add_u32 v1, {NT*i}, v0")
        if i == 2:
            A.op("v_cmp_gt_u32 vcc, 2048, v1"); A.op("s_and_saveexec_b64 s[34:35], vcc")
            l = A.new("em"); A.op(f"s_cbranch_execz {l}")
        A.op("v_and_b32 v2, 31, v1")
        pi_expr(A, 3, 2, 4)
        A.op("v_lshrrev_b32 v4, 9, v1")
        A.op("v_lshl_add_u32 v3, v4, 5, v3")
        A.op("v_bfe_u32 v4, v1, 6, 3")
        A.op("v_bfe_u32 v5, v1, 5, 1")
        A.op("v_lshlrev_b32 v4, 4, v4"); A.op("v_lshl_add_u32 v4, v5, 3, v4")
        A.op(f"v_mul_u32_u24 v5, {STR}, v4"); A.op("v_add_lshl_u32 v5, v5, v3, 2")
        for j in range(8):
            A.op(f"ds_read_b32 v{8+j}, v5 offset:{FM + j*STR*4}")
        A.op("v_lshlrev_b32 v6, 2, v3"); A.op(f"ds_read_b32 v16, v6 offset:{LMEAN}")
        A.op("v_lshlrev_b32 v6, 2, v4")
        A.op(f"ds_read_b128 v[20:23], v6 offset:{LMEAN+512}"); A.op(f"ds_read_b128 v[24:27], v6 offset:{LMEAN+528}")
        A.op("s_waitcnt lgkmcnt(0)")
        for j in range(8):
            A.op(f"v_sub_f32 v{20+j}, v{20+j}, v33")
            A.op(f"v_sub_f32 v{8+j}, v{8+j}, v16")
            A.op(f"v_fma_f32 v{8+j}, -v{20+j}, s31, v{8+j}")
            A.op(f"v_mul_f32 v{8+j}, s30, v{8+j}")
        for j in range(4):
            A.op(f"v_cvt_pk_bf16_f32 v{8+j}, v{8+2*j}, v{9+2*j}")
        A.op("v_lshlrev_b32 v6, 4, v1")
        A.op("buffer_store_dwordx4 v[8:11], v6, s[24:27], 0 offen")
        if i == 2:
            A.label(l); A.op("s_mov_b64 exec, s[34:35]")
    A.op(f"s_cmp_eq_u32 s2, {first+1}"); A.op("s_cbranch_scc0 wprep_done")
    A.op("s_cmp_ge_u32 s6, 1"); A.op("s_cbranch_scc1 wprep_done")
    srd(A, 12, 28, 256)
    A.op("v_lshlrev_b32 v2, 1, v30")
    A.op("buffer_load_ushort v4, v2, s[12:15], 0 offen")
    A.op("buffer_load_ushort v5, v2, s[12:15], 0 offen offset:128")
    A.op("s_waitcnt vmcnt(0)")
    A.op("v_lshlrev_b32 v4, 16, v4"); A.op("v_lshlrev_b32 v5, 16, v5")
    A.op("v_add_f32 v6, v4, v5")
    for sh in (1, 2, 4, 8):
        A.op("s_nop 1"); A.op(f"v_add_f32_dpp v6, v6, v6 row_shr:{sh} row_mask:0xf bank_mask:0xf")
    A.op("s_nop 1"); A.op("v_add_f32_dpp v6, v6, v6 row_bcast:15 row_mask:0xa bank_mask:0xf")
    A.op("s_nop 1"); A.op("v_add_f32_dpp v6, v6, v6 row_bcast:31 row_mask:0xc bank_mask:0xf")
    A.op("s_nop 1"); A.op("v_readlane_b32 s26, v6, 63")
    A.op("s_nop 3"); A.op("v_mov_b32 v6, s26"); A.op("v_mul_f32 v6, 0x3c000000, v6")
    A.op("v_sub_f32 v4, v4, v6"); A.op("v_sub_f32 v5, v5, v6")
    srd(A, 16, 4, 512, OFF_WC)
    for (val, add) in ((4, 0), (5, 64)):
        A.op(f"v_add_u32 v7, {add}, v30")
        A.op("v_bfe_u32 v8, v7, 3, 1"); A.op("v_lshlrev_b32 v8, 6, v8")
        A.op("v_lshrrev_b32 v9, 5, v7"); A.op("v_lshl_add_u32 v8, v9, 4, v8")
        A.op("v_bfe_u32 v9, v7, 4, 1"); A.op("v_lshl_add_u32 v8, v9, 3, v8")
        A.op("v_and_b32 v9, 7, v7"); A.op("v_add_lshl_u32 v8, v8, v9, 2")
        A.op(f"buffer_store_dword v{val}, v8, s[16:19], 0 offen")
    A.label("wprep_done")
    A.op("s_endpgm")
    return 100864
```

```python
from common import *

MAGIC200 = 41944

def pi_expr(A, dst, m, t1):
    A.op(f"v_and_b32 v{dst}, 0x13, v{m}")
    A.op(f"v_and_b32 v{t1}, 4, v{m}")
    A.op(f"v_lshl_or_b32 v{dst}, v{t1}, 1, v{dst}")
    A.op(f"v_and_b32 v{t1}, 8, v{m}")
    A.op(f"v_lshrrev_b32 v{t1}, 1, v{t1}")
    A.op(f"v_or_b32 v{dst}, v{dst}, v{t1}")

def gen_prep(A, skip=(), cells=False, st='', prof=0):
    name = "prep_kernel"
    kernel_begin(A, name)
    def dump(n):
        if not prof: return
        A.op("s_waitcnt lgkmcnt(0)")
        srd(A, 52, 4, 4 << 20, 96 << 20)
        A.op("v_lshrrev_b32 v38, 6, v0"); A.op("s_nop 0"); A.op("v_readfirstlane_b32 s56, v38"); A.op("s_nop 3")
        A.op("s_lshl_b32 s57, s2, 4"); A.op("s_add_u32 s57, s57, s56"); A.op("s_lshl_b32 s57, s57, 6")
        A.op("s_mov_b64 exec, 1")
        for qi in range(n):
            A.op(f"v_mov_b32 v36, s{40+2*qi}"); A.op(f"v_mov_b32 v37, s{41+2*qi}"); A.op(f"v_mov_b32 v38, {8*qi}")
            A.op("buffer_store_dwordx2 v[36:37], v38, s[52:55], s57 offen"); A.op("s_nop 1")
    if prof: A.op("s_memrealtime s[40:41]")
    A.op("s_cmp_ge_u32 s2, 251"); A.op("s_cbranch_scc1 prep_done")
    A.op("s_load_dwordx2 s[4:5], s[0:1], 88")
    A.op("s_cmp_ge_u32 s2, 250"); A.op("s_cbranch_scc1 prep_misc")
    A.op("s_cmp_ge_u32 s2, 125"); A.op("s_cbranch_scc1 prep_x")
    if "edge" in skip: A.op("s_endpgm")
    A.op("s_load_dwordx4 s[8:11], s[0:1], 8")
    A.op("v_lshlrev_b32 v1, 2, v0")
    A.op("v_mov_b32 v2, 0")
    A.op("v_cmp_gt_u32 vcc, 128, v0"); A.op("s_and_saveexec_b64 s[20:21], vcc")
    A.op("ds_write_b32 v1, v2")
    A.op("s_mov_b64 exec, s[20:21]")
    A.op("s_waitcnt lgkmcnt(0)")
    srd(A, 12, 8, E * 4)
    srd(A, 16, 10, E * 4)
    A.op("s_mul_i32 s3, s2, 12800")
    A.op("v_lshlrev_b32 v3, 4, v0")
    if prof: A.op("s_memrealtime s[42:43]")
    A.op("buffer_load_dwordx4 v[4:7], v3, s[16:19], s3 offen")
    A.op("buffer_load_dwordx4 v[8:11], v3, s[12:15], s3 offen")
    A.op("s_barrier")
    A.op(f"s_mov_b32 s22, {MAGIC200}")
    A.op("s_waitcnt vmcnt(1)")
    if prof: A.op("s_memrealtime s[44:45]")
    for i in range(4):
        A.op(f"v_mul_u32_u24 v{12+i}, s22, v{4+i}")
        A.op(f"v_lshrrev_b32 v{12+i}, 23, v{12+i}")
        A.op(f"v_mul_u32_u24 v{16+i}, 200, v{12+i}")
        A.op(f"v_sub_u32 v{16+i}, v{4+i}, v{16+i}")
        A.op(f"v_lshlrev_b32 v{12+i}, 2, v{12+i}")
    A.op("v_mov_b32 v2, 1")
    for i in range(4):
        A.op(f"ds_add_rtn_u32 v{20+i}, v{12+i}, v2")
    A.op("s_waitcnt vmcnt(0)")
    for i in range(4):
        A.op(f"v_lshl_or_b32 v{16+i}, v{16+i}, 16, v{8+i}")
        A.op(f"v_lshl_or_b32 v{16+i}, v{12+i}, 22, v{16+i}")
    A.op("s_waitcnt lgkmcnt(0)")
    A.op("s_barrier")
    A.op("v_cmp_gt_u32 vcc, 64, v0"); A.op("s_and_saveexec_b64 s[20:21], vcc")
    l = A.new("es"); A.op(f"s_cbranch_execz {l}")
    A.op("v_lshlrev_b32 v3, 3, v0")
    A.op("ds_read_b64 v[24:25], v3")
    A.op("s_waitcnt lgkmcnt(0)")
    A.op("v_add_u32 v26, v24, v25")
    A.op("v_mov_b32 v27, v26")
    wave_scan_incl(A, 26)
    A.op("v_sub_u32 v26, v26, v27")
    A.op("v_add_u32 v27, v26, v24")
    A.op("ds_write_b64 v3, v[26:27] offset:512")
    srd(A, 24, 4, NR * 512, OFF_OFFS)
    A.op("s_lshl_b32 s23, s2, 9")
    A.op(f"buffer_store_dwordx2 v[26:27], v3, s[24:27], s23 offen{st}")
    A.label(l)
    A.op("s_mov_b64 exec, s[20:21]")
    A.op("s_waitcnt lgkmcnt(0)")
    A.op("s_barrier")
    for i in range(4):
        A.op(f"ds_read_b32 v{24+i}, v{12+i} offset:512")
    A.op("s_waitcnt lgkmcnt(0)")
    for i in range(4):
        A.op(f"v_add_lshl_u32 v{24+i}, v{24+i}, v{20+i}, 2")
    for i in range(4):
        A.op(f"ds_write_b32 v{24+i}, v{16+i} offset:1024")
    A.op("s_waitcnt lgkmcnt(0)")
    A.op("s_barrier")
    A.op("v_lshlrev_b32 v3, 4, v0")
    A.op("ds_read_b128 v[4:7], v3 offset:1024")
    srd(A, 24, 4, E * 4, OFF_ENT)
    srd(A, 28, 4, CELL_BYTES, OFF_CELL)
    A.op("s_waitcnt lgkmcnt(0)")
    if prof: A.op("s_memrealtime s[46:47]")
    A.op(f"buffer_store_dwordx4 v[4:7], v3, s[24:27], s3 offen{st}")
    if prof:
        A.op("s_waitcnt vmcnt(0)"); A.op("s_memrealtime s[48:49]"); dump(5)
    if cells:
        A.cmt("fixed-capacity cells [bucket][chunk][64]: entry at sorted position p of bucket b goes to rank p - offs[b]")
        A.op("v_lshlrev_b32 v2, 2, v0")
        for i in range(4):
            A.op(f"ds_read_b32 v{24+i}, v2 offset:{1024 + 3200*i}")
        A.op("s_waitcnt lgkmcnt(0)")
        for i in range(4):
            A.op(f"v_lshrrev_b32 v{8+i}, 24, v{24+i}")
            A.op(f"v_lshlrev_b32 v{12+i}, 2, v{8+i}")
            A.op(f"ds_read_b32 v{16+i}, v{12+i} offset:512")
        A.op("s_lshl_b32 s23, s2, 8")
        A.op("s_waitcnt lgkmcnt(0)")
        for i in range(4):
            A.op(f"v_add_u32 v20, {800*i}, v0"); A.op(f"v_sub_u32 v20, v20, v{16+i}")
            A.op(f"v_mul_u32_u24 v21, {NR*256}, v{8+i}"); A.op("v_lshl_add_u32 v21, v20, 2, v21")
            A.op("v_cmp_gt_u32 vcc, 64, v20")
            A.op("s_nop 1")
            A.op("v_cndmask_b32_e64 v21, -1, v21, vcc")
            A.op(f"buffer_store_dword v{24+i}, v21, s[28:31], s23 offen")
    A.op("s_endpgm")
    A.label("prep_x")
    if "x" in skip: A.op("s_endpgm")
    A.op("s_load_dwordx2 s[8:9], s[0:1], 0")
    A.op("s_load_dwordx2 s[10:11], s[0:1], 24")
    A.op("s_sub_u32 s3, s2, 125")
    A.op("s_waitcnt lgkmcnt(0)")
    srd(A, 12, 8, TAB)
    srd(A, 16, 10, N * 2)
    srd(A, 24, 4, TAB, OFF_G)
    if prof: A.op("s_memrealtime s[42:43]")
    A.op("s_mul_i32 s20, s3, 51200")
    A.op("s_mul_i32 s21, s3, 400")
    A.op("s_mul_i32 s22, s3, 25600")
    for i in range(4):
        A.op(f"v_add_u32 v1, {800*i}, v0")
        A.op(f"v_lshlrev_b32 v2, 4, v1")
        A.op(f"buffer_load_dwordx4 v[{8+4*i}:{11+4*i}], v2, s[12:15], s20 offen")
        A.op(f"v_lshrrev_b32 v3, 4, v1")
        A.op(f"v_lshlrev_b32 v4, 1, v3")
        A.op(f"buffer_load_ushort v{24+i}, v4, s[16:19], s21 offen")
        A.op(f"v_and_b32 v4, 7, v1"); A.op(f"v_lshlrev_b32 v4, 4, v4")
        A.op(f"v_lshl_add_u32 v4, v3, 7, v4")
        A.op(f"v_bfe_u32 v5, v1, 3, 1")
        A.op(f"s_mov_b32 s23, {HALF}")
        A.op(f"v_mad_u32_u24 v{28+i}, v5, s23, v4")
    A.op("s_mov_b32 s23, 0xffff0000")
    srd(A, 28, 4, ST_TOK, OFF_ST)
    A.op("s_mul_i32 s32, s3, 3200")
    A.op("s_mov_b32 s34, 0x01010101"); A.op("s_mov_b32 s35, 0x01010101")
    for i in range(4):
        A.op(f"s_waitcnt vmcnt({6-2*i})" if i == 0 else f"s_waitcnt vmcnt({2*(3-i) + 2*i})")
        if prof and i == 0: A.op("s_memrealtime s[44:45]")
        A.op(f"v_lshlrev_b32 v{24+i}, 16, v{24+i}")
        A.op("v_mov_b32 v32, 0"); A.op("v_mov_b32 v33, 0")
        for q in range(4):
            r = 8 + 4 * i + q
            A.op(f"v_lshlrev_b32 v2, 16, v{r}")
            A.op(f"v_and_b32 v3, s23, v{r}")
            A.op("v_add_f32 v32, v32, v2"); A.op("v_fmac_f32 v33, v2, v2")
            A.op("v_add_f32 v32, v32, v3"); A.op("v_fmac_f32 v33, v3, v3")
            A.op(f"v_mul_f32 v2, v2, v{24+i}")
            A.op(f"v_mul_f32 v3, v3, v{24+i}")
            A.op(f"v_cvt_pk_bf16_f32 v{r}, v2, v3")
        A.op(f"buffer_store_dwordx4 v[{8+4*i}:{11+4*i}], v{28+i}, s[24:27], s22 offen{st}")
        for m in ("quad_perm:[1,0,3,2]", "quad_perm:[2,3,0,1]", "row_half_mirror"):
            A.op("s_nop 0")
            A.op(f"v_add_f32_dpp v32, v32, v32 {m} row_mask:0xf bank_mask:0xf")
            A.op(f"v_add_f32_dpp v33, v33, v33 {m} row_mask:0xf bank_mask:0xf")
        A.op(f"v_add_u32 v34, {800*i}, v0"); A.op("v_and_b32 v34, -8, v34")
        A.op("s_mov_b64 s[36:37], exec"); A.op("s_and_b64 exec, exec, s[34:35]")
        A.op(f"buffer_store_dwordx2 v[32:33], v34, s[28:31], s32 offen{st}")
        A.op("s_mov_b64 exec, s[36:37]")
    if prof:
        A.op("s_memrealtime s[46:47]"); A.op("s_waitcnt vmcnt(0)"); A.op("s_memrealtime s[48:49]"); dump(5)
    A.op("s_endpgm")
    A.label("prep_misc")
    A.op("s_waitcnt lgkmcnt(0)")
    srd(A, 24, 4, CNT_BYTES, OFF_CNT)
    A.op("v_lshlrev_b32 v1, 4, v0")
    for i in range(4):
        A.op(f"v_mov_b32 v{4+i}, 0")
    for i in range(-(-CNT_BYTES // 12800)):
        A.op(f"s_mov_b32 s3, {12800*i}")
        A.op("buffer_store_dwordx4 v[4:7], v1, s[24:27], s3 offen")
    A.op("s_endpgm")
    A.label("prep_done")
    A.op("s_endpgm")
    return dict(name=name, grid=251, block=800, lds=14336, vgpr=40, sgpr=64)

def gen_wprep(A, NT, first):
    LMEAN = 0
    FM = 2048
    STR = 129
    LWO = 68096
    A.op("s_load_dwordx4 s[8:11], s[0:1], 32")
    A.op("s_load_dwordx4 s[12:15], s[0:1], 48")
    A.op("s_load_dwordx2 s[28:29], s[0:1], 64")
    A.op("v_lshrrev_b32 v1, 6, v0"); A.op("s_nop 0")
    A.op("v_readfirstlane_b32 s6, v1")
    A.op("v_and_b32 v30, 63, v0")
    A.op("v_and_b32 v31, 31, v30")
    A.op("v_lshrrev_b32 v32, 5, v30")
    A.op("s_waitcnt lgkmcnt(0)")
    A.op(f"s_cmp_eq_u32 s2, {first}")
    A.op("s_cselect_b32 s16, s8, s12"); A.op("s_cselect_b32 s17, s9, s13")
    A.op("s_mov_b32 s18, 32768"); A.op("s_mov_b32 s19, 0x20000")
    A.op("s_cselect_b32 s20, s10, s14"); A.op("s_cselect_b32 s21, s11, s15")
    A.op("s_mov_b32 s22, 32768"); A.op("s_mov_b32 s23, 0x20000")
    A.op("s_cbranch_scc1 wprep_nostage")
    for i in range(3):
        A.op(f"v_add_u32 v1, {NT*i}, v0")
        A.op("v_lshlrev_b32 v2, 4, v1")
        if i == 2:
            A.op("v_cmp_gt_u32 vcc, 2048, v1"); A.op("s_and_saveexec_b64 s[24:25], vcc")
            l = A.new("st"); A.op(f"s_cbranch_execz {l}")
        A.op("buffer_load_dwordx4 v[4:7], v2, s[20:23], 0 offen")
        A.op("s_waitcnt vmcnt(0)")
        A.op(f"v_add_u32 v2, {LWO}, v2")
        A.op(f"ds_write_b128 v2, v[4:7]")
        if i == 2:
            A.label(l); A.op("s_mov_b64 exec, s[24:25]")
    A.op("s_waitcnt lgkmcnt(0)")
    A.label("wprep_nostage")
    A.op("s_barrier")
    A.op("s_cmp_ge_u32 s6, 8"); A.op("s_cbranch_scc1 wprep_mm_done")
    A.op("s_lshr_b32 s24, s6, 1"); A.op("s_and_b32 s25, s6, 1"); A.op("s_lshl_b32 s25, s25, 1")
    A.op("s_lshl_b32 s26, s24, 13")
    A.op("v_lshlrev_b32 v1, 8, v31"); A.op("v_lshl_add_u32 v1, v32, 4, v1")
    for kk in range(8):
        A.op(f"buffer_load_dwordx4 v[{40+4*kk}:{43+4*kk}], v1, s[16:19], s26 offen offset:{32*kk}")
    for te in range(2):
        A.op(f"s_cmp_eq_u32 s2, {first}"); lb = A.new("bw"); le = A.new("be"); A.op(f"s_cbranch_scc0 {lb}")
        A.op(f"s_add_u32 s27, s25, {te}"); A.op("s_lshl_b32 s27, s27, 13")
        for kk in range(8):
            A.op(f"buffer_load_dwordx4 v[{72+4*kk}:{75+4*kk}], v1, s[20:23], s27 offen offset:{32*kk}")
        A.op("s_waitcnt vmcnt(0)")
        A.op(f"s_branch {le}")
        A.label(lb)
        A.op("v_and_b32 v2, 15, v30")
        A.op("v_lshrrev_b32 v3, 2, v2")
        A.op("v_and_b32 v2, 3, v2")
        A.op("v_lshl_add_u32 v3, v32, 3, v3")
        A.op("v_lshlrev_b32 v3, 8, v3")
        A.op("v_lshl_add_u32 v3, v2, 3, v3")
        A.op("v_bfe_u32 v2, v30, 4, 1")
        A.op("v_lshl_add_u32 v3, v2, 5, v3")
        A.op(f"s_add_u32 s27, s25, {te}"); A.op("s_lshl_b32 s27, s27, 6")
        A.op(f"s_add_u32 s27, s27, {LWO}")
        A.op("v_add_u32 v3, s27, v3")
        for kk in range(8):
            A.op(f"ds_read_b64_tr_b16 v[{72+4*kk}:{73+4*kk}], v3 offset:{4096*kk}")
            A.op(f"ds_read_b64_tr_b16 v[{74+4*kk}:{75+4*kk}], v3 offset:{4096*kk+1024}")
        A.op("s_waitcnt vmcnt(0) lgkmcnt(0)")
        A.label(le)
        for kk in range(8):
            c = "0" if kk == 0 else "v[104:119]"
            A.op(f"v_mfma_f32_32x32x16_bf16 v[104:119], v[{40+4*kk}:{43+4*kk}], v[{72+4*kk}:{75+4*kk}], {c}")
        A.op("s_nop 15"); A.op("s_nop 7")
        A.op("s_lshl_b32 s27, s24, 5")
        A.op("v_lshlrev_b32 v2, 2, v32"); A.op("v_add_u32 v2, s27, v2")
        A.op(f"v_mul_u32_u24 v2, {STR}, v2")
        A.op(f"s_add_u32 s27, s25, {te}"); A.op("s_lshl_b32 s27, s27, 5")
        A.op("v_add3_u32 v2, v2, s27, v31")
        A.op("v_lshlrev_b32 v2, 2, v2")
        for r in range(16):
            d = (r & 3) + 8 * (r >> 2)
            A.op(f"ds_write_b32 v2, v{104+r} offset:{FM + d*STR*4}")
    A.label("wprep_mm_done")
    A.op("s_waitcnt lgkmcnt(0)")
    A.op("s_barrier")
    A.op("v_cmp_gt_u32 vcc, 256, v0"); A.op("s_and_saveexec_b64 s[24:25], vcc")
    l = A.new("mn"); A.op(f"s_cbranch_execz {l}")
    A.op("v_and_b32 v2, 127, v0")
    A.op("v_cmp_gt_u32 vcc, 128, v0")
    A.op(f"v_mul_u32_u24 v3, {STR}, v2")
    A.op("s_nop 1")
    A.op("v_cndmask_b32_e64 v3, v3, v2, vcc")
    A.op(f"v_mov_b32 v4, {STR}")
    A.op("v_cndmask_b32_e64 v4, 1, v4, vcc")
    A.op("v_lshlrev_b32 v3, 2, v3"); A.op("v_lshlrev_b32 v4, 2, v4")
    A.op("v_mov_b32 v5, 0")
    A.op("s_mov_b32 s26, 0")
    lp = A.new("ml"); A.label(lp)
    for i in range(8):
        A.op(f"ds_read_b32 v{8+i}, v3 offset:{FM}"); A.op("v_add_u32 v3, v3, v4")
    A.op("s_waitcnt lgkmcnt(0)")
    for i in range(8):
        A.op(f"v_add_f32 v5, v5, v{8+i}")
    A.op("s_add_u32 s26, s26, 1"); A.op("s_cmp_lt_u32 s26, 16"); A.op(f"s_cbranch_scc1 {lp}")
    A.op("v_mul_f32 v5, 0x3c000000, v5")
    A.op("v_lshlrev_b32 v2, 2, v0")
    A.op(f"ds_write_b32 v2, v5 offset:{LMEAN}")
    A.label(l)
    A.op("s_mov_b64 exec, s[24:25]")
    A.op("s_waitcnt lgkmcnt(0)")
    A.op("s_barrier")
    A.op("v_lshlrev_b32 v2, 3, v30")
    A.op(f"ds_read_b64 v[4:5], v2 offset:{LMEAN}")
    A.op("s_waitcnt lgkmcnt(0)")
    A.op("v_add_f32 v4, v4, v5")
    A.op("s_cmp_eq_u32 s6, 0"); l = A.new("tm"); A.op(f"s_cbranch_scc0 {l}")
    for sh in (1, 2, 4, 8):
        A.op("s_nop 1"); A.op(f"v_add_f32_dpp v4, v4, v4 row_shr:{sh} row_mask:0xf bank_mask:0xf")
    A.op("s_nop 1"); A.op("v_add_f32_dpp v4, v4, v4 row_bcast:15 row_mask:0xa bank_mask:0xf")
    A.op("s_nop 1"); A.op("v_add_f32_dpp v4, v4, v4 row_bcast:31 row_mask:0xc bank_mask:0xf")
    A.op("s_nop 1"); A.op("v_readlane_b32 s26, v4, 63")
    A.op("s_nop 3"); A.op("v_mov_b32 v4, s26"); A.op("v_mul_f32 v4, 0x3c000000, v4")
    A.op("v_mov_b32 v2, 0"); A.op(f"ds_write_b32 v2, v4 offset:{LMEAN+1024}")
    A.label(l)
    A.op("s_waitcnt lgkmcnt(0)")
    A.op("s_barrier")
    A.op(f"s_cmp_eq_u32 s2, {first}")
    A.op(f"s_cselect_b32 s26, 0, 32768")
    A.op("s_cselect_b32 s30, 0x3e0293ee, 1.0")
    A.op("s_cselect_b32 s31, 1.0, 0")
    A.op(f"s_add_u32 s26, s26, {OFF_WM}")
    A.op("s_add_u32 s24, s4, s26"); A.op("s_addc_u32 s25, s5, 0")
    A.op("s_mov_b32 s26, 32768"); A.op("s_mov_b32 s27, 0x20000")
    A.op("v_mov_b32 v2, 0"); A.op(f"ds_read_b32 v33, v2 offset:{LMEAN+1024}")
    for i in range(3):
        A.op(f"v_add_u32 v1, {NT*i}, v0")
        if i == 2:
            A.op("v_cmp_gt_u32 vcc, 2048, v1"); A.op("s_and_saveexec_b64 s[34:35], vcc")
            l = A.new("em"); A.op(f"s_cbranch_execz {l}")
        A.op("v_and_b32 v2, 31, v1")
        pi_expr(A, 3, 2, 4)
        A.op("v_lshrrev_b32 v4, 9, v1")
        A.op("v_lshl_add_u32 v3, v4, 5, v3")
        A.op("v_bfe_u32 v4, v1, 6, 3")
        A.op("v_bfe_u32 v5, v1, 5, 1")
        A.op("v_lshlrev_b32 v4, 4, v4"); A.op("v_lshl_add_u32 v4, v5, 3, v4")
        A.op(f"v_mul_u32_u24 v5, {STR}, v4"); A.op("v_add_lshl_u32 v5, v5, v3, 2")
        for j in range(8):
            A.op(f"ds_read_b32 v{8+j}, v5 offset:{FM + j*STR*4}")
        A.op("v_lshlrev_b32 v6, 2, v3"); A.op(f"ds_read_b32 v16, v6 offset:{LMEAN}")
        A.op("v_lshlrev_b32 v6, 2, v4")
        A.op(f"ds_read_b128 v[20:23], v6 offset:{LMEAN+512}"); A.op(f"ds_read_b128 v[24:27], v6 offset:{LMEAN+528}")
        A.op("s_waitcnt lgkmcnt(0)")
        for j in range(8):
            A.op(f"v_sub_f32 v{20+j}, v{20+j}, v33")
            A.op(f"v_sub_f32 v{8+j}, v{8+j}, v16")
            A.op(f"v_fma_f32 v{8+j}, -v{20+j}, s31, v{8+j}")
            A.op(f"v_mul_f32 v{8+j}, s30, v{8+j}")
        for j in range(4):
            A.op(f"v_cvt_pk_bf16_f32 v{8+j}, v{8+2*j}, v{9+2*j}")
        A.op("v_lshlrev_b32 v6, 4, v1")
        A.op("buffer_store_dwordx4 v[8:11], v6, s[24:27], 0 offen")
        if i == 2:
            A.label(l); A.op("s_mov_b64 exec, s[34:35]")
    A.op(f"s_cmp_eq_u32 s2, {first+1}"); A.op("s_cbranch_scc0 wprep_done")
    A.op("s_cmp_ge_u32 s6, 1"); A.op("s_cbranch_scc1 wprep_done")
    srd(A, 12, 28, 256)
    A.op("v_lshlrev_b32 v2, 1, v30")
    A.op("buffer_load_ushort v4, v2, s[12:15], 0 offen")
    A.op("buffer_load_ushort v5, v2, s[12:15], 0 offen offset:128")
    A.op("s_waitcnt vmcnt(0)")
    A.op("v_lshlrev_b32 v4, 16, v4"); A.op("v_lshlrev_b32 v5, 16, v5")
    A.op("v_add_f32 v6, v4, v5")
    for sh in (1, 2, 4, 8):
        A.op("s_nop 1"); A.op(f"v_add_f32_dpp v6, v6, v6 row_shr:{sh} row_mask:0xf bank_mask:0xf")
    A.op("s_nop 1"); A.op("v_add_f32_dpp v6, v6, v6 row_bcast:15 row_mask:0xa bank_mask:0xf")
    A.op("s_nop 1"); A.op("v_add_f32_dpp v6, v6, v6 row_bcast:31 row_mask:0xc bank_mask:0xf")
    A.op("s_nop 1"); A.op("v_readlane_b32 s26, v6, 63")
    A.op("s_nop 3"); A.op("v_mov_b32 v6, s26"); A.op("v_mul_f32 v6, 0x3c000000, v6")
    A.op("v_sub_f32 v4, v4, v6"); A.op("v_sub_f32 v5, v5, v6")
    srd(A, 16, 4, 512, OFF_WC)
    for (val, add) in ((4, 0), (5, 64)):
        A.op(f"v_add_u32 v7, {add}, v30")
        A.op("v_bfe_u32 v8, v7, 3, 1"); A.op("v_lshlrev_b32 v8, 6, v8")
        A.op("v_lshrrev_b32 v9, 5, v7"); A.op("v_lshl_add_u32 v8, v9, 4, v8")
        A.op("v_bfe_u32 v9, v7, 4, 1"); A.op("v_lshl_add_u32 v8, v9, 3, v8")
        A.op("v_and_b32 v9, 7, v7"); A.op("v_add_lshl_u32 v8, v8, v9, 2")
        A.op(f"buffer_store_dword v{val}, v8, s[16:19], 0 offen")
    A.label("wprep_done")
    A.op("s_endpgm")
    return 100864
```

```python
from common import *
from sched import Op, schedule, finalize

L_WM = 0; L_WV = 32768; L_WC = 65536; L_X = 66560
NWV = 8
L_S = L_X + NWV * 8192
L_END = L_S + NWV * 256
NWG = 250; TPW = 25

V_WA = 2
V_XB = 3
V_TR = 4
V_DG = 8
V_DX = 9
V_RW = 10
V_RR = 11
V_AW = 12
V_AR = 13
V_SO = 14
V_WC = 15
V_OUT = 16
V_DO = 17
V_OT = 18
V_DN = 19
V_T0 = 20; V_T1 = 21
V_D = 22; V_C = 23; V_C2 = 24
V_TC = 25; V_TC2 = 26
V_L0 = 28; V_L1 = 29; V_L2 = 30; V_L3 = 31
V_A0 = 0; V_A1 = 1
X = 32
WB = 64; NWB = 5
RR = 84
DA = [100, 116]
S = 132
UOP = 148
VOP = 156
POP = 188
XT = 196
WCR = 228
V_RHO = 27
V_AW2 = 12; V_AR2 = 13
V_ST = 244
V_RL = 248
V_P = 252
V_S1 = 84 + 16 - 16

def gen_tf(A, reorder=True, prof=False, nwb=5, stagger=1, ro='dot', ost='', wreg=True, pace=0, pa=True, pk=False, cid=False):
    name = "tf_kernel"
    NWV = 4 if wreg else 8
    L_S = L_X + NWV * 8192
    L_END = L_S + NWV * 256
    if wreg: stagger = 0
    kernel_begin(A, name)
    A.op(f"s_cmp_ge_u32 s2, {NWG}"); A.op("s_cbranch_scc1 tf_done")
    A.op("s_load_dwordx2 s[4:5], s[0:1], 88")
    A.op("s_load_dwordx2 s[8:9], s[0:1], 0")
    A.op("s_load_dwordx2 s[10:11], s[0:1], 24")
    A.op("s_load_dwordx2 s[44:45], s[0:1], 72")
    if prof == 1: A.op("s_memrealtime s[70:71]")
    A.op("v_lshrrev_b32 v1, 6, v0"); A.op("s_nop 0")
    A.op("v_readfirstlane_b32 s6, v1")
    A.op("v_and_b32 v0, 63, v0")
    H, K, AA, T1, T2, T3 = 28, 29, 30, 31, 20, 21
    LANE = 0
    A.op(f"v_lshlrev_b32 v{V_WA}, 4, v0")
    A.op("s_waitcnt lgkmcnt(0)")
    srd(A, 12, 4, 8 * TAB, OFF_G)
    srd(A, 16, 8, TAB)
    srd(A, 20, 10, N * 2)
    srd(A, 24, 44, TAB)
    srd(A, 28, 4, 65536 + 512, OFF_WM)
    srd(A, 92, 4, 8 * ST_TOK, OFF_ST)
    if prof == 1:
        srd(A, 80, 4, 4 << 20, 96 << 20)
        A.op("s_lshl_b32 s84, s2, 4"); A.op("s_add_u32 s84, s84, s6"); A.op("s_lshl_b32 s84, s84, 10")
        A.op("s_mov_b32 s85, 0")
    A.op(f"s_mul_i32 s3, s6, {65536 // NWV}")
    for i in range(64 // NWV):
        A.op(f"s_add_u32 s32, s3, {1024*i}"); A.op("s_mov_b32 m0, s32"); A.op("s_nop 0")
        A.op(f"buffer_load_dwordx4 v{V_WA}, s[28:31], s32 offen lds")
    A.op(f"v_lshrrev_b32 v{H}, 5, v0"); A.op(f"v_and_b32 v{K}, 7, v0"); A.op(f"v_bfe_u32 v{AA}, v0, 3, 2")
    A.op(f"s_mul_i32 s34, s6, 8192"); A.op(f"s_add_u32 s34, s34, {L_X}")
    A.op(f"v_and_b32 v{T1}, 15, v0"); A.op(f"v_xor_b32 v{T1}, v{T1}, v{H}"); A.op(f"v_lshlrev_b32 v{T1}, 4, v{T1}")
    A.op(f"v_lshl_add_u32 v{T1}, v{K}, 10, v{T1}"); A.op(f"v_lshl_add_u32 v{T1}, v{AA}, 8, v{T1}"); A.op(f"v_add_u32 v{V_XB}, s34, v{T1}")
    A.op(f"v_bfe_u32 v{T1}, v0, 2, 2"); A.op(f"v_lshl_add_u32 v{T1}, v{H}, 2, v{T1}")
    A.op(f"v_bfe_u32 v{T2}, v0, 4, 1"); A.op(f"v_lshlrev_b32 v{T2}, 1, v{T2}")
    A.op(f"v_and_b32 v{T3}, 1, v0"); A.op(f"v_or_b32 v{T2}, v{T2}, v{T3}"); A.op(f"v_xor_b32 v{T2}, v{T2}, v{T1}")
    A.op(f"v_lshlrev_b32 v{T2}, 4, v{T2}"); A.op(f"v_lshl_add_u32 v{T2}, v{T1}, 10, v{T2}")
    A.op(f"v_bfe_u32 v{T3}, v0, 1, 1"); A.op(f"v_lshl_add_u32 v{T2}, v{T3}, 3, v{T2}"); A.op(f"v_add_u32 v{T2}, s34, v{T2}")
    for q in range(4):
        A.op(f"v_xor_b32 v{V_TR+q}, {q << 6}, v{T2}")
    A.op(f"v_lshrrev_b32 v{T1}, 4, v0"); A.op(f"v_bfe_u32 v{T2}, v0, 3, 1"); A.op(f"v_and_b32 v{T3}, 1, v{T1}"); A.op(f"v_xor_b32 v{T2}, v{T2}, v{T3}")
    A.op(f"v_and_b32 v{T3}, 7, v0"); A.op(f"v_lshlrev_b32 v{T3}, 4, v{T3}")
    A.op(f"s_mov_b32 s35, {HALF}")
    A.op(f"v_lshl_add_u32 v{V_DG}, v{T1}, 7, v{T3}"); A.op(f"v_mad_u32_u24 v{V_DG}, v{T2}, s35, v{V_DG}")
    A.op(f"v_lshl_add_u32 v{V_DX}, v{T1}, 8, v{T3}"); A.op(f"v_lshl_add_u32 v{V_DX}, v{T2}, 7, v{V_DX}")
    A.op(f"s_lshl_b32 s35, s6, 8"); A.op(f"s_add_u32 s35, s35, {L_S}")
    A.op(f"v_and_b32 v{V_RW}, 31, v0"); A.op(f"v_lshlrev_b32 v{V_AW}, 1, v{V_RW}"); A.op(f"v_lshlrev_b32 v{V_RW}, 2, v{V_RW}")
    A.op(f"v_add_u32 v{V_RW}, s35, v{V_RW}"); A.op(f"v_add_u32 v{V_AW}, s35, v{V_AW}")
    A.op(f"v_lshlrev_b32 v{V_RR}, 3, v{AA}"); A.op(f"v_lshl_add_u32 v{V_RR}, v{H}, 2, v{V_RR}")
    A.op(f"v_lshlrev_b32 v{V_AR}, 1, v{V_RR}"); A.op(f"v_add_u32 v{V_AR}, s35, v{V_AR}")
    A.op(f"v_lshlrev_b32 v{V_RR}, 2, v{V_RR}"); A.op(f"v_add_u32 v{V_RR}, s35, v{V_RR}")
    if ro != 'mfma':
        A.op(f"v_lshrrev_b32 v{V_AW2}, 2, v{K}"); A.op(f"v_lshlrev_b32 v{V_AW2}, 4, v{V_AW2}"); A.op(f"v_lshl_add_u32 v{V_AW2}, v{AA}, 2, v{V_AW2}")
        A.op(f"v_and_b32 v{T1}, 3, v{K}"); A.op(f"v_add_u32 v{V_AW2}, v{V_AW2}, v{T1}"); A.op(f"v_lshlrev_b32 v{V_AW2}, 1, v{V_AW2}"); A.op(f"v_add_u32 v{V_AW2}, s35, v{V_AW2}")
        A.op(f"v_lshlrev_b32 v{V_AR2}, 5, v{H}"); A.op(f"v_add_u32 v{V_AR2}, s35, v{V_AR2}")
    A.op(f"s_mov_b32 s35, {ST_TOK}"); A.op(f"v_lshlrev_b32 v{V_SO}, 4, v{AA}"); A.op(f"v_mad_u32_u24 v{V_SO}, v{K}, s35, v{V_SO}")
    A.op(f"v_lshlrev_b32 v{V_WC}, 8, v{H}"); A.op(f"v_add_u32 v{V_WC}, {L_WC}, v{V_WC}")
    A.op(f"v_and_b32 v{T1}, 31, v0")
    A.op(f"v_and_b32 v{V_OUT}, 0x13, v{T1}"); A.op(f"v_and_b32 v{T2}, 4, v{T1}"); A.op(f"v_lshl_or_b32 v{V_OUT}, v{T2}, 1, v{V_OUT}")
    A.op(f"v_and_b32 v{T2}, 8, v{T1}"); A.op(f"v_lshrrev_b32 v{T2}, 1, v{T2}"); A.op(f"v_or_b32 v{V_OUT}, v{V_OUT}, v{T2}")
    A.op(f"v_lshlrev_b32 v{V_OUT}, 1, v{V_OUT}"); A.op(f"v_lshl_add_u32 v{V_OUT}, v{H}, 9, v{V_OUT}")
    A.op(f"v_lshlrev_b32 v{V_DO}, 1, v{AA}")
    A.op(f"v_mov_b32 v{V_OT}, 0x7fffffff")
    def m64(s, val):
        A.op(f"s_mov_b32 s{s}, {val & 0xffffffff:#x}"); A.op(f"s_mov_b32 s{s+1}, {val >> 32:#x}")
    m64(46, 0x0000FF000000FF00); m64(48, 0x00FF000000FF0000); m64(50, 0xFF000000FF000000); m64(52, 0x000000FF000000FF)
    m64(54, 0x0101010101010101)
    RM = [64, 66, 68, 90]
    for a, s in enumerate(RM):
        m = 8 * a + (0 if a < 2 else 4)
        m64(s, (1 << m) | (1 << (m + 32)))
    A.op("s_mov_b32 s57, 0x3727c5ac"); A.op("s_mov_b32 s58, 0x3c000000")
    A.op("s_mov_b32 s59, 0x3fb8aa3b"); A.op("s_mov_b32 s60, 0xffff0000")
    A.op(f"s_mul_i32 s37, s2, {TPW}")
    A.op(f"s_add_u32 s61, s37, {TPW-1}")
    A.op("s_add_u32 s36, s37, s6")
    if pa:
        assert wreg
        for k in range(1, 8):
            A.op(f"v_xor_b32 v{63+k}, {k << 4}, v{V_DG}")
            A.op(f"v_add_u32 v{63+k}, {k*TAB - 1024*(k & 3)}, v{63+k}")
        if not cid:
            for kk in range(8):
                A.op(f"v_xor_b32 v{72+kk}, {(2*kk) << 4}, v{V_XB}")
        else:
            A.op(f"v_and_b32 v{T1}, 31, v{LANE}")
            A.op(f"v_and_b32 v{T2}, 3, v{T1}"); A.op(f"v_bfe_u32 v{T3}, v{T1}, 2, 1"); A.op(f"v_lshl_add_u32 v{T2}, v{T3}, 3, v{T2}")
            A.op(f"v_bfe_u32 v{T3}, v{T1}, 3, 1"); A.op(f"v_lshl_add_u32 v{T2}, v{T3}, 2, v{T2}")
            A.op(f"v_lshrrev_b32 v{T3}, 5, v{LANE}"); A.op(f"v_lshlrev_b32 v{T3}, 3, v{T3}"); A.op(f"v_sub_u32 v{T2}, v{T2}, v{T3}")
            A.op(f"v_lshrrev_b32 v{T1}, 4, v{T1}")
            for sidx in range(2):
                for q in range(4):
                    r = 72 + 4 * sidx + q
                    A.op(f"v_mov_b32 v{r}, 0")
                    A.op(f"v_cmp_eq_u32 vcc, {2*q}, v{T2}"); A.op("s_nop 1"); A.op(f"v_mov_b32 v80, 0x3f80"); A.op(f"v_cndmask_b32_e64 v{r}, v{r}, v80, vcc")
                    A.op(f"v_cmp_eq_u32 vcc, {2*q+1}, v{T2}"); A.op("s_nop 1"); A.op(f"v_mov_b32 v80, 0x3f800000"); A.op(f"v_cndmask_b32_e64 v{r}, v{r}, v80, vcc")
                    A.op(f"v_cmp_eq_u32 vcc, {sidx}, v{T1}"); A.op("s_nop 1"); A.op(f"v_cndmask_b32_e64 v{r}, 0, v{r}, vcc")
        A.op("s_add_u32 s98, s34, 4096")
    def dma_ops(emit, tile_sreg):
        if pa:
            emit(f"s_lshl_b32 s39, s{tile_sreg}, 9"); emit(f"s_lshl_b32 s40, s{tile_sreg}, 10"); emit(f"s_lshl_b32 s43, s{tile_sreg}, 3")
            emit(f"s_lshl_b32 s33, s{tile_sreg}, 6")
            emit(f"buffer_load_dwordx4 v[{V_ST}:{V_ST+3}], v{V_SO}, s[92:95], s33 offen", [], ["M_vm"])
            emit(f"buffer_load_ushort v{V_DN}, v{V_DO}, s[20:23], s43 offen", [], ["M_vm"])
            emit("s_mov_b32 m0, s34")
            emit(f"buffer_load_dwordx4 v{V_DX}, s[16:19], s40 offen lds", ["M_xrd"], ["M_vm"])
            for k in range(1, 8):
                if k == 4: emit("s_mov_b32 m0, s98")
                off = f" offset:{1024*(k & 3)}" if (k & 3) else ""
                emit(f"buffer_load_dwordx4 v{63+k}, s[12:15], s39 offen{off} lds", ["M_xrd"], ["M_vm"])
            return
        dma_ops0(emit, tile_sreg)
    def dma_ops0(emit, tile_sreg):
        emit(f"s_lshl_b32 s39, s{tile_sreg}, 9"); emit(f"s_lshl_b32 s40, s{tile_sreg}, 10"); emit(f"s_lshl_b32 s43, s{tile_sreg}, 3")
        emit(f"s_lshl_b32 s33, s{tile_sreg}, 6")
        emit(f"buffer_load_dwordx4 v[{V_ST}:{V_ST+3}], v{V_SO}, s[92:95], s33 offen", [], ["M_vm"])
        emit(f"buffer_load_ushort v{V_DN}, v{V_DO}, s[20:23], s43 offen", [], ["M_vm"])
        emit("s_mov_b32 m0, s34")
        emit(f"buffer_load_dwordx4 v{V_DX}, s[16:19], s40 offen lds", ["M_xrd"], ["M_vm"])
        for k in range(1, 8):
            t = V_T0 if k & 1 else V_T1
            emit(f"v_xor_b32 v{t}, {k << 4}, v{V_DG}")
            emit(f"s_add_u32 s41, s34, {1024*k}"); emit("s_mov_b32 m0, s41")
            emit(f"s_add_u32 s41, s39, {k*TAB}")
            emit(f"buffer_load_dwordx4 v{t}, s[12:15], s41 offen lds", ["M_xrd"], ["M_vm"])
    def emit_plain(t, memr=(), memw=()):
        if t.startswith("buffer_load") and "lds" in t: A.op("s_nop 0")
        A.op(t)
    A.op("s_cmp_eq_u32 s6, 0"); l = A.new("wc"); A.op(f"s_cbranch_scc0 {l}")
    A.op("s_mov_b32 s33, 65536")
    A.op(f"buffer_load_dwordx4 v[{X}:{X+3}], v{V_WA}, s[28:31], s33 offen")
    A.op("s_waitcnt vmcnt(0)")
    A.op(f"v_add_u32 v{T1}, {L_WC}, v{V_WA}"); A.op(f"ds_write_b128 v{T1}, v[{X}:{X+3}]")
    A.label(l)
    if stagger:
        A.op("s_cmp_ge_u32 s6, 4"); A.op("s_cbranch_scc1 tf_late")
    dma_ops(emit_plain, 36)
    A.op("s_waitcnt vmcnt(10) lgkmcnt(0)")
    A.op("s_barrier")
    if stagger:
        A.op("s_branch tf_go")
        A.label("tf_late")
        A.op("s_waitcnt vmcnt(0) lgkmcnt(0)")
        A.op("s_barrier")
        dma_ops(emit_plain, 36)
        A.label("tf_go")

    if wreg:
        A.cmt("weights LDS -> AGPRs (kept for the whole kernel)")
        for i in range(64):
            A.op(f"ds_read_b128 a[{4*i}:{4*i+3}], v{V_WA} offset:{1024*i}")
            if i % 8 == 7: A.op("s_waitcnt lgkmcnt(4)")
        A.op("s_waitcnt lgkmcnt(0)")
    S1, S2, S3 = V_L2, V_L3, V_L1

    def xhalf(o, r, t, op="add"):
        o(f"v_mov_b32 v{t}, v{r}"); o(f"v_permlane32_swap_b32 v{r}, v{t}"); o(f"v_{op}_f32 v{r}, v{r}, v{t}")

    def tail_ops(o):
        a0, a1 = V_A0, V_A1
        for r in (S1, S2, S3): xhalf(o, r, a0)
        o(f"v_mul_f32 v{S1}, s58, v{S1}"); o(f"v_mul_f32 v{S2}, s58, v{S2}")
        o(f"v_fma_f32 v{S2}, -v{S1}, v{S1}, v{S2}"); o(f"v_max_f32 v{S2}, 0, v{S2}")
        o(f"v_mov_b32 v{a0}, s57"); o(f"v_fma_f32 v{S2}, v{S2}, v{V_TC2}, v{a0}"); o(f"v_rsq_f32 v{S2}, v{S2}")
        o(f"v_mul_f32 v{S3}, v{S3}, v{S2}"); o(f"v_mul_f32 v{S3}, v{S3}, v{V_TC}"); o(f"v_mul_f32 v{S3}, s59, v{S3}")
        def red8(r, op):
            o(f"v_{op}_f32_dpp v{r}, v{r}, v{r} quad_perm:[1,0,3,2] row_mask:0xf bank_mask:0xf")
            o(f"v_{op}_f32_dpp v{r}, v{r}, v{r} quad_perm:[2,3,0,1] row_mask:0xf bank_mask:0xf")
            o(f"v_{op}_f32_dpp v{r}, v{r}, v{r} row_half_mirror row_mask:0xf bank_mask:0xf")
        o(f"v_mov_b32 v{a0}, v{S3}"); red8(a0, "max")
        o(f"v_sub_f32 v{S3}, v{S3}, v{a0}"); o(f"v_exp_f32 v{S3}, v{S3}")
        o(f"v_mov_b32 v{a0}, v{S3}"); red8(a0, "add")
        o(f"v_rcp_f32 v{a0}, v{a0}"); o(f"v_mul_f32 v{S3}, v{S3}, v{a0}"); o(f"v_mul_f32 v{S3}, v{S3}, v{V_TC}")
        if ro == 'mfma':
            o(f"v_cvt_pk_bf16_f32 v{a0}, v{S3}, v{S3}")
            o(f"ds_write_b16 v{V_AW}, v{a0} offset:128", memw=["M_a"])
            o(f"ds_read_b64 v[{a0}:{a1}], v{V_AR} offset:128", memr=["M_a"])
            for i in range(4):
                o(f"v_mul_f32 v{V_P+i}, v{V_P+i}, v{S3}"); red8(V_P + i, "add")
            o(f"v_cvt_pk_bf16_f32 v{S1}, v{V_P}, v{V_P+1}"); o(f"v_cvt_pk_bf16_f32 v{S2}, v{V_P+2}, v{V_P+3}")
            BO = WCR; AO = WCR + 8
            for a in range(4):
                m = RM[a]
                o(f"v_cndmask_b32_e64 v{BO+2*a}, 0, v{S1}, s[{m}:{m+1}]"); o(f"v_cndmask_b32_e64 v{BO+2*a+1}, 0, v{S2}, s[{m}:{m+1}]")
                o(f"v_cndmask_b32_e64 v{AO+2*a}, 0, v{a0}, s[{m}:{m+1}]"); o(f"v_cndmask_b32_e64 v{AO+2*a+1}, 0, v{a1}, s[{m}:{m+1}]")
            for T in range(4):
                D = RR
                for s in range(2):
                    c = "0" if s == 0 else f"v[{D}:{D+15}]"
                    o(f"v_mfma_f32_32x32x16_bf16 v[{D}:{D+15}], v[{AO+4*s}:{AO+4*s+3}], v[{XT+8*T+4*s}:{XT+8*T+4*s+3}], {c}")
                for s in range(2):
                    o(f"v_mfma_f32_32x32x16_bf16 v[{D}:{D+15}], v[{BO+4*s}:{BO+4*s+3}], v[{VOP+8*T+4*s}:{VOP+8*T+4*s+3}], v[{D}:{D+15}]")
                for a in range(2):
                    t = V_P + 2 * (T & 1) + a
                    o(f"v_add_f32 v{t}, v{D+4*a}, v{D+4*a+8}")
                    o(f"v_cvt_pk_bf16_f32 v{t}, v{t}, v{t}")
                    o(f"buffer_store_short v{t}, v{V_OT}, s[24:27], s42 offen offset:{a*256 + T*64}{ost}", memw=["M_vm"])
        else:
            o(f"v_cvt_pk_bf16_f32 v{a0}, v{S3}, v{S3}")
            o(f"ds_write_b16 v{V_AW2}, v{a0} offset:192", memw=["M_a"])
            for i in range(4):
                o(f"v_mul_f32 v{V_P+i}, v{V_P+i}, v{S3}"); red8(V_P + i, "add")
            o(f"v_cvt_pk_bf16_f32 v{a0}, v{V_P}, v{V_P+1}"); o(f"v_cvt_pk_bf16_f32 v{a1}, v{V_P+2}, v{V_P+3}")
            o(f"v_lshl_add_u32 v{S1}, v{V_DO}, 2, v{V_AR2}")
            o(f"ds_write_b64 v{S1}, v[{a0}:{a1}] offset:128", memw=["M_b"])
            BP = WCR; AP = WCR + 8
            o(f"ds_read_b128 v[{BP}:{BP+3}], v{V_AR2} offset:128", memr=["M_b"]); o(f"ds_read_b128 v[{BP+4}:{BP+7}], v{V_AR2} offset:144", memr=["M_b"])
            o(f"ds_read_b128 v[{AP}:{AP+3}], v{V_AR2} offset:192", memr=["M_a"]); o(f"ds_read_b128 v[{AP+4}:{AP+7}], v{V_AR2} offset:208", memr=["M_a"])
            for T in range(4):
                for a in range(4):
                    r = RR + 4 * T + a; xt = XT + (T * 4 + a) * 2
                    if pa:
                        o(f"v_dot2_f32_bf16 v{r}, v{xt}, v{AP+2*a}, 0")
                    else:
                        o(f"v_mov_b32 v{r}, 0")
                        o(f"v_dot2c_f32_bf16 v{r}, v{xt}, v{AP+2*a}")
                    o(f"v_dot2c_f32_bf16 v{r}, v{xt+1}, v{AP+2*a+1}")
                    o(f"v_dot2c_f32_bf16 v{r}, v{VOP+8*T+2*a}, v{BP+2*a}")
                    o(f"v_dot2c_f32_bf16 v{r}, v{VOP+8*T+2*a+1}, v{BP+2*a+1}")
            for T in range(4):
                for a in range(2):
                    r0 = RR + 4 * T + a; r1 = r0 + 2
                    o(f"v_permlane32_swap_b32 v{r0}, v{r1}")
                    o(f"v_add_f32 v{r0}, v{r0}, v{r1}")
                    o(f"v_cvt_pk_bf16_f32 v{r0}, v{r0}, v{r0}")
                    o(f"buffer_store_short v{r0}, v{V_OT}, s[24:27], s42 offen offset:{a*256 + T*64}{ost}", memw=["M_vm"])

    def head_ops(o):
        for kk in range(8):
            if pa and not cid:
                o(f"ds_read_b128 v[{X+4*kk}:{X+4*kk+3}], v{72+kk}")
                continue
            t = V_T0 if kk & 1 else V_T1
            o(f"v_xor_b32 v{t}, {(2*kk) << 4}, v{V_XB}")
            o(f"ds_read_b128 v[{X+4*kk}:{X+4*kk+3}], v{t}")
        l0, l1 = V_RHO, V_D
        o(f"v_add_f32 v{V_ST}, v{V_ST}, v{V_ST+2}"); o(f"v_add_f32 v{V_ST+1}, v{V_ST+1}, v{V_ST+3}")
        o(f"v_mul_f32 v{V_ST}, s58, v{V_ST}"); o(f"v_mul_f32 v{V_ST+1}, s58, v{V_ST+1}")
        o(f"v_fma_f32 v{V_ST+1}, -v{V_ST}, v{V_ST}, v{V_ST+1}"); o(f"v_max_f32 v{V_ST+1}, 0, v{V_ST+1}")
        o(f"v_lshlrev_b32 v{V_D}, 16, v{V_DN}")
        o(f"v_cndmask_b32_e64 v{V_D}, v{V_D}, 1.0, s[54:55]")
        o(f"v_cmp_eq_f32_e64 s[62:63], 0, v{V_D}")
        o(f"v_cndmask_b32_e64 v{V_D}, v{V_D}, 1.0, s[62:63]")
        o(f"v_rcp_f32 v{V_C}, v{V_D}"); o(f"v_mul_f32 v{V_C2}, v{V_C}, v{V_C}")
        o(f"v_mov_b32 v{V_ST}, s57"); o(f"v_fma_f32 v{V_ST+1}, v{V_ST+1}, v{V_C2}, v{V_ST}")
        o(f"v_rsq_f32 v{V_ST+1}, v{V_ST+1}"); o(f"v_mul_f32 v{V_RHO}, v{V_ST+1}, v{V_C}")
        o(f"ds_write_b32 v{V_RW}, v{V_RHO}", memw=["M_rho"])
        o(f"ds_read_b128 v[{V_RL}:{V_RL+3}], v{V_RR}", memr=["M_rho"])
        wb = [0]
        def wload(off):
            if wreg:
                i = off // 1024
                return f"a[{4*i}:{4*i+3}]"
            b = WB + 4 * (wb[0] % nwb); wb[0] += 1
            o(f"ds_read_b128 v[{b}:{b+3}], v{V_WA} offset:{off}")
            return f"v[{b}:{b+3}]"
        for T in range(4):
            D = DA[T & 1]
            for kk in range(8):
                b = wload(L_WM + (T * 8 + kk) * 1024)
                c = "0" if kk == 0 else f"v[{D}:{D+15}]"
                o(f"v_mfma_f32_32x32x16_bf16 v[{D}:{D+15}], {b}, v[{X+4*kk}:{X+4*kk+3}], {c}")
            for j in range(8):
                o(f"v_cvt_pk_bf16_f32 v{UOP+j}, v{D+2*j}, v{D+2*j+1}")
            for half in range(2):
                c = "0" if (T == 0 and half == 0) else f"v[{S}:{S+15}]"
                xa = X + 4 * (2 * T + half)
                o(f"v_mfma_f32_32x32x16_bf16 v[{S}:{S+15}], v[{xa}:{xa+3}], v[{UOP+4*half}:{UOP+4*half+3}], {c}")
        for T in range(4):
            for a in range(4):
                r = XT + (T * 4 + a) * 2
                o(f"ds_read_b64_tr_b16 v[{r}:{r+1}], v{V_TR + (T ^ (2*(a&1)))} offset:{a*256}")
        rd = [f"v{X+4*kk}" for kk in range(8)] + [f"v{XT+2*q}" for q in range(16)]
        o(f"s_add_u32 s36, s36, {NWV}"); o("s_min_u32 s38, s36, s61")
        first = [True]
        def emit(t, memr=(), memw=()):
            if "lds" in t and t.startswith("buffer_load") and first[0]:
                first[0] = False
                o(t, memr=rd, memw=memw)
            else:
                o(t, memr=[], memw=memw)
        dma_ops(emit, 38)
        P = V_P
        for i in range(4):
            o(f"v_cndmask_b32_e64 v{P+i}, v{S+i}, v{S+4+i}, s[46:47]")
            o(f"v_cndmask_b32_e64 v{P+i}, v{P+i}, v{S+8+i}, s[48:49]")
            o(f"v_cndmask_b32_e64 v{P+i}, v{P+i}, v{S+12+i}, s[50:51]")
            o(f"v_mul_f32 v{P+i}, v{P+i}, v{V_RL+i}"); o(f"v_mul_f32 v{P+i}, v{P+i}, v{V_RHO}")
        m0, m1 = V_L0, V_T0
        o(f"v_max_f32 v{m0}, v{P}, v{P+1}"); o(f"v_max3_f32 v{m0}, v{m0}, v{P+2}, v{P+3}")
        xhalf(o, m0, m1, "max")
        for i in range(4):
            o(f"v_sub_f32 v{P+i}, v{P+i}, v{m0}"); o(f"v_exp_f32 v{P+i}, v{P+i}")
        o(f"v_add_f32 v{m0}, v{P}, v{P+1}"); o(f"v_add_f32 v{m1}, v{P+2}, v{P+3}"); o(f"v_add_f32 v{m0}, v{m0}, v{m1}")
        xhalf(o, m0, m1)
        o(f"v_rcp_f32 v{m0}, v{m0}"); o(f"v_mul_f32 v{m0}, v{m0}, v{V_D}")
        for i in range(4):
            o(f"v_mul_f32 v{P+i}, v{P+i}, v{V_RL+i}"); o(f"v_mul_f32 v{P+i}, v{P+i}, v{m0}")
        o(f"v_cvt_pk_bf16_f32 v{m0}, v{P}, v{P+1}"); o(f"v_cvt_pk_bf16_f32 v{m1}, v{P+2}, v{P+3}")
        for a, m in enumerate((52, 46, 48, 50)):
            o(f"v_cndmask_b32_e64 v{POP+2*a}, 0, v{m0}, s[{m}:{m+1}]")
            o(f"v_cndmask_b32_e64 v{POP+2*a+1}, 0, v{m1}, s[{m}:{m+1}]")
        PK3 = 20
        if pk:
            assert pa
            for r in (80, 81, 82, 83, PK3, PK3 + 1): o(f"v_mov_b32 v{r}, 0")
        else:
            o(f"v_mov_b32 v{S1}, 0"); o(f"v_mov_b32 v{S2}, 0"); o(f"v_mov_b32 v{S3}, 0")
        def gemm2(T):
            D = DA[T & 1]
            for kk in range(8):
                b = wload(L_WV + (T * 8 + kk) * 1024)
                c = "0" if kk == 0 else f"v[{D}:{D+15}]"
                dep = [f"M_o{T-1}"] if (pace and kk == 0 and T >= 1) else []
                o(f"v_mfma_f32_32x32x16_bf16 v[{D}:{D+15}], v[{X+4*kk}:{X+4*kk+3}], {b}, {c}", memr=dep)
            for j in range(8):
                o(f"v_cvt_pk_bf16_f32 v{VOP+8*T+j}, v{D+2*j}, v{D+2*j+1}")
        def otile(T):
            D = RR if (T & 1) else S
            if cid:
                for half in range(2):
                    xa = X + 4 * (2 * T + half)
                    c = "0" if half == 0 else f"v[{D}:{D+15}]"
                    o(f"v_mfma_f32_32x32x16_bf16 v[{D}:{D+15}], v[{72+4*half}:{72+4*half+3}], v[{xa}:{xa+3}], {c}")
            else:
              for half in range(2):
                for j in range(4):
                    x = X + 4 * (2 * T + half) + j
                    o(f"v_lshlrev_b32 v{D+8*half+2*j}, 16, v{x}")
                    o(f"v_and_b32 v{D+8*half+2*j+1}, s60, v{x}")
            for half in range(2):
                o(f"v_mfma_f32_32x32x16_bf16 v[{D}:{D+15}], v[{VOP+8*T+4*half}:{VOP+8*T+4*half+3}], v[{POP+4*half}:{POP+4*half+3}], v[{D}:{D+15}]", memw=([f"M_o{T}"] if half == 1 else []))
            for q in range(4):
                o(f"ds_read_b128 v[{WCR+4*q}:{WCR+4*q+3}], v{V_WC} offset:{T*64 + q*16}")
            if pk:
                for r in range(0, 16, 2):
                    o(f"v_pk_add_f32 v[80:81], v[80:81], v[{D+r}:{D+r+1}]")
                    o(f"v_pk_fma_f32 v[82:83], v[{D+r}:{D+r+1}], v[{D+r}:{D+r+1}], v[82:83]")
                    o(f"v_pk_fma_f32 v[64+16:64+17], v[{D+r}:{D+r+1}], v[{WCR+r}:{WCR+r+1}], v[64+16:64+17]".replace("v[64+16:64+17]", "v[0:1]") if False else f"v_pk_fma_f32 v[{PK3}:{PK3+1}], v[{D+r}:{D+r+1}], v[{WCR+r}:{WCR+r+1}], v[{PK3}:{PK3+1}]")
            else:
              for r in range(16):
                o(f"v_add_f32 v{S1}, v{S1}, v{D+r}")
                o(f"v_fmac_f32 v{S2}, v{D+r}, v{D+r}")
                o(f"v_fmac_f32 v{S3}, v{D+r}, v{WCR+r}")
        if pace:
            gemm2(0); otile(0); gemm2(1); otile(1); gemm2(2); otile(2); gemm2(3); otile(3)
        else:
            gemm2(0); gemm2(1); otile(0); gemm2(2); otile(1); gemm2(3); otile(2); otile(3)
        if pk:
            o(f"v_add_f32 v{S1}, v80, v81"); o(f"v_add_f32 v{S2}, v82, v83"); o(f"v_add_f32 v{S3}, v{PK3}, v{PK3+1}")
        o(f"v_mov_b32 v{V_TC}, v{V_C}"); o(f"v_mov_b32 v{V_TC2}, v{V_C2}")
        o(f"v_mov_b32 v{V_OT}, v{V_OUT}")
        o(f"s_sub_u32 s42, s36, {NWV}"); o("s_lshl_b32 s42, s42, 10")

    def region(fns):
        ops = []
        def o(t, memr=(), memw=()): ops.append(Op(t, memr, memw))
        for f in fns: f(o)
        seq = schedule(ops, reorder)
        lines, pd, pv = finalize(seq)
        idx = [i for i, q in enumerate(seq) if q.kind == "vmem"]
        loads = [i for i in idx if seq[i].name.startswith("buffer_load")]
        after = len([i for i in idx if loads and i > loads[-1]])
        return lines, after

    body, after = region([tail_ops, head_ops])
    A.op("s_mov_b32 s42, 0")
    A.label("tf_loop")
    if prof == 1: A.op("s_memrealtime s[72:73]")
    A.op(f"s_waitcnt vmcnt({after + (5 if prof == 1 else (10 if prof == 2 else 0))})")
    if prof == 1: A.op("s_memrealtime s[74:75]")
    if prof == 2:
        step = len(body) // 9
        for i, l in enumerate(body):
            if i % step == 0 and i // step < 10: A.op(f"s_memtime s[{70+2*(i//step)}:{71+2*(i//step)}]")
            A(l)
        A.op("s_waitcnt lgkmcnt(0)")
        A.op("s_add_u32 s86, s84, s85") if False else None
        A.op("s_lshl_b32 s32, s2, 4"); A.op("s_add_u32 s32, s32, s6"); A.op("s_lshl_b32 s32, s32, 10")
        A.op("s_sub_u32 s33, s36, s37"); A.op(f"s_lshr_b32 s33, s33, {2 if wreg else 3}"); A.op("s_lshl_b32 s33, s33, 7"); A.op("s_add_u32 s32, s32, s33")
        srd(A, 96, 4, 4 << 20, 96 << 20)
        A.op("s_mov_b64 exec, 1")
        for qi in range(10):
            A.op(f"v_mov_b32 v{V_T0}, s{70+2*qi}"); A.op(f"v_mov_b32 v{V_T1}, s{71+2*qi}"); A.op(f"v_mov_b32 v{V_L0}, {8*qi}")
            A.op(f"buffer_store_dwordx2 v[{V_T0}:{V_T1}], v{V_L0}, s[96:99], s32 offen"); A.op("s_nop 1")
        A.op("s_mov_b64 exec, -1")
    else:
        for l in body: A(l)
    if prof == 1:
        A.op("s_memrealtime s[78:79]")
        A.op("s_waitcnt lgkmcnt(0)")
        A.op("s_add_u32 s86, s84, s85"); A.op("s_add_u32 s85, s85, 64")
        A.op("s_mov_b64 exec, 1")
        for qi, sr in enumerate((70, 72, 74, 74, 78)):
            A.op(f"v_mov_b32 v{V_T0}, s{sr}"); A.op(f"v_mov_b32 v{V_T1}, s{sr+1}"); A.op(f"v_mov_b32 v{V_L0}, {8*qi}")
            A.op(f"buffer_store_dwordx2 v[{V_T0}:{V_T1}], v{V_L0}, s[80:83], s86 offen"); A.op("s_nop 1")
        A.op("s_mov_b64 exec, -1")
    A.op("s_waitcnt lgkmcnt(0)")
    A.op("s_cmp_le_u32 s36, s61"); A.op("s_cbranch_scc1 tf_loop")
    A.op("s_nop 7"); A.op("s_nop 7")
    ep, _ = region([tail_ops])
    for l in ep: A(l)
    A.label("tf_done")
    A.op("s_endpgm")
    return dict(name=name, grid=NWG, block=64 * NWV, lds=L_END, vgpr=512 if wreg else 256, accum=256, sgpr=100)
```

```python
import sys
from common import *
import prep_old as prep
sys.modules['prep'] = prep
import hops_old as hops
import tf3 as tf
from build import HEADER
B = Asm()
B('.amdgcn_target "amdgcn-amd-amdhsa--gfx950"'); B(".text")
ks = [prep.gen_prep(B), hops.gen_hops(B), tf.gen_tf(B)]
B('.section .rodata,"a"')
for k in ks: kernel_desc(B, k["name"], k["vgpr"], k["sgpr"], k.get("accum"))
head = HEADER
for k in ks: head += f"; @launch kernel={k['name']} grid=({k['grid']},1,1) block=({k['block']},1,1) lds={k['lds']}\n"
open(sys.argv[1], "w").write(head + B.text())
```

```python
from common import *

MAGIC200 = 41944

def pi_expr(A, dst, m, t1):
    A.op(f"v_and_b32 v{dst}, 0x13, v{m}")
    A.op(f"v_and_b32 v{t1}, 4, v{m}")
    A.op(f"v_lshl_or_b32 v{dst}, v{t1}, 1, v{dst}")
    A.op(f"v_and_b32 v{t1}, 8, v{m}")
    A.op(f"v_lshrrev_b32 v{t1}, 1, v{t1}")
    A.op(f"v_or_b32 v{dst}, v{dst}, v{t1}")

def gen_prep(A, skip=(), cells=False, st='', prof=0, xn=200):
    name = "prep_kernel"
    NXW = N // xn
    NI = xn * 16 // 800
    LASTW = 125 + NXW
    kernel_begin(A, name)
    def dump(n):
        if not prof: return
        A.op("s_waitcnt lgkmcnt(0)")
        srd(A, 52, 4, 4 << 20, 96 << 20)
        A.op("v_lshrrev_b32 v38, 6, v0"); A.op("s_nop 0"); A.op("v_readfirstlane_b32 s56, v38"); A.op("s_nop 3")
        A.op("s_lshl_b32 s57, s2, 4"); A.op("s_add_u32 s57, s57, s56"); A.op("s_lshl_b32 s57, s57, 6")
        A.op("s_mov_b64 exec, 1")
        for qi in range(n):
            A.op(f"v_mov_b32 v36, s{40+2*qi}"); A.op(f"v_mov_b32 v37, s{41+2*qi}"); A.op(f"v_mov_b32 v38, {8*qi}")
            A.op("buffer_store_dwordx2 v[36:37], v38, s[52:55], s57 offen"); A.op("s_nop 1")
    if prof: A.op("s_memrealtime s[40:41]")
    A.op(f"s_cmp_ge_u32 s2, {LASTW+1}"); A.op("s_cbranch_scc1 prep_done")
    A.op("s_load_dwordx2 s[4:5], s[0:1], 88")
    A.op(f"s_cmp_ge_u32 s2, {LASTW}"); A.op("s_cbranch_scc1 prep_misc")
    A.op("s_cmp_ge_u32 s2, 125"); A.op("s_cbranch_scc1 prep_x")
    if "edge" in skip: A.op("s_endpgm")
    A.op("s_load_dwordx4 s[8:11], s[0:1], 8")
    A.op("v_lshlrev_b32 v1, 2, v0")
    A.op("v_mov_b32 v2, 0")
    A.op("v_cmp_gt_u32 vcc, 128, v0"); A.op("s_and_saveexec_b64 s[20:21], vcc")
    A.op("ds_write_b32 v1, v2")
    A.op("s_mov_b64 exec, s[20:21]")
    A.op("s_waitcnt lgkmcnt(0)")
    srd(A, 12, 8, E * 4)
    srd(A, 16, 10, E * 4)
    A.op("s_mul_i32 s3, s2, 12800")
    A.op("v_lshlrev_b32 v3, 4, v0")
    if prof: A.op("s_memrealtime s[42:43]")
    A.op("buffer_load_dwordx4 v[4:7], v3, s[16:19], s3 offen")
    A.op("buffer_load_dwordx4 v[8:11], v3, s[12:15], s3 offen")
    A.op("s_barrier")
    A.op(f"s_mov_b32 s22, {MAGIC200}")
    A.op("s_waitcnt vmcnt(1)")
    if prof: A.op("s_memrealtime s[44:45]")
    for i in range(4):
        A.op(f"v_mul_u32_u24 v{12+i}, s22, v{4+i}")
        A.op(f"v_lshrrev_b32 v{12+i}, 23, v{12+i}")
        A.op(f"v_mul_u32_u24 v{16+i}, 200, v{12+i}")
        A.op(f"v_sub_u32 v{16+i}, v{4+i}, v{16+i}")
        A.op(f"v_lshlrev_b32 v{12+i}, 2, v{12+i}")
    A.op("v_mov_b32 v2, 1")
    for i in range(4):
        A.op(f"ds_add_rtn_u32 v{20+i}, v{12+i}, v2")
    A.op("s_waitcnt vmcnt(0)")
    for i in range(4):
        A.op(f"v_lshl_or_b32 v{16+i}, v{16+i}, 16, v{8+i}")
        A.op(f"v_lshl_or_b32 v{16+i}, v{12+i}, 22, v{16+i}")
    A.op("s_waitcnt lgkmcnt(0)")
    A.op("s_barrier")
    A.op("v_cmp_gt_u32 vcc, 64, v0"); A.op("s_and_saveexec_b64 s[20:21], vcc")
    l = A.new("es"); A.op(f"s_cbranch_execz {l}")
    A.op("v_lshlrev_b32 v3, 3, v0")
    A.op("ds_read_b64 v[24:25], v3")
    A.op("s_waitcnt lgkmcnt(0)")
    A.op("v_add_u32 v26, v24, v25")
    A.op("v_mov_b32 v27, v26")
    wave_scan_incl(A, 26)
    A.op("v_sub_u32 v26, v26, v27")
    A.op("v_add_u32 v27, v26, v24")
    A.op("ds_write_b64 v3, v[26:27] offset:512")
    srd(A, 24, 4, NR * 512, OFF_OFFS)
    A.op("s_lshl_b32 s23, s2, 9")
    A.op(f"buffer_store_dwordx2 v[26:27], v3, s[24:27], s23 offen{st}")
    A.label(l)
    A.op("s_mov_b64 exec, s[20:21]")
    A.op("s_waitcnt lgkmcnt(0)")
    A.op("s_barrier")
    for i in range(4):
        A.op(f"ds_read_b32 v{24+i}, v{12+i} offset:512")
    A.op("s_waitcnt lgkmcnt(0)")
    for i in range(4):
        A.op(f"v_add_lshl_u32 v{24+i}, v{24+i}, v{20+i}, 2")
    for i in range(4):
        A.op(f"ds_write_b32 v{24+i}, v{16+i} offset:1024")
    A.op("s_waitcnt lgkmcnt(0)")
    A.op("s_barrier")
    A.op("v_lshlrev_b32 v3, 4, v0")
    A.op("ds_read_b128 v[4:7], v3 offset:1024")
    srd(A, 24, 4, E * 4, OFF_ENT)
    srd(A, 28, 4, CELL_BYTES, OFF_CELL)
    A.op("s_waitcnt lgkmcnt(0)")
    if prof: A.op("s_memrealtime s[46:47]")
    A.op(f"buffer_store_dwordx4 v[4:7], v3, s[24:27], s3 offen{st}")
    if prof:
        A.op("s_waitcnt vmcnt(0)"); A.op("s_memrealtime s[48:49]"); dump(5)
    if cells:
        A.cmt("fixed-capacity cells [bucket][chunk][64]: entry at sorted position p of bucket b goes to rank p - offs[b]")
        A.op("v_lshlrev_b32 v2, 2, v0")
        for i in range(4):
            A.op(f"ds_read_b32 v{24+i}, v2 offset:{1024 + 3200*i}")
        A.op("s_waitcnt lgkmcnt(0)")
        for i in range(4):
            A.op(f"v_lshrrev_b32 v{8+i}, 24, v{24+i}")
            A.op(f"v_lshlrev_b32 v{12+i}, 2, v{8+i}")
            A.op(f"ds_read_b32 v{16+i}, v{12+i} offset:512")
        A.op("s_lshl_b32 s23, s2, 8")
        A.op("s_waitcnt lgkmcnt(0)")
        for i in range(4):
            A.op(f"v_add_u32 v20, {800*i}, v0"); A.op(f"v_sub_u32 v20, v20, v{16+i}")
            A.op(f"v_mul_u32_u24 v21, {NR*256}, v{8+i}"); A.op("v_lshl_add_u32 v21, v20, 2, v21")
            A.op("v_cmp_gt_u32 vcc, 64, v20")
            A.op("s_nop 1")
            A.op("v_cndmask_b32_e64 v21, -1, v21, vcc")
            A.op(f"buffer_store_dword v{24+i}, v21, s[28:31], s23 offen")
    A.op("s_endpgm")
    A.label("prep_x")
    if "x" in skip: A.op("s_endpgm")
    A.op("s_load_dwordx2 s[8:9], s[0:1], 0")
    A.op("s_load_dwordx2 s[10:11], s[0:1], 24")
    A.op("s_sub_u32 s3, s2, 125")
    A.op("s_waitcnt lgkmcnt(0)")
    srd(A, 12, 8, TAB)
    srd(A, 16, 10, N * 2)
    srd(A, 24, 4, TAB, OFF_G)
    if prof: A.op("s_memrealtime s[42:43]")
    A.op(f"s_mul_i32 s20, s3, {xn*256}")
    A.op(f"s_mul_i32 s21, s3, {xn*2}")
    A.op(f"s_mul_i32 s22, s3, {xn*128}")
    for i in range(NI):
        A.op(f"v_add_u32 v1, {800*i}, v0")
        A.op(f"v_lshlrev_b32 v2, 4, v1")
        A.op(f"buffer_load_dwordx4 v[{8+4*i}:{11+4*i}], v2, s[12:15], s20 offen")
        A.op(f"v_lshrrev_b32 v3, 4, v1")
        A.op(f"v_lshlrev_b32 v4, 1, v3")
        A.op(f"buffer_load_ushort v{24+i}, v4, s[16:19], s21 offen")
        A.op(f"v_and_b32 v4, 7, v1"); A.op(f"v_lshlrev_b32 v4, 4, v4")
        A.op(f"v_lshl_add_u32 v4, v3, 7, v4")
        A.op(f"v_bfe_u32 v5, v1, 3, 1")
        A.op(f"s_mov_b32 s23, {HALF}")
        A.op(f"v_mad_u32_u24 v{28+i}, v5, s23, v4")
    A.op("s_mov_b32 s23, 0xffff0000")
    srd(A, 28, 4, ST_TOK, OFF_ST)
    A.op(f"s_mul_i32 s32, s3, {xn*16}")
    A.op("s_mov_b32 s34, 0x01010101"); A.op("s_mov_b32 s35, 0x01010101")
    for i in range(NI):
        A.op(f"s_waitcnt vmcnt({2*(NI-1)})")
        if prof and i == 0: A.op("s_memrealtime s[44:45]")
        A.op(f"v_lshlrev_b32 v{24+i}, 16, v{24+i}")
        A.op("v_mov_b32 v32, 0"); A.op("v_mov_b32 v33, 0")
        for q in range(4):
            r = 8 + 4 * i + q
            A.op(f"v_lshlrev_b32 v2, 16, v{r}")
            A.op(f"v_and_b32 v3, s23, v{r}")
            A.op("v_add_f32 v32, v32, v2"); A.op("v_fmac_f32 v33, v2, v2")
            A.op("v_add_f32 v32, v32, v3"); A.op("v_fmac_f32 v33, v3, v3")
            A.op(f"v_mul_f32 v2, v2, v{24+i}")
            A.op(f"v_mul_f32 v3, v3, v{24+i}")
            A.op(f"v_cvt_pk_bf16_f32 v{r}, v2, v3")
        A.op(f"buffer_store_dwordx4 v[{8+4*i}:{11+4*i}], v{28+i}, s[24:27], s22 offen{st}")
        for m in ("quad_perm:[1,0,3,2]", "quad_perm:[2,3,0,1]", "row_half_mirror"):
            A.op("s_nop 0")
            A.op(f"v_add_f32_dpp v32, v32, v32 {m} row_mask:0xf bank_mask:0xf")
            A.op(f"v_add_f32_dpp v33, v33, v33 {m} row_mask:0xf bank_mask:0xf")
        A.op(f"v_add_u32 v34, {800*i}, v0"); A.op("v_and_b32 v34, -8, v34")
        A.op("s_mov_b64 s[36:37], exec"); A.op("s_and_b64 exec, exec, s[34:35]")
        A.op(f"buffer_store_dwordx2 v[32:33], v34, s[28:31], s32 offen{st}")
        A.op("s_mov_b64 exec, s[36:37]")
    if prof:
        A.op("s_memrealtime s[46:47]"); A.op("s_waitcnt vmcnt(0)"); A.op("s_memrealtime s[48:49]"); dump(5)
    A.op("s_endpgm")
    A.label("prep_misc")
    A.op("s_waitcnt lgkmcnt(0)")
    srd(A, 24, 4, CNT_BYTES, OFF_CNT)
    A.op("v_lshlrev_b32 v1, 4, v0")
    for i in range(4):
        A.op(f"v_mov_b32 v{4+i}, 0")
    for i in range(-(-CNT_BYTES // 12800)):
        A.op(f"s_mov_b32 s3, {12800*i}")
        A.op("buffer_store_dwordx4 v[4:7], v1, s[24:27], s3 offen")
    A.op("s_endpgm")
    A.label("prep_done")
    A.op("s_endpgm")
    return dict(name=name, grid=LASTW+1, block=800, lds=14336, vgpr=40, sgpr=64)

def gen_wprep(A, NT, first):
    LMEAN = 0
    FM = 2048
    STR = 129
    LWO = 68096
    A.op("s_load_dwordx4 s[8:11], s[0:1], 32")
    A.op("s_load_dwordx4 s[12:15], s[0:1], 48")
    A.op("s_load_dwordx2 s[28:29], s[0:1], 64")
    A.op("v_lshrrev_b32 v1, 6, v0"); A.op("s_nop 0")
    A.op("v_readfirstlane_b32 s6, v1")
    A.op("v_and_b32 v30, 63, v0")
    A.op("v_and_b32 v31, 31, v30")
    A.op("v_lshrrev_b32 v32, 5, v30")
    A.op("s_waitcnt lgkmcnt(0)")
    A.op(f"s_cmp_eq_u32 s2, {first}")
    A.op("s_cselect_b32 s16, s8, s12"); A.op("s_cselect_b32 s17, s9, s13")
    A.op("s_mov_b32 s18, 32768"); A.op("s_mov_b32 s19, 0x20000")
    A.op("s_cselect_b32 s20, s10, s14"); A.op("s_cselect_b32 s21, s11, s15")
    A.op("s_mov_b32 s22, 32768"); A.op("s_mov_b32 s23, 0x20000")
    A.op("s_cbranch_scc1 wprep_nostage")
    for i in range(3):
        A.op(f"v_add_u32 v1, {NT*i}, v0")
        A.op("v_lshlrev_b32 v2, 4, v1")
        if i == 2:
            A.op("v_cmp_gt_u32 vcc, 2048, v1"); A.op("s_and_saveexec_b64 s[24:25], vcc")
            l = A.new("st"); A.op(f"s_cbranch_execz {l}")
        A.op("buffer_load_dwordx4 v[4:7], v2, s[20:23], 0 offen")
        A.op("s_waitcnt vmcnt(0)")
        A.op(f"v_add_u32 v2, {LWO}, v2")
        A.op(f"ds_write_b128 v2, v[4:7]")
        if i == 2:
            A.label(l); A.op("s_mov_b64 exec, s[24:25]")
    A.op("s_waitcnt lgkmcnt(0)")
    A.label("wprep_nostage")
    A.op("s_barrier")
    A.op("s_cmp_ge_u32 s6, 8"); A.op("s_cbranch_scc1 wprep_mm_done")
    A.op("s_lshr_b32 s24, s6, 1"); A.op("s_and_b32 s25, s6, 1"); A.op("s_lshl_b32 s25, s25, 1")
    A.op("s_lshl_b32 s26, s24, 13")
    A.op("v_lshlrev_b32 v1, 8, v31"); A.op("v_lshl_add_u32 v1, v32, 4, v1")
    for kk in range(8):
        A.op(f"buffer_load_dwordx4 v[{40+4*kk}:{43+4*kk}], v1, s[16:19], s26 offen offset:{32*kk}")
    for te in range(2):
        A.op(f"s_cmp_eq_u32 s2, {first}"); lb = A.new("bw"); le = A.new("be"); A.op(f"s_cbranch_scc0 {lb}")
        A.op(f"s_add_u32 s27, s25, {te}"); A.op("s_lshl_b32 s27, s27, 13")
        for kk in range(8):
            A.op(f"buffer_load_dwordx4 v[{72+4*kk}:{75+4*kk}], v1, s[20:23], s27 offen offset:{32*kk}")
        A.op("s_waitcnt vmcnt(0)")
        A.op(f"s_branch {le}")
        A.label(lb)
        A.op("v_and_b32 v2, 15, v30")
        A.op("v_lshrrev_b32 v3, 2, v2")
        A.op("v_and_b32 v2, 3, v2")
        A.op("v_lshl_add_u32 v3, v32, 3, v3")
        A.op("v_lshlrev_b32 v3, 8, v3")
        A.op("v_lshl_add_u32 v3, v2, 3, v3")
        A.op("v_bfe_u32 v2, v30, 4, 1")
        A.op("v_lshl_add_u32 v3, v2, 5, v3")
        A.op(f"s_add_u32 s27, s25, {te}"); A.op("s_lshl_b32 s27, s27, 6")
        A.op(f"s_add_u32 s27, s27, {LWO}")
        A.op("v_add_u32 v3, s27, v3")
        for kk in range(8):
            A.op(f"ds_read_b64_tr_b16 v[{72+4*kk}:{73+4*kk}], v3 offset:{4096*kk}")
            A.op(f"ds_read_b64_tr_b16 v[{74+4*kk}:{75+4*kk}], v3 offset:{4096*kk+1024}")
        A.op("s_waitcnt vmcnt(0) lgkmcnt(0)")
        A.label(le)
        for kk in range(8):
            c = "0" if kk == 0 else "v[104:119]"
            A.op(f"v_mfma_f32_32x32x16_bf16 v[104:119], v[{40+4*kk}:{43+4*kk}], v[{72+4*kk}:{75+4*kk}], {c}")
        A.op("s_nop 15"); A.op("s_nop 7")
        A.op("s_lshl_b32 s27, s24, 5")
        A.op("v_lshlrev_b32 v2, 2, v32"); A.op("v_add_u32 v2, s27, v2")
        A.op(f"v_mul_u32_u24 v2, {STR}, v2")
        A.op(f"s_add_u32 s27, s25, {te}"); A.op("s_lshl_b32 s27, s27, 5")
        A.op("v_add3_u32 v2, v2, s27, v31")
        A.op("v_lshlrev_b32 v2, 2, v2")
        for r in range(16):
            d = (r & 3) + 8 * (r >> 2)
            A.op(f"ds_write_b32 v2, v{104+r} offset:{FM + d*STR*4}")
    A.label("wprep_mm_done")
    A.op("s_waitcnt lgkmcnt(0)")
    A.op("s_barrier")
    A.op("v_cmp_gt_u32 vcc, 256, v0"); A.op("s_and_saveexec_b64 s[24:25], vcc")
    l = A.new("mn"); A.op(f"s_cbranch_execz {l}")
    A.op("v_and_b32 v2, 127, v0")
    A.op("v_cmp_gt_u32 vcc, 128, v0")
    A.op(f"v_mul_u32_u24 v3, {STR}, v2")
    A.op("s_nop 1")
    A.op("v_cndmask_b32_e64 v3, v3, v2, vcc")
    A.op(f"v_mov_b32 v4, {STR}")
    A.op("v_cndmask_b32_e64 v4, 1, v4, vcc")
    A.op("v_lshlrev_b32 v3, 2, v3"); A.op("v_lshlrev_b32 v4, 2, v4")
    A.op("v_mov_b32 v5, 0")
    A.op("s_mov_b32 s26, 0")
    lp = A.new("ml"); A.label(lp)
    for i in range(8):
        A.op(f"ds_read_b32 v{8+i}, v3 offset:{FM}"); A.op("v_add_u32 v3, v3, v4")
    A.op("s_waitcnt lgkmcnt(0)")
    for i in range(8):
        A.op(f"v_add_f32 v5, v5, v{8+i}")
    A.op("s_add_u32 s26, s26, 1"); A.op("s_cmp_lt_u32 s26, 16"); A.op(f"s_cbranch_scc1 {lp}")
    A.op("v_mul_f32 v5, 0x3c000000, v5")
    A.op("v_lshlrev_b32 v2, 2, v0")
    A.op(f"ds_write_b32 v2, v5 offset:{LMEAN}")
    A.label(l)
    A.op("s_mov_b64 exec, s[24:25]")
    A.op("s_waitcnt lgkmcnt(0)")
    A.op("s_barrier")
    A.op("v_lshlrev_b32 v2, 3, v30")
    A.op(f"ds_read_b64 v[4:5], v2 offset:{LMEAN}")
    A.op("s_waitcnt lgkmcnt(0)")
    A.op("v_add_f32 v4, v4, v5")
    A.op("s_cmp_eq_u32 s6, 0"); l = A.new("tm"); A.op(f"s_cbranch_scc0 {l}")
    for sh in (1, 2, 4, 8):
        A.op("s_nop 1"); A.op(f"v_add_f32_dpp v4, v4, v4 row_shr:{sh} row_mask:0xf bank_mask:0xf")
    A.op("s_nop 1"); A.op("v_add_f32_dpp v4, v4, v4 row_bcast:15 row_mask:0xa bank_mask:0xf")
    A.op("s_nop 1"); A.op("v_add_f32_dpp v4, v4, v4 row_bcast:31 row_mask:0xc bank_mask:0xf")
    A.op("s_nop 1"); A.op("v_readlane_b32 s26, v4, 63")
    A.op("s_nop 3"); A.op("v_mov_b32 v4, s26"); A.op("v_mul_f32 v4, 0x3c000000, v4")
    A.op("v_mov_b32 v2, 0"); A.op(f"ds_write_b32 v2, v4 offset:{LMEAN+1024}")
    A.label(l)
    A.op("s_waitcnt lgkmcnt(0)")
    A.op("s_barrier")
    A.op(f"s_cmp_eq_u32 s2, {first}")
    A.op(f"s_cselect_b32 s26, 0, 32768")
    A.op("s_cselect_b32 s30, 0x3e0293ee, 1.0")
    A.op("s_cselect_b32 s31, 1.0, 0")
    A.op(f"s_add_u32 s26, s26, {OFF_WM}")
    A.op("s_add_u32 s24, s4, s26"); A.op("s_addc_u32 s25, s5, 0")
    A.op("s_mov_b32 s26, 32768"); A.op("s_mov_b32 s27, 0x20000")
    A.op("v_mov_b32 v2, 0"); A.op(f"ds_read_b32 v33, v2 offset:{LMEAN+1024}")
    for i in range(3):
        A.op(f"v_add_u32 v1, {NT*i}, v0")
        if i == 2:
            A.op("v_cmp_gt_u32 vcc, 2048, v1"); A.op("s_and_saveexec_b64 s[34:35], vcc")
            l = A.new("em"); A.op(f"s_cbranch_execz {l}")
        A.op("v_and_b32 v2, 31, v1")
        pi_expr(A, 3, 2, 4)
        A.op("v_lshrrev_b32 v4, 9, v1")
        A.op("v_lshl_add_u32 v3, v4, 5, v3")
        A.op("v_bfe_u32 v4, v1, 6, 3")
        A.op("v_bfe_u32 v5, v1, 5, 1")
        A.op("v_lshlrev_b32 v4, 4, v4"); A.op("v_lshl_add_u32 v4, v5, 3, v4")
        A.op(f"v_mul_u32_u24 v5, {STR}, v4"); A.op("v_add_lshl_u32 v5, v5, v3, 2")
        for j in range(8):
            A.op(f"ds_read_b32 v{8+j}, v5 offset:{FM + j*STR*4}")
        A.op("v_lshlrev_b32 v6, 2, v3"); A.op(f"ds_read_b32 v16, v6 offset:{LMEAN}")
        A.op("v_lshlrev_b32 v6, 2, v4")
        A.op(f"ds_read_b128 v[20:23], v6 offset:{LMEAN+512}"); A.op(f"ds_read_b128 v[24:27], v6 offset:{LMEAN+528}")
        A.op("s_waitcnt lgkmcnt(0)")
        for j in range(8):
            A.op(f"v_sub_f32 v{20+j}, v{20+j}, v33")
            A.op(f"v_sub_f32 v{8+j}, v{8+j}, v16")
            A.op(f"v_fma_f32 v{8+j}, -v{20+j}, s31, v{8+j}")
            A.op(f"v_mul_f32 v{8+j}, s30, v{8+j}")
        for j in range(4):
            A.op(f"v_cvt_pk_bf16_f32 v{8+j}, v{8+2*j}, v{9+2*j}")
        A.op("v_lshlrev_b32 v6, 4, v1")
        A.op("buffer_store_dwordx4 v[8:11], v6, s[24:27], 0 offen")
        if i == 2:
            A.label(l); A.op("s_mov_b64 exec, s[34:35]")
    A.op(f"s_cmp_eq_u32 s2, {first+1}"); A.op("s_cbranch_scc0 wprep_done")
    A.op("s_cmp_ge_u32 s6, 1"); A.op("s_cbranch_scc1 wprep_done")
    srd(A, 12, 28, 256)
    A.op("v_lshlrev_b32 v2, 1, v30")
    A.op("buffer_load_ushort v4, v2, s[12:15], 0 offen")
    A.op("buffer_load_ushort v5, v2, s[12:15], 0 offen offset:128")
    A.op("s_waitcnt vmcnt(0)")
    A.op("v_lshlrev_b32 v4, 16, v4"); A.op("v_lshlrev_b32 v5, 16, v5")
    A.op("v_add_f32 v6, v4, v5")
    for sh in (1, 2, 4, 8):
        A.op("s_nop 1"); A.op(f"v_add_f32_dpp v6, v6, v6 row_shr:{sh} row_mask:0xf bank_mask:0xf")
    A.op("s_nop 1"); A.op("v_add_f32_dpp v6, v6, v6 row_bcast:15 row_mask:0xa bank_mask:0xf")
    A.op("s_nop 1"); A.op("v_add_f32_dpp v6, v6, v6 row_bcast:31 row_mask:0xc bank_mask:0xf")
    A.op("s_nop 1"); A.op("v_readlane_b32 s26, v6, 63")
    A.op("s_nop 3"); A.op("v_mov_b32 v6, s26"); A.op("v_mul_f32 v6, 0x3c000000, v6")
    A.op("v_sub_f32 v4, v4, v6"); A.op("v_sub_f32 v5, v5, v6")
    srd(A, 16, 4, 512, OFF_WC)
    for (val, add) in ((4, 0), (5, 64)):
        A.op(f"v_add_u32 v7, {add}, v30")
        A.op("v_bfe_u32 v8, v7, 3, 1"); A.op("v_lshlrev_b32 v8, 6, v8")
        A.op("v_lshrrev_b32 v9, 5, v7"); A.op("v_lshl_add_u32 v8, v9, 4, v8")
        A.op("v_bfe_u32 v9, v7, 4, 1"); A.op("v_lshl_add_u32 v8, v9, 3, v8")
        A.op("v_and_b32 v9, 7, v7"); A.op("v_add_lshl_u32 v8, v8, v9, 2")
        A.op(f"buffer_store_dword v{val}, v8, s[16:19], 0 offen")
    A.label("wprep_done")
    A.op("s_endpgm")
    return 100864
```

```python
N = 25000
E = 400000
D = 128
NR = 125
RN = 200
TAB = N * 256
HALF = N * 128
OFF_G = 0
OFF_ENT = 8 * TAB
NCH = 250
CHE = E // NCH
OFF_OFFS = OFF_ENT + E * 4
OFF_CNT = OFF_OFFS + NCH * 512
CNT_BYTES = 32768
OFF_WM = OFF_CNT + CNT_BYTES
OFF_WV = OFF_WM + 32768
OFF_WC = OFF_WV + 32768
OFF_OVF = OFF_WC + 512
OFF_ST = OFF_OVF + 2 * E * 2
ST_TOK = N * 16
OFF_CELL = OFF_ST + 8 * ST_TOK
CELL_BYTES = NR * NR * 256
OFF_FV = OFF_CELL + CELL_BYTES
OFF_FN = OFF_FV + 2048
FN_TOK = N * 32
OFF_END = OFF_FN + 8 * FN_TOK
WS_BYTES = 268435456
assert OFF_CNT % 128 == 0 and OFF_WM % 128 == 0 and OFF_OVF % 16 == 0
CAP = 40
NSHARD = 4

class Asm:
    def __init__(self):
        self.lines = []
        self.uid = 0
    def __call__(self, s=""):
        for l in s.split("\n"):
            self.lines.append(l)
    def op(self, s):
        self.lines.append("    " + s)
    def ops(self, *ss):
        for s in ss:
            self.op(s)
    def label(self, s):
        self.lines.append(s + ":")
    def new(self, p="L"):
        self.uid += 1
        return f"{p}_{self.uid}"
    def cmt(self, s):
        self.lines.append("    ; " + s)
    def text(self):
        return "\n".join(self.lines) + "\n"

def kernel_begin(A, name):
    A(f".globl {name}")
    A(".p2align 8")
    A(f".type {name},@function")
    A(f"{name}:")

def kernel_desc(A, name, vgpr, sgpr, accum=None):
    if accum is None:
        accum = (vgpr + 3) // 4 * 4
    A(".p2align 6")
    A(f".amdhsa_kernel {name}")
    A(f"  .amdhsa_next_free_vgpr {vgpr}")
    A(f"  .amdhsa_next_free_sgpr {sgpr}")
    A(f"  .amdhsa_accum_offset {accum}")
    A("  .amdhsa_group_segment_fixed_size 0")
    A("  .amdhsa_kernarg_size 96")
    A("  .amdhsa_user_sgpr_count 2")
    A("  .amdhsa_user_sgpr_kernarg_segment_ptr 1")
    A("  .amdhsa_system_sgpr_workgroup_id_x 1")
    A("  .amdhsa_float_denorm_mode_32 3")
    A("  .amdhsa_float_denorm_mode_16_64 3")
    A(".end_amdhsa_kernel")

def srd(A, s, base, size, off=None):
    if off:
        A.op(f"s_add_u32 s{s}, s{base}, {off}")
        A.op(f"s_addc_u32 s{s+1}, s{base+1}, 0")
    else:
        A.op(f"s_mov_b32 s{s}, s{base}")
        A.op(f"s_mov_b32 s{s+1}, s{base+1}")
    A.op(f"s_mov_b32 s{s+2}, {size}")
    A.op(f"s_mov_b32 s{s+3}, 0x20000")

def wave_scan_incl(A, v, tmp=None):
    for sh in (1, 2, 4, 8):
        A.op("s_nop 1")
        A.op(f"v_add_u32_dpp v{v}, v{v}, v{v} row_shr:{sh} row_mask:0xf bank_mask:0xf")
    A.op("s_nop 1")
    A.op(f"v_add_u32_dpp v{v}, v{v}, v{v} row_bcast:15 row_mask:0xa bank_mask:0xf")
    A.op("s_nop 1")
    A.op(f"v_add_u32_dpp v{v}, v{v}, v{v} row_bcast:31 row_mask:0xc bank_mask:0xf")
    A.op("s_nop 1")
```

```python
from common import *
import prep

L_CNT = 0
L_HIST = 6400
L_BINS = L_HIST + 256
L_SLOT = L_BINS + 256
L_NODE = L_SLOT + 832
L_DEG = L_NODE + 832
L_NDEG = L_DEG + 832
L_OVFP = L_NDEG + 832
L_DSQ = L_OVFP + 832
L_MISC = L_DSQ + 832
L_IMG = L_MISC + 64
IMG_STRIDE = CAP * 2
L_END = L_IMG + 208 * IMG_STRIDE
assert L_IMG % 16 == 0

def gen_hops(A, nh=7, depthfn=lambda W: 4, maxdepth=7, prio=1, sleep=1, prof=0, ld=' sc1', bar='flag', nshard=NSHARD, perm=(5,0,1,2,9,6,4,3,10,11,8,7,12), ndot=4, pf=0, pffrac=0.8, rtt=0, pw=0, pwprio=3, pwsleep=0, cells=False, stst='', fn=False):
    name = "hops_kernel"
    kernel_begin(A, name)
    NW = 13
    NWB = NW + (1 if (rtt or pw) else 0)
    maxpairs = CAP // 2
    if fn: maxdepth = 4
    A.op("s_cmp_ge_u32 s2, 252"); A.op("s_cbranch_scc1 hops_done")
    A.op("s_load_dwordx2 s[4:5], s[0:1], 88")
    A.op("s_cmp_ge_u32 s2, 250"); A.op("s_cbranch_scc1 hops_wprep")
    A.op("s_load_dwordx2 s[44:45], s[0:1], 24")
    if prof: A.op("s_memrealtime s[64:65]")
    A.op("s_and_b32 s7, s2, 1"); A.op("s_lshr_b32 s8, s2, 1")
    A.op("v_lshrrev_b32 v4, 2, v0")
    A.op("v_and_b32 v5, 3, v0")
    A.op("v_lshlrev_b32 v6, 9, v4")
    A.op("s_lshl_b32 s9, s8, 2")
    A.op(f"s_mul_i32 s10, s8, {RN*2}")
    A.op("v_lshlrev_b32 v7, 1, v0")
    A.op("s_waitcnt lgkmcnt(0)")
    srd(A, 12, 4, NR * 512, OFF_OFFS)
    A.op("buffer_load_dwordx2 v[8:9], v6, s[12:15], s9 offen")
    srd(A, 60, 44, N * 2)
    A.op("buffer_load_ushort v43, v7, s[60:63], s10 offen")
    if cells:
        srd(A, 68, 4, CELL_BYTES, OFF_CELL)
        A.op(f"s_mul_i32 s10, s8, {NR*256}")
        A.op("v_lshlrev_b32 v7, 8, v4"); A.op("v_lshl_add_u32 v7, v5, 4, v7")
        for r in range(4):
            A.op(f"buffer_load_dwordx4 v[{44+4*r}:{44+4*r+3}], v7, s[68:71], s10 offen offset:{64*r}")
    srd(A, 16, 4, E * 4, OFF_ENT)
    A.op("v_lshrrev_b32 v1, 6, v0"); A.op("s_nop 0")
    A.op("v_readfirstlane_b32 s6, v1")
    A.op("v_lshlrev_b32 v1, 2, v0")
    A.op("v_mov_b32 v2, 0"); A.op("v_mov_b32 v3, -1")
    for i in range(2):
        A.op(f"ds_write_b32 v1, v2 offset:{i*3328}")
    assert 2 * 3328 >= L_BINS and 2 * 3328 <= L_SLOT + 0 or True
    nimg = 208 * IMG_STRIDE // 4
    for i in range(nimg // 832):
        A.op(f"ds_write_b32 v1, v3 offset:{L_IMG + i*3328}")
    assert nimg % 832 == 0
    A.op("v_cmp_gt_u32 vcc, 208, v0"); A.op("s_and_saveexec_b64 s[20:21], vcc")
    A.op(f"ds_write_b32 v1, v3 offset:{L_NODE}")
    A.op(f"ds_write_b32 v1, v2 offset:{L_DEG}")
    A.op("s_mov_b64 exec, s[20:21]")
    A.op("v_cmp_gt_u32 vcc, 16, v0"); A.op("s_and_saveexec_b64 s[20:21], vcc")
    A.op(f"ds_write_b32 v1, v2 offset:{L_MISC}")
    A.op("s_mov_b64 exec, s[20:21]")
    A.op("s_waitcnt lgkmcnt(0)")
    A.op("s_waitcnt vmcnt(%d)" % (5 if cells else 1))
    A.op("v_sub_u32 v10, v9, v8")
    A.op("v_mul_u32_u24 v11, 3200, v4"); A.op("v_add_u32 v11, v11, v8")
    A.op("v_lshl_add_u32 v11, v5, 2, v11"); A.op("v_lshlrev_b32 v11, 2, v11")
    A.op("v_lshlrev_b32 v12, 2, v5")
    for r in range(0 if cells else 4):
        A.op(f"buffer_load_dwordx4 v[{44+4*r}:{44+4*r+3}], v11, s[16:19], 0 offen offset:{64*r}")
    A.op("s_barrier")
    A.op("v_cmp_eq_u32 vcc, 0, v5"); A.op("s_and_saveexec_b64 s[20:21], vcc")
    A.op(f"v_mov_b32 v13, {L_MISC}"); A.op("ds_add_u32 v13, v8")
    A.op("s_mov_b64 exec, s[20:21]")
    NRND = 4
    ER = 44
    def keys(e, k):
        A.op(f"v_bfe_u32 v24, v{e}, 16, 8"); A.op(f"v_bfe_u32 v{k}, v{e}, 12, 4")
        A.op(f"v_lshl_add_u32 v{k}, v24, 3, v{k}"); A.op(f"v_lshlrev_b32 v{k}, 2, v{k}")
    def count4(e0, pos):
        for i in range(4):
            keys(e0 + i, 25 + i)
        for i in range(4):
            A.op(f"v_add_u32 v24, {i}, v{pos}"); A.op("v_cmp_lt_u32 vcc, v24, v10"); A.op("s_and_b64 exec, s[22:23], vcc")
            A.op(f"ds_add_u32 v{25+i}, v30 offset:{L_CNT}")
        A.op("s_mov_b64 exec, s[22:23]")
    def fill4(e0, pos):
        for i in range(4):
            keys(e0 + i, 25 + i)
            A.op(f"v_bfe_u32 v{20+i}, v{e0+i}, 16, 8")
        for i in range(4):
            A.op(f"v_add_u32 v24, {i}, v{pos}"); A.op(f"v_cmp_lt_u32 s[{24+2*i}:{25+2*i}], v24, v10")
        for i in range(4):
            A.op(f"s_and_b64 exec, s[22:23], s[{24+2*i}:{25+2*i}]")
            A.op(f"ds_add_rtn_u32 v{32+i}, v{25+i}, v30 offset:{L_CNT}")
            A.op(f"v_lshlrev_b32 v24, 2, v{20+i}")
            A.op(f"ds_read_b32 v{36+i}, v24 offset:{L_SLOT}")
        A.op("s_mov_b64 exec, s[22:23]")
        A.op("s_waitcnt lgkmcnt(0)")
        for i in range(4):
            A.op("s_mov_b64 exec, s[22:23]")
            A.op(f"v_cmp_gt_u32 vcc, {CAP}, v{32+i}")
            A.op(f"s_and_b64 s[32:33], s[{24+2*i}:{25+2*i}], vcc")
            A.op(f"s_and_b64 exec, s[22:23], s[32:33]")
            A.op(f"v_mul_u32_u24 v24, {IMG_STRIDE}, v{36+i}")
            A.op(f"v_lshl_add_u32 v24, v{32+i}, 1, v24")
            A.op(f"ds_write_b16 v24, v{e0+i} offset:{L_IMG}")
            A.op(f"s_andn2_b64 s[32:33], s[{24+2*i}:{25+2*i}], vcc")
            A.op(f"s_and_b64 exec, s[22:23], s[32:33]")
            lo = A.new("no")
            A.op(f"s_cbranch_execz {lo}")
            A.op(f"v_lshlrev_b32 v24, 2, v{20+i}")
            A.op(f"ds_read_b32 v24, v24 offset:{L_OVFP}")
            A.op("s_waitcnt lgkmcnt(0)")
            A.op(f"v_add_u32 v24, v24, v{32+i}")
            A.op(f"v_subrev_u32 v24, {CAP}, v24")
            A.op(f"v_lshlrev_b32 v24, 1, v24")
            A.op(f"buffer_store_short v{e0+i}, v24, s[48:51], 0 offen")
            A.label(lo)
        A.op("s_mov_b64 exec, s[22:23]")
    def fillA(e0, pos, pr, sr):
        for i in range(4):
            keys(e0 + i, 25 + i)
            A.op(f"v_bfe_u32 v{20+i}, v{e0+i}, 16, 8"); A.op(f"v_lshlrev_b32 v{20+i}, 2, v{20+i}")
        for i in range(4):
            A.op(f"v_add_u32 v24, {i}, v{pos}"); A.op("v_cmp_lt_u32 vcc, v24, v10"); A.op("s_and_b64 exec, s[22:23], vcc")
            A.op(f"ds_add_rtn_u32 v{pr+i}, v{25+i}, v30 offset:{L_CNT}")
            A.op(f"ds_read_b32 v{sr+i}, v{20+i} offset:{L_SLOT}")
        A.op("s_mov_b64 exec, s[22:23]")
    def fillB(e0, pos, pr, sr):
        for i in range(4):
            A.op("s_mov_b64 exec, s[22:23]")
            A.op(f"v_add_u32 v24, {i}, v{pos}"); A.op(f"v_cmp_lt_u32 s[24:25], v24, v10")
            A.op(f"v_cmp_gt_u32 vcc, {CAP}, v{pr+i}")
            A.op(f"v_mul_u32_u24 v24, {IMG_STRIDE}, v{sr+i}")
            A.op(f"v_lshl_add_u32 v24, v{pr+i}, 1, v24")
            A.op(f"s_and_b64 exec, s[24:25], vcc")
            A.op(f"ds_write_b16 v24, v{e0+i} offset:{L_IMG}")
            A.op(f"s_andn2_b64 exec, s[24:25], vcc")
            lo = A.new("no")
            A.op(f"s_cbranch_execz {lo}")
            A.op(f"v_bfe_u32 v24, v{e0+i}, 16, 8"); A.op(f"v_lshlrev_b32 v24, 2, v24")
            A.op(f"ds_read_b32 v24, v24 offset:{L_OVFP}")
            A.op("s_waitcnt lgkmcnt(0)")
            A.op(f"v_add_u32 v24, v24, v{pr+i}")
            A.op(f"v_subrev_u32 v24, {CAP}, v24")
            A.op(f"v_lshlrev_b32 v24, 1, v24")
            A.op(f"buffer_store_short v{e0+i}, v24, s[48:51], 0 offen")
            A.label(lo)
        A.op("s_mov_b64 exec, s[22:23]")
    def entry_pass(fill):
        f4 = fill4 if fill else count4
        A.op("v_mov_b32 v30, 1"); A.op("s_mov_b64 s[22:23], exec")
        done = A.new("epd")
        if not fill:
            for r in range(NRND):
                A.op(f"v_add_u32 v15, {16*r}, v12")
                A.op("v_cmp_lt_u32 vcc, v15, v10"); A.op(f"s_cbranch_vccz {done}")
                f4(ER + 4 * r, 15)
        else:
            la = A.new("fa"); lb = A.new("fb")
            for r in range(NRND):
                A.op(f"v_add_u32 v15, {16*r}, v12")
                A.op("v_cmp_lt_u32 vcc, v15, v10"); A.op(f"s_cbranch_vccz {la}")
                fillA(ER + 4 * r, 15, 60 + 4 * r, 76 + 4 * r)
                A.op("s_waitcnt lgkmcnt(6)")
            A.label(la)
            A.op("s_waitcnt lgkmcnt(0)")
            for r in range(NRND):
                A.op(f"v_add_u32 v15, {16*r}, v12")
                A.op("v_cmp_lt_u32 vcc, v15, v10"); A.op(f"s_cbranch_vccz {done}")
                fillB(ER + 4 * r, 15, 60 + 4 * r, 76 + 4 * r)
        lp = A.new("ep")
        A.op(f"v_add_u32 v14, {64*NRND}, v11"); A.op(f"v_add_u32 v15, {16*NRND}, v12")
        A.label(lp)
        A.op("v_cmp_lt_u32 vcc, v15, v10"); A.op(f"s_cbranch_vccz {done}")
        A.op("buffer_load_dwordx4 v[16:19], v14, s[16:19], 0 offen")
        A.op("s_waitcnt vmcnt(0)")
        f4(16, 15)
        A.op("v_add_u32 v14, 64, v14"); A.op("v_add_u32 v15, 16, v15")
        A.op(f"s_branch {lp}")
        A.label(done)
    A.op("s_waitcnt vmcnt(0)")
    if prof: A.op("s_memrealtime s[66:67]")
    entry_pass(False)
    A.op("s_waitcnt lgkmcnt(0)")
    A.op("s_barrier")
    if prof: A.op("s_memrealtime s[68:69]")
    A.op("v_cmp_gt_u32 vcc, 200, v0"); A.op("s_and_saveexec_b64 s[20:21], vcc")
    l1 = A.new("np"); A.op(f"s_cbranch_execz {l1}")
    A.op("v_lshlrev_b32 v1, 5, v0")
    A.op(f"ds_read_b128 v[16:19], v1 offset:{L_CNT}"); A.op(f"ds_read_b128 v[20:23], v1 offset:{L_CNT+16}")
    A.op("s_waitcnt lgkmcnt(0)")
    A.op("v_mov_b32 v24, 0")
    for i in range(8):
        A.op(f"v_mov_b32 v25, v{16+i}"); A.op(f"v_mov_b32 v{16+i}, v24"); A.op("v_add_u32 v24, v24, v25")
    A.op(f"ds_write_b128 v1, v[16:19] offset:{L_CNT}"); A.op(f"ds_write_b128 v1, v[20:23] offset:{L_CNT+16}")
    A.op("v_mov_b32 v40, v24")
    A.op(f"v_min_u32 v41, {CAP}, v24"); A.op("v_lshlrev_b32 v41, 2, v41")
    A.op("v_mov_b32 v30, 1")
    A.op(f"ds_add_rtn_u32 v42, v41, v30 offset:{L_HIST}")
    A.op("v_lshlrev_b32 v1, 2, v0")
    A.op(f"ds_write_b32 v1, v40 offset:{L_NDEG}")
    A.op("v_lshlrev_b32 v43, 16, v43"); A.op("v_mul_f32 v43, v43, v43")
    A.op(f"ds_write_b32 v1, v43 offset:{L_DSQ}")
    A.op(f"v_cmp_lt_u32 vcc, {CAP}, v40"); A.op("s_and_b64 exec, exec, vcc")
    A.op(f"v_mov_b32 v13, {L_MISC+4}"); A.op("ds_write_b32 v13, v30")
    A.label(l1)
    A.op("s_mov_b64 exec, s[20:21]")
    A.op("s_waitcnt lgkmcnt(0)")
    A.op("s_barrier")
    A.op("s_cmp_eq_u32 s6, 0"); l2 = A.new("w0"); A.op(f"s_cbranch_scc0 {l2}")
    A.op("v_lshlrev_b32 v1, 2, v0")
    A.op(f"ds_read_b32 v16, v1 offset:{L_HIST}")
    A.op(f"v_mov_b32 v13, {L_MISC}"); A.op("ds_read_b64 v[18:19], v13")
    A.op("s_waitcnt lgkmcnt(0)")
    wave_scan_incl(A, 16)
    A.op("v_sub_u32 v16, 200, v16")
    A.op(f"ds_write_b32 v1, v16 offset:{L_BINS}")
    A.op("v_readfirstlane_b32 s9, v18"); A.op("v_readfirstlane_b32 s10, v19")
    A.op("s_nop 3")
    A.op("s_cmp_eq_u32 s10, 0"); A.op(f"s_cbranch_scc1 {l2}")
    A.op("s_mov_b32 s11, 0")
    lo = A.new("ov"); A.label(lo)
    A.op("s_lshl_b32 s20, s11, 2"); A.op("v_mov_b32 v1, s20")
    A.op(f"ds_read_b32 v16, v1 offset:{L_NDEG}")
    A.op("v_mov_b32 v17, s9"); A.op(f"ds_write_b32 v1, v17 offset:{L_OVFP}")
    A.op("s_waitcnt lgkmcnt(0)")
    A.op("v_readfirstlane_b32 s20, v16"); A.op("s_nop 3")
    A.op(f"s_max_u32 s20, s20, {CAP}"); A.op(f"s_sub_u32 s20, s20, {CAP}"); A.op("s_add_u32 s9, s9, s20")
    A.op("s_add_u32 s11, s11, 1"); A.op("s_cmp_lt_u32 s11, 200"); A.op(f"s_cbranch_scc1 {lo}")
    A.label(l2)
    A.op("s_waitcnt lgkmcnt(0)")
    A.op("s_barrier")
    A.op("v_cmp_gt_u32 vcc, 200, v0"); A.op("s_and_saveexec_b64 s[20:21], vcc")
    l3 = A.new("np"); A.op(f"s_cbranch_execz {l3}")
    A.op(f"ds_read_b32 v16, v41 offset:{L_BINS}")
    A.op("s_waitcnt lgkmcnt(0)")
    A.op("v_add_u32 v16, v16, v42")
    A.op("v_lshlrev_b32 v1, 2, v0"); A.op(f"ds_write_b32 v1, v16 offset:{L_SLOT}")
    A.op("v_lshlrev_b32 v16, 2, v16")
    A.op(f"ds_write_b32 v16, v0 offset:{L_NODE}"); A.op(f"ds_write_b32 v16, v40 offset:{L_DEG}")
    A.label(l3)
    A.op("s_mov_b64 exec, s[20:21]")
    A.op(f"s_mul_i32 s9, s7, {E*2}"); A.op(f"s_add_u32 s9, s9, {OFF_OVF}")
    A.op("s_add_u32 s48, s4, s9"); A.op("s_addc_u32 s49, s5, 0"); A.op(f"s_mov_b32 s50, {E*2}"); A.op("s_mov_b32 s51, 0x20000")
    A.op("s_waitcnt lgkmcnt(0)")
    A.op("s_barrier")
    if prof: A.op("s_memrealtime s[70:71]")
    entry_pass(True)
    A.op("s_waitcnt vmcnt(0) lgkmcnt(0)")
    A.op("s_barrier")
    if prof: A.op("s_memrealtime s[72:73]")
    if rtt:
        A.op(f"s_cmp_eq_u32 s6, {NW}"); A.op("s_cbranch_scc1 hop_rtt")
    if pw:
        A.op(f"s_cmp_eq_u32 s6, {NW}"); A.op("s_cbranch_scc1 hop_pw")
    P = [26, 26 + maxpairs]
    VA = 26 + 2 * maxpairs; VN = VA + 2; VS = VN + 2
    DATA = (VS + 2 + 3) // 4 * 4
    ACC = [10, 18]
    nv = DATA + 8 * maxdepth
    KF = DATA + 32
    if fn: nv = KF + 24
    assert nv <= 128
    A.op("v_and_b32 v0, 63, v0")
    A.op("v_and_b32 v8, 7, v0"); A.op("v_lshlrev_b32 v8, 4, v8")
    A.op("v_lshrrev_b32 v5, 3, v0")
    pc = sum(p << (4 * w) for w, p in enumerate(perm))
    A.op(f"s_mov_b32 s58, {pc & 0xffffffff:#x}"); A.op(f"s_mov_b32 s59, {pc >> 32:#x}")
    A.op("s_lshl_b32 s9, s6, 2"); A.op("s_lshr_b64 s[58:59], s[58:59], s9"); A.op("s_and_b32 s56, s58, 15")
    A.op("s_lshl_b32 s9, s56, 4")
    A.op("v_add_u32 v5, s9, v5")
    A.op(f"s_mul_i32 s10, s8, {RN}")
    for i in range(2):
        A.op(f"v_add_u32 v6, {8*i}, v5")
        A.op(f"v_mul_u32_u24 v7, {IMG_STRIDE}, v6")
        A.op("v_lshlrev_b32 v6, 2, v6")
        A.op(f"ds_read_b32 v2, v6 offset:{L_NODE}"); A.op(f"ds_read_b32 v{3+i}, v6 offset:{L_DEG}")
        for p in range(maxpairs):
            A.op(f"ds_read_b32 v{P[i]+p}, v7 offset:{L_IMG + 4*p}")
            if p % 8 == 7: A.op("s_waitcnt lgkmcnt(4)")
        A.op("s_waitcnt lgkmcnt(4)")
        A.op("v_cmp_gt_u32 vcc, 200, v2")
        A.op("v_min_u32 v6, 199, v2"); A.op("v_lshlrev_b32 v6, 2, v6")
        A.op(f"ds_read_b32 v{VS+i}, v6 offset:{L_DSQ}")
        A.op("v_add_u32 v2, s10, v2")
        A.op("v_lshl_add_u32 v2, v2, 7, v8")
        A.op(f"v_cndmask_b32_e64 v{VN+i}, -1, v2, vcc")
    A.op("v_max_u32 v3, v3, v4")
    A.op("s_nop 0")
    A.op("v_readfirstlane_b32 s40, v3")
    A.op("s_nop 3")
    A.op(f"s_cmp_gt_u32 s40, {CAP}"); A.op("s_cselect_b32 s41, 1, 0")
    A.op(f"s_min_u32 s40, s40, {CAP}"); A.op("s_add_u32 s40, s40, 1"); A.op("s_lshr_b32 s40, s40, 1")
    A.op("s_waitcnt lgkmcnt(0)")
    A.op("s_mov_b32 s28, 0x3f80"); A.op("s_mov_b32 s29, 0x3f800000"); A.op("s_mov_b32 s30, 128")
    A.op(f"s_mul_i32 s19, s7, {HALF}")
    A.op("s_add_u32 s20, s4, s19"); A.op("s_addc_u32 s21, s5, 0")
    A.op(f"s_mov_b32 s22, {HALF}"); A.op("s_mov_b32 s23, 0x20000")
    A.op(f"s_add_u32 s24, s20, {TAB}"); A.op("s_addc_u32 s25, s21, 0")
    A.op(f"s_mov_b32 s26, {HALF}"); A.op("s_mov_b32 s27, 0x20000")
    cbytes = nshard * 128 if bar == 'cnt' else 128 * 128
    A.op(f"s_mul_i32 s19, s7, {cbytes}"); A.op(f"s_add_u32 s19, s19, {OFF_CNT}")
    A.op("s_add_u32 s32, s4, s19"); A.op("s_addc_u32 s33, s5, 0")
    A.op(f"s_mov_b32 s34, {cbytes}"); A.op("s_mov_b32 s35, 0x20000")
    A.op(f"s_lshl_b32 s19, s7, 3"); A.op(f"s_add_u32 s19, s19, {OFF_ST + ST_TOK}")
    A.op("s_add_u32 s76, s4, s19"); A.op("s_addc_u32 s77, s5, 0")
    A.op(f"s_mov_b32 s78, {ST_TOK - 8}"); A.op("s_mov_b32 s79, 0x20000")
    if fn:
        srd(A, 80, 4, 1536, OFF_FV)
        A.op("v_lshlrev_b32 v2, 1, v8"); A.op("s_lshl_b32 s19, s7, 8")
        for v in range(3):
            for q in range(2):
                A.op(f"buffer_load_dwordx4 v[{KF+8*v+4*q}:{KF+8*v+4*q+3}], v2, s[80:83], s19 offen offset:{512*v + 16*q}")
        A.op(f"s_lshl_b32 s19, s7, 4"); A.op(f"s_add_u32 s19, s19, {OFF_FN}")
        A.op("s_add_u32 s84, s4, s19"); A.op("s_addc_u32 s85, s5, 0")
        A.op(f"s_mov_b32 s86, {FN_TOK - 16}"); A.op("s_mov_b32 s87, 0x20000")
        A.op("s_load_dwordx2 s[92:93], s[0:1], 0")
        A.op("s_waitcnt vmcnt(0) lgkmcnt(0)")
        srd(A, 88, 92, TAB)
    A.op("s_mov_b32 s36, 0")
    if prof:
        A.op("s_memrealtime s[74:75]")
        A.op("s_waitcnt lgkmcnt(0)")
        srd(A, 80, 4, 4 << 20, 96 << 20)
        A.op("s_lshl_b32 s84, s2, 4"); A.op("s_add_u32 s84, s84, s6"); A.op("s_lshl_b32 s84, s84, 10")
        A.op("s_mov_b64 exec, 1")
        for qi in range(6):
            A.op(f"v_mov_b32 v6, s{64+2*qi}"); A.op(f"v_mov_b32 v7, s{65+2*qi}"); A.op(f"v_mov_b32 v2, {8*qi}")
            A.op("buffer_store_dwordx2 v[6:7], v2, s[80:83], s84 offen"); A.op("s_nop 1")
        A.op("s_mov_b64 exec, -1")
    def stats():
        A.cmt("row statistics (sum, sum of squares over this half) for the transformer LayerNorm")
        for i in range(2):
            t = DATA + 8 + 2 * i
            A.op(f"v_add_f32 v{t}, v{ACC[i]}, v{ACC[i]+1}"); A.op(f"v_mul_f32 v{t+1}, v{ACC[i]}, v{ACC[i]}")
            A.op(f"v_fmac_f32 v{t+1}, v{ACC[i]+1}, v{ACC[i]+1}")
            for q in range(2, 8):
                A.op(f"v_add_f32 v{t}, v{t}, v{ACC[i]+q}"); A.op(f"v_fmac_f32 v{t+1}, v{ACC[i]+q}, v{ACC[i]+q}")
        for m in ("quad_perm:[1,0,3,2]", "quad_perm:[2,3,0,1]", "row_half_mirror"):
            for q in range(4):
                A.op(f"v_add_f32_dpp v{DATA+8+q}, v{DATA+8+q}, v{DATA+8+q} {m} row_mask:0xf bank_mask:0xf")
        A.op(f"v_lshrrev_b32 v2, 3, v{VN}"); A.op(f"v_lshrrev_b32 v3, 3, v{VN+1}")
        A.op("s_mov_b32 exec_lo, 0x01010101"); A.op("s_mov_b32 exec_hi, 0x01010101")
        A.op(f"buffer_store_dwordx2 v[{DATA+8}:{DATA+9}], v2, s[76:79], 0 offen{stst}")
        A.op(f"buffer_store_dwordx2 v[{DATA+10}:{DATA+11}], v3, s[76:79], 0 offen{stst}")
        A.op("s_mov_b64 exec, -1")
        A.op(f"s_add_u32 s76, s76, {ST_TOK}"); A.op("s_addc_u32 s77, s77, 0")
        if fn:
            A.op(f"s_add_u32 s84, s84, {FN_TOK}"); A.op("s_addc_u32 s85, s85, 0")
            funcs([[ACC[0] + q for q in range(8)], [ACC[1] + q for q in range(8)]])
    def funcs(vals):
        F = [DATA + 12, DATA + 16]
        for i in range(2):
            for v in range(3):
                A.op(f"v_mul_f32 v{F[i]+v}, v{vals[i][0]}, v{KF+8*v}")
                for q in range(1, 8):
                    A.op(f"v_fmac_f32 v{F[i]+v}, v{vals[i][q]}, v{KF+8*v+q}")
        for m in ("quad_perm:[1,0,3,2]", "quad_perm:[2,3,0,1]", "row_half_mirror"):
            for i in range(2):
                for v in range(3):
                    A.op(f"v_add_f32_dpp v{F[i]+v}, v{F[i]+v}, v{F[i]+v} {m} row_mask:0xf bank_mask:0xf")
        A.op(f"v_lshrrev_b32 v2, 2, v{VN}"); A.op(f"v_lshrrev_b32 v3, 2, v{VN+1}")
        A.op("s_mov_b32 exec_lo, 0x01010101"); A.op("s_mov_b32 exec_hi, 0x01010101")
        A.op(f"buffer_store_dwordx4 v[{F[0]}:{F[0]+3}], v2, s[84:87], 0 offen")
        A.op(f"buffer_store_dwordx4 v[{F[1]}:{F[1]+3}], v3, s[84:87], 0 offen")
        A.op("s_mov_b64 exec, -1")
    def xpre():
        if not fn: return
        l = A.new("xp")
        A.op("s_cmp_eq_u32 s36, 1"); A.op(f"s_cbranch_scc0 {l}")
        A.op("s_lshl_b32 s19, s7, 7")
        for i in range(2):
            A.op(f"v_lshlrev_b32 v2, 1, v{VN+i}"); A.op("v_sub_u32 v2, v2, v8")
            A.op(f"buffer_load_dwordx4 v[{DATA+20+4*i}:{DATA+23+4*i}], v2, s[88:91], s19 offen")
        A.label(l)
    def xpost():
        if not fn: return
        l = A.new("xq")
        A.op("s_cmp_eq_u32 s36, 1"); A.op(f"s_cbranch_scc0 {l}")
        A.op("s_waitcnt vmcnt(0)")
        A.op("s_mov_b32 s19, 0xffff0000")
        U = [ACC[0], ACC[1]]
        for i in range(2):
            for q in range(4):
                A.op(f"v_lshlrev_b32 v{U[i]+2*q}, 16, v{DATA+20+4*i+q}"); A.op(f"v_and_b32 v{U[i]+2*q+1}, s19, v{DATA+20+4*i+q}")
        A.op(f"s_sub_u32 s84, s84, {FN_TOK}"); A.op("s_subb_u32 s85, s85, 0")
        funcs([[U[0] + q for q in range(8)], [U[1] + q for q in range(8)]])
        A.op(f"s_add_u32 s84, s84, {FN_TOK}"); A.op("s_addc_u32 s85, s85, 0")
        A.label(l)
    A.label("hop_loop")
    if prof: A.op("s_memrealtime s[64:65]")
    for i in range(2):
        for q in range(8):
            A.op(f"v_mov_b32 v{ACC[i]+q}, 0")
    if pf:
        A.op("s_lshr_b32 s82, s2, 3"); A.op("s_and_b32 s82, s82, 31")
        A.op("s_lshl_b32 s83, s6, 5"); A.op("s_add_u32 s82, s82, s83"); A.op("s_lshl_b32 s82, s82, 7")
        A.op("s_add_u32 s84, s20, s82"); A.op("s_addc_u32 s85, s21, 0")
        for b in range(1, 4):
            A.op(f"s_add_u32 s{84+2*b}, s84, {19*b*53248}"); A.op(f"s_addc_u32 s{85+2*b}, s85, 0")
    def tree(lo, hi):
        if lo == hi:
            A.op(f"s_branch hop_w{lo}"); return
        mid = (lo + hi + 1) // 2
        l = A.new("bt")
        A.op(f"s_cmp_ge_u32 s40, {mid}"); A.op(f"s_cbranch_scc1 {l}")
        tree(lo, mid - 1)
        A.label(l)
        tree(mid, hi)
    tree(0, maxpairs)
    A.label("hop_w0")
    A.op("s_branch hop_fin")
    for n in range(1, maxpairs + 1):
        A.label(f"hop_w{n}")
        steps = 2 * n
        depth = max(1, min(maxdepth, depthfn(steps), steps))
        state = {"p": None}
        def prefetch(j):
            if not pf: return
            ns = max(1, int(steps * pffrac))
            lo = min(60, (60 * j + ns - 1) // ns); hi = min(60, (60 * (j + 1) + ns - 1) // ns)
            for n_ in range(lo, hi):
                b = 84 + 2 * (n_ // 19)
                for sub in range(pf):
                    A.op(f"s_load_dword s{92 + (n_ & 1)}, s[{b}:{b+1}], {(n_ % 19) * 53248 + 64 * sub}")
        def issue(j):
            if prio:
                p = 3 - min(3, (4 * j) // steps)
                if p != state["p"]:
                    A.op(f"s_setprio {p}"); state["p"] = p
            for i in range(2):
                A.op(f"v_mad_u32_u16 v{VA + i}, v{P[i] + j//2}, s30, v8 op_sel:[{j&1},0,0,0]")
                d = DATA + 8 * (j % depth) + 4 * i
                A.op(f"buffer_load_dwordx4 v[{d}:{d+3}], v{VA + i}, s[20:23], 0 offen{ld}")
        for j in range(min(depth, steps)):
            issue(j)
        for j in range(steps):
            prefetch(j)
            out_steps = min(steps, j + depth) - j - 1
            for i in range(2):
                A.op(f"s_waitcnt vmcnt({2*out_steps + (1 - i)})")
                d = DATA + 8 * (j % depth) + 4 * i
                for q in range(ndot):
                    A.op(f"v_dot2c_f32_bf16 v{ACC[i]+2*q}, s28, v{d+q}")
                    A.op(f"v_dot2c_f32_bf16 v{ACC[i]+2*q+1}, s29, v{d+q}")
            if j + depth < steps:
                issue(j + depth)
        if n != maxpairs:
            A.op(f"s_branch hop_fin")
    A.label("hop_fin")
    if pf: A.op("s_waitcnt lgkmcnt(0)")
    if prof: A.op("s_memrealtime s[66:67]")
    if prio: A.op("s_setprio 0")
    A.op("s_cmp_eq_u32 s41, 0"); A.op("s_cbranch_scc1 hop_noovf")
    T = DATA; DD = DATA + 8
    for i in range(2):
        A.op("s_mov_b32 s52, 0")
        lg = A.new("og"); ln = A.new("on"); ll = A.new("ol"); ld = A.new("od")
        A.label(lg)
        A.op(f"s_lshl_b32 s53, s56, 4"); A.op(f"s_add_u32 s53, s53, s52"); A.op(f"s_add_u32 s53, s53, {8*i}")
        A.op("s_lshl_b32 s53, s53, 2"); A.op("v_mov_b32 v2, s53")
        A.op(f"ds_read_b32 v3, v2 offset:{L_DEG}"); A.op(f"ds_read_b32 v4, v2 offset:{L_NODE}")
        A.op("s_waitcnt lgkmcnt(0)")
        A.op("v_readfirstlane_b32 s54, v3"); A.op("v_lshlrev_b32 v4, 2, v4"); A.op("s_nop 2")
        A.op(f"s_cmp_le_u32 s54, {CAP}"); A.op(f"s_cbranch_scc1 {ln}")
        A.op(f"ds_read_b32 v4, v4 offset:{L_OVFP}")
        A.op(f"s_sub_u32 s54, s54, {CAP}")
        for q in range(8):
            A.op(f"v_mov_b32 v{T+q}, 0")
        A.op("v_lshrrev_b32 v5, 3, v0")
        A.op("s_waitcnt lgkmcnt(0)")
        A.label(ll)
        A.op("v_add_u32 v6, v4, v5"); A.op("v_lshlrev_b32 v6, 1, v6")
        A.op("buffer_load_ushort v7, v6, s[48:51], 0 offen sc1")
        A.op("v_cmp_gt_u32 vcc, s54, v5")
        A.op("v_mov_b32 v6, 0xffff")
        A.op("s_waitcnt vmcnt(0)")
        A.op("v_cndmask_b32_e64 v7, v6, v7, vcc")
        A.op("v_mad_u32_u24 v7, v7, s30, v8")
        A.op(f"buffer_load_dwordx4 v[{DD}:{DD+3}], v7, s[20:23], 0 offen sc1")
        A.op("v_add_u32 v5, 8, v5")
        A.op("s_waitcnt vmcnt(0)")
        for q in range(4):
            A.op(f"v_dot2c_f32_bf16 v{T+2*q}, s28, v{DD+q}")
            A.op(f"v_dot2c_f32_bf16 v{T+2*q+1}, s29, v{DD+q}")
        A.op("v_min_u32 v6, v5, v5")
        A.op("v_readfirstlane_b32 s55, v5"); A.op("s_nop 3")
        A.op("s_cmp_lt_u32 s55, s54"); A.op(f"s_cbranch_scc1 {ll}")
        for q in range(8):
            A.op("s_nop 1")
            A.op(f"v_add_f32_dpp v{T+q}, v{T+q}, v{T+q} row_ror:8 row_mask:0xf bank_mask:0xf")
        for q in range(8):
            A.op(f"ds_swizzle_b32 v{DD+q}, v{T+q} offset:0x401f")
        A.op("s_waitcnt lgkmcnt(0)")
        for q in range(8):
            A.op(f"v_add_f32 v{T+q}, v{T+q}, v{DD+q}")
            A.op(f"v_mov_b32 v{DD+q}, v{T+q}")
        A.op("s_nop 1")
        for q in range(8):
            A.op(f"v_permlane32_swap_b32 v{T+q}, v{DD+q}")
        A.op("s_mov_b32 s58, 0xff"); A.op("s_mov_b32 s59, 0"); A.op("s_lshl_b32 s55, s52, 3"); A.op("s_lshl_b64 s[58:59], s[58:59], s55")
        for q in range(8):
            A.op(f"v_add_f32 v{T+q}, v{T+q}, v{DD+q}")
        A.op("s_mov_b64 exec, s[58:59]")
        for q in range(8):
            A.op(f"v_add_f32 v{ACC[i]+q}, v{ACC[i]+q}, v{T+q}")
        A.op("s_mov_b64 exec, -1")
        A.label(ln)
        A.op("s_add_u32 s52, s52, 1"); A.op("s_cmp_lt_u32 s52, 8"); A.op(f"s_cbranch_scc1 {lg}")
    A.label("hop_noovf")
    for i in range(2):
        for q in range(8):
            A.op(f"v_mul_f32 v{ACC[i]+q}, v{VS+i}, v{ACC[i]+q}")
        d = DATA + 4 * i
        for q in range(4):
            A.op(f"v_cvt_pk_bf16_f32 v{d+q}, v{ACC[i]+2*q}, v{ACC[i]+2*q+1}")
        A.op(f"buffer_store_dwordx4 v[{d}:{d+3}], v{VN+i}, s[24:27], 0 offen sc0 sc1")
    A.op("s_add_u32 s36, s36, 1")
    A.op(f"s_add_u32 s20, s20, {TAB}"); A.op("s_addc_u32 s21, s21, 0")
    A.op(f"s_add_u32 s24, s24, {TAB}"); A.op("s_addc_u32 s25, s25, 0")
    A.op(f"s_cmp_ge_u32 s36, {nh}"); A.op("s_cbranch_scc1 hop_last")
    A.op("s_waitcnt vmcnt(0)")
    if prof: A.op("s_memrealtime s[68:69]")
    A.op("s_barrier")
    if prof:
        A.op("s_memrealtime s[70:71]")
        A.op("s_waitcnt lgkmcnt(0)")
        A.op("s_lshl_b32 s85, s36, 6"); A.op("s_add_u32 s85, s85, s84")
        A.op("s_mov_b64 exec, 1")
        for qi in range(4):
            A.op(f"v_mov_b32 v6, s{64+2*qi}"); A.op(f"v_mov_b32 v7, s{65+2*qi}"); A.op(f"v_mov_b32 v2, {8*qi}")
            A.op("buffer_store_dwordx2 v[6:7], v2, s[80:83], s85 offen"); A.op("s_nop 1")
        A.op("s_mov_b64 exec, -1")
    if pw: A.op("s_branch hop_barother")
    A.op("s_cmp_lg_u32 s6, 0"); A.op("s_cbranch_scc1 hop_barother")
    if bar == 'cnt':
        A.op(f"s_and_b32 s9, s8, {nshard-1}"); A.op("s_lshl_b32 s9, s9, 7")
        A.op("v_mov_b32 v2, s9"); A.op("v_mov_b32 v3, 1")
        A.op("s_mov_b64 exec, 1")
        A.op("buffer_atomic_add v3, v2, s[32:35], 0 offen sc1")
        A.op("s_mov_b64 exec, -1")
        A.op(f"v_min_u32 v5, {nshard-1}, v0"); A.op("v_lshlrev_b32 v2, 7, v5")
        A.op(f"v_sub_u32 v5, {NR + nshard - 1}, v5"); A.op(f"v_lshrrev_b32 v5, {nshard.bit_length()-1}, v5")
        A.op("v_mul_lo_u32 v5, v5, s36")
    else:
        A.op("s_lshl_b32 s9, s8, 7")
        A.op("v_mov_b32 v2, s9"); A.op("v_mov_b32 v3, s36")
        A.op("s_mov_b64 exec, 1")
        A.op("buffer_store_dword v3, v2, s[32:35], 0 offen sc0 sc1")
        A.op("s_mov_b64 exec, -1")
        A.op("v_lshlrev_b32 v2, 7, v0")
        A.op("v_add_u32 v3, 64, v0"); A.op(f"v_min_u32 v3, {NR-1}, v3"); A.op("v_lshlrev_b32 v3, 7, v3")
    A.op("v_mov_b32 v4, v2"); A.op("v_mov_b32 v9, v3"); A.op("v_mov_b32 v6, v5")
    stats()
    xpre()
    A.op("v_mov_b32 v2, v4"); A.op("v_mov_b32 v3, v9"); A.op("v_mov_b32 v5, v6")
    A.op("s_mov_b32 s37, 0")
    A.label("hop_poll")
    A.op("buffer_load_dword v4, v2, s[32:35], 0 offen sc0 sc1")
    if bar != 'cnt':
        A.op("buffer_load_dword v5, v3, s[32:35], 0 offen sc0 sc1")
    A.op("s_add_u32 s37, s37, 1"); A.op("s_cmp_ge_u32 s37, 100000"); A.op("s_cbranch_scc1 hop_pollok")
    A.op("s_waitcnt vmcnt(0)")
    if bar == 'cnt':
        A.op("v_cmp_ge_u32 s[38:39], v4, v5")
    else:
        A.op("v_min_u32 v4, v4, v5"); A.op("v_cmp_le_u32 s[38:39], s36, v4")
    A.op("s_nop 3")
    A.op("s_cmp_eq_u64 s[38:39], -1"); A.op("s_cbranch_scc1 hop_pollok")
    if sleep: A.op(f"s_sleep {sleep}")
    A.op("s_branch hop_poll")
    A.label("hop_pollok")
    A.op("s_waitcnt vmcnt(0)")
    xpost()
    A.label("hop_barw")
    A.op("s_barrier")
    A.op("s_branch hop_loop")
    A.label("hop_barother")
    stats()
    xpre()
    xpost()
    A.op("s_branch hop_barw")
    A.label("hop_last")
    stats()
    A.op("s_endpgm")
    if pw:
        A.cmt("helper wave: L2 prefetch of this hop's source half table (own share), barrier flag and poll")
        A.label("hop_pw")
        A.op(f"s_setprio {pwprio}")
        A.op("v_and_b32 v0, 63, v0")
        A.op(f"s_mul_i32 s19, s7, {HALF}")
        A.op("s_add_u32 s20, s4, s19"); A.op("s_addc_u32 s21, s5, 0")
        A.op(f"s_mov_b32 s22, {HALF}"); A.op("s_mov_b32 s23, 0x20000")
        A.op(f"s_mul_i32 s19, s7, {128*128}"); A.op(f"s_add_u32 s19, s19, {OFF_CNT}")
        A.op("s_add_u32 s32, s4, s19"); A.op("s_addc_u32 s33, s5, 0")
        A.op(f"s_mov_b32 s34, {128*128}"); A.op("s_mov_b32 s35, 0x20000")
        A.op("s_lshr_b32 s9, s2, 3"); A.op("s_and_b32 s9, s9, 31"); A.op("s_lshl_b32 s9, s9, 7")
        A.op("v_lshlrev_b32 v2, 12, v0"); A.op("v_add_u32 v2, s9, v2")
        A.op("v_lshlrev_b32 v10, 7, v0")
        A.op("v_add_u32 v11, 64, v0"); A.op(f"v_min_u32 v11, {NR-1}, v11"); A.op("v_lshlrev_b32 v11, 7, v11")
        A.op("s_lshl_b32 s9, s8, 7"); A.op("v_mov_b32 v12, s9")
        A.op("s_mov_b32 s36, 0")
        A.label("pw_hop")
        for i in range(13 if pw == 1 else 0):
            A.op(f"v_add_u32 v3, {i*64*4096}, v2")
            A.op(f"buffer_load_dword v{20+i}, v3, s[20:23], 0 offen sc1")
            if pwsleep: A.op(f"s_sleep {pwsleep}")
        A.op("s_add_u32 s36, s36, 1")
        A.op(f"s_add_u32 s20, s20, {TAB}"); A.op("s_addc_u32 s21, s21, 0")
        A.op(f"s_cmp_ge_u32 s36, {nh}"); A.op("s_cbranch_scc1 hops_done")
        A.op("s_waitcnt vmcnt(0)")
        A.op("s_barrier")
        A.op("v_mov_b32 v13, s36")
        A.op("s_mov_b64 exec, 1")
        A.op("buffer_store_dword v13, v12, s[32:35], 0 offen sc0 sc1")
        A.op("s_mov_b64 exec, -1")
        A.op("s_mov_b32 s37, 0")
        A.label("pw_poll")
        A.op("buffer_load_dword v4, v10, s[32:35], 0 offen sc0 sc1")
        A.op("buffer_load_dword v5, v11, s[32:35], 0 offen sc0 sc1")
        A.op("s_add_u32 s37, s37, 1"); A.op("s_cmp_ge_u32 s37, 100000"); A.op("s_cbranch_scc1 pw_ok")
        A.op("s_waitcnt vmcnt(0)")
        A.op("v_min_u32 v4, v4, v5"); A.op("v_cmp_le_u32 s[38:39], s36, v4")
        A.op("s_nop 3")
        A.op("s_cmp_eq_u64 s[38:39], -1"); A.op("s_cbranch_scc1 pw_ok")
        if sleep: A.op(f"s_sleep {sleep}")
        A.op("s_branch pw_poll")
        A.label("pw_ok")
        A.op("s_waitcnt vmcnt(0)")
        A.op("s_barrier")
        A.op("s_branch pw_hop")
    if rtt:
        A.label("hop_rtt")
        A.op("s_setprio 3")
        srd(A, 80, 4, 4 << 20, 96 << 20)
        srd(A, 32, 4, CNT_BYTES, OFF_CNT)
        A.op("s_lshl_b32 s84, s2, 10")
        A.op("v_and_b32 v0, 63, v0"); A.op("v_lshlrev_b32 v2, 7, v0"); A.op("v_and_b32 v2, 0x3fff, v2")
        A.op("s_mov_b32 s36, 0")
        A.label("rtt_hop")
        for i in range(rtt):
            A.op("s_memrealtime s[64:65]"); A.op("s_waitcnt lgkmcnt(0)")
            A.op("buffer_load_dword v4, v2, s[32:35], 0 offen sc0 sc1")
            A.op("s_waitcnt vmcnt(0)")
            A.op("s_memrealtime s[66:67]"); A.op("s_waitcnt lgkmcnt(0)")
            A.op("s_sub_u32 s66, s66, s64")
            A.op("s_mov_b64 exec, 1")
            A.op("v_mov_b32 v6, s66"); A.op("v_mov_b32 v7, s64"); A.op("s_lshl_b32 s85, s36, 7"); A.op("s_add_u32 s85, s85, s84"); A.op(f"v_mov_b32 v5, {8*i}")
            A.op("buffer_store_dwordx2 v[6:7], v5, s[80:83], s85 offen")
            A.op("s_mov_b64 exec, -1")
            A.op("s_sleep 6")
        A.op("s_add_u32 s36, s36, 1")
        A.op(f"s_cmp_ge_u32 s36, {nh}"); A.op("s_cbranch_scc1 hops_done")
        A.op("s_barrier"); A.op("s_barrier")
        A.op("s_branch rtt_hop")
    A.label("hops_done")
    A.op("s_endpgm")
    A.label("hops_wprep")
    wl = prep.gen_wprep(A, 64 * NW, 250)
    return dict(name=name, grid=252, block=64 * NWB, lds=max(L_END, wl), vgpr=nv, sgpr=96 if (prof or pf or rtt or fn) else 80)
```

```python
from common import *

MAGIC200 = 41944

def pi_expr(A, dst, m, t1):
    A.op(f"v_and_b32 v{dst}, 0x13, v{m}")
    A.op(f"v_and_b32 v{t1}, 4, v{m}")
    A.op(f"v_lshl_or_b32 v{dst}, v{t1}, 1, v{dst}")
    A.op(f"v_and_b32 v{t1}, 8, v{m}")
    A.op(f"v_lshrrev_b32 v{t1}, 1, v{t1}")
    A.op(f"v_or_b32 v{dst}, v{dst}, v{t1}")

def gen_prep(A, skip=(), cells=False, st='', prof=0, xn=200, fv=False, nox=False):
    name = "prep_kernel"
    NXW = 0 if nox else N // xn
    NI = xn * 16 // 800
    LASTW = 125 + NXW
    kernel_begin(A, name)
    def dump(n):
        if not prof: return
        A.op("s_waitcnt lgkmcnt(0)")
        srd(A, 52, 4, 4 << 20, 96 << 20)
        A.op("v_lshrrev_b32 v38, 6, v0"); A.op("s_nop 0"); A.op("v_readfirstlane_b32 s56, v38"); A.op("s_nop 3")
        A.op("s_lshl_b32 s57, s2, 4"); A.op("s_add_u32 s57, s57, s56"); A.op("s_lshl_b32 s57, s57, 6")
        A.op("s_mov_b64 exec, 1")
        for qi in range(n):
            A.op(f"v_mov_b32 v36, s{40+2*qi}"); A.op(f"v_mov_b32 v37, s{41+2*qi}"); A.op(f"v_mov_b32 v38, {8*qi}")
            A.op("buffer_store_dwordx2 v[36:37], v38, s[52:55], s57 offen"); A.op("s_nop 1")
    if prof: A.op("s_memrealtime s[40:41]")
    A.op(f"s_cmp_ge_u32 s2, {LASTW+1+(1 if fv else 0)}"); A.op("s_cbranch_scc1 prep_done")
    A.op("s_load_dwordx2 s[4:5], s[0:1], 88")
    A.op(f"s_cmp_ge_u32 s2, {LASTW}"); A.op("s_cbranch_scc1 prep_misc")
    A.op("s_cmp_ge_u32 s2, 125"); A.op("s_cbranch_scc1 prep_x")
    if "edge" in skip: A.op("s_endpgm")
    A.op("s_load_dwordx4 s[8:11], s[0:1], 8")
    A.op("v_lshlrev_b32 v1, 2, v0")
    A.op("v_mov_b32 v2, 0")
    A.op("v_cmp_gt_u32 vcc, 128, v0"); A.op("s_and_saveexec_b64 s[20:21], vcc")
    A.op("ds_write_b32 v1, v2")
    A.op("s_mov_b64 exec, s[20:21]")
    A.op("s_waitcnt lgkmcnt(0)")
    srd(A, 12, 8, E * 4)
    srd(A, 16, 10, E * 4)
    A.op("s_mul_i32 s3, s2, 12800")
    A.op("v_lshlrev_b32 v3, 4, v0")
    if prof: A.op("s_memrealtime s[42:43]")
    A.op("buffer_load_dwordx4 v[4:7], v3, s[16:19], s3 offen")
    A.op("buffer_load_dwordx4 v[8:11], v3, s[12:15], s3 offen")
    A.op("s_barrier")
    A.op(f"s_mov_b32 s22, {MAGIC200}")
    A.op("s_waitcnt vmcnt(1)")
    if prof: A.op("s_memrealtime s[44:45]")
    for i in range(4):
        A.op(f"v_mul_u32_u24 v{12+i}, s22, v{4+i}")
        A.op(f"v_lshrrev_b32 v{12+i}, 23, v{12+i}")
        A.op(f"v_mul_u32_u24 v{16+i}, 200, v{12+i}")
        A.op(f"v_sub_u32 v{16+i}, v{4+i}, v{16+i}")
        A.op(f"v_lshlrev_b32 v{12+i}, 2, v{12+i}")
    A.op("v_mov_b32 v2, 1")
    for i in range(4):
        A.op(f"ds_add_rtn_u32 v{20+i}, v{12+i}, v2")
    A.op("s_waitcnt vmcnt(0)")
    for i in range(4):
        A.op(f"v_lshl_or_b32 v{16+i}, v{16+i}, 16, v{8+i}")
        A.op(f"v_lshl_or_b32 v{16+i}, v{12+i}, 22, v{16+i}")
    A.op("s_waitcnt lgkmcnt(0)")
    A.op("s_barrier")
    A.op("v_cmp_gt_u32 vcc, 64, v0"); A.op("s_and_saveexec_b64 s[20:21], vcc")
    l = A.new("es"); A.op(f"s_cbranch_execz {l}")
    A.op("v_lshlrev_b32 v3, 3, v0")
    A.op("ds_read_b64 v[24:25], v3")
    A.op("s_waitcnt lgkmcnt(0)")
    A.op("v_add_u32 v26, v24, v25")
    A.op("v_mov_b32 v27, v26")
    wave_scan_incl(A, 26)
    A.op("v_sub_u32 v26, v26, v27")
    A.op("v_add_u32 v27, v26, v24")
    A.op("ds_write_b64 v3, v[26:27] offset:512")
    srd(A, 24, 4, NR * 512, OFF_OFFS)
    A.op("s_lshl_b32 s23, s2, 9")
    A.op(f"buffer_store_dwordx2 v[26:27], v3, s[24:27], s23 offen{st}")
    A.label(l)
    A.op("s_mov_b64 exec, s[20:21]")
    A.op("s_waitcnt lgkmcnt(0)")
    A.op("s_barrier")
    for i in range(4):
        A.op(f"ds_read_b32 v{24+i}, v{12+i} offset:512")
    A.op("s_waitcnt lgkmcnt(0)")
    for i in range(4):
        A.op(f"v_add_lshl_u32 v{24+i}, v{24+i}, v{20+i}, 2")
    for i in range(4):
        A.op(f"ds_write_b32 v{24+i}, v{16+i} offset:1024")
    A.op("s_waitcnt lgkmcnt(0)")
    A.op("s_barrier")
    A.op("v_lshlrev_b32 v3, 4, v0")
    A.op("ds_read_b128 v[4:7], v3 offset:1024")
    srd(A, 24, 4, E * 4, OFF_ENT)
    srd(A, 28, 4, CELL_BYTES, OFF_CELL)
    A.op("s_waitcnt lgkmcnt(0)")
    if prof: A.op("s_memrealtime s[46:47]")
    A.op(f"buffer_store_dwordx4 v[4:7], v3, s[24:27], s3 offen{st}")
    if prof:
        A.op("s_waitcnt vmcnt(0)"); A.op("s_memrealtime s[48:49]"); dump(5)
    if cells:
        A.cmt("fixed-capacity cells [bucket][chunk][64]: entry at sorted position p of bucket b goes to rank p - offs[b]")
        A.op("v_lshlrev_b32 v2, 2, v0")
        for i in range(4):
            A.op(f"ds_read_b32 v{24+i}, v2 offset:{1024 + 3200*i}")
        A.op("s_waitcnt lgkmcnt(0)")
        for i in range(4):
            A.op(f"v_lshrrev_b32 v{8+i}, 24, v{24+i}")
            A.op(f"v_lshlrev_b32 v{12+i}, 2, v{8+i}")
            A.op(f"ds_read_b32 v{16+i}, v{12+i} offset:512")
        A.op("s_lshl_b32 s23, s2, 8")
        A.op("s_waitcnt lgkmcnt(0)")
        for i in range(4):
            A.op(f"v_add_u32 v20, {800*i}, v0"); A.op(f"v_sub_u32 v20, v20, v{16+i}")
            A.op(f"v_mul_u32_u24 v21, {NR*256}, v{8+i}"); A.op("v_lshl_add_u32 v21, v20, 2, v21")
            A.op("v_cmp_gt_u32 vcc, 64, v20")
            A.op("s_nop 1")
            A.op("v_cndmask_b32_e64 v21, -1, v21, vcc")
            A.op(f"buffer_store_dword v{24+i}, v21, s[28:31], s23 offen")
    A.op("s_endpgm")
    A.label("prep_x")
    if "x" in skip: A.op("s_endpgm")
    A.op("s_load_dwordx2 s[8:9], s[0:1], 0")
    A.op("s_load_dwordx2 s[10:11], s[0:1], 24")
    A.op("s_sub_u32 s3, s2, 125")
    A.op("s_waitcnt lgkmcnt(0)")
    srd(A, 12, 8, TAB)
    srd(A, 16, 10, N * 2)
    srd(A, 24, 4, TAB, OFF_G)
    if prof: A.op("s_memrealtime s[42:43]")
    A.op(f"s_mul_i32 s20, s3, {xn*256}")
    A.op(f"s_mul_i32 s21, s3, {xn*2}")
    A.op(f"s_mul_i32 s22, s3, {xn*128}")
    for i in range(NI):
        A.op(f"v_add_u32 v1, {800*i}, v0")
        A.op(f"v_lshlrev_b32 v2, 4, v1")
        A.op(f"buffer_load_dwordx4 v[{8+4*i}:{11+4*i}], v2, s[12:15], s20 offen")
        A.op(f"v_lshrrev_b32 v3, 4, v1")
        A.op(f"v_lshlrev_b32 v4, 1, v3")
        A.op(f"buffer_load_ushort v{24+i}, v4, s[16:19], s21 offen")
        A.op(f"v_and_b32 v4, 7, v1"); A.op(f"v_lshlrev_b32 v4, 4, v4")
        A.op(f"v_lshl_add_u32 v4, v3, 7, v4")
        A.op(f"v_bfe_u32 v5, v1, 3, 1")
        A.op(f"s_mov_b32 s23, {HALF}")
        A.op(f"v_mad_u32_u24 v{28+i}, v5, s23, v4")
    A.op("s_mov_b32 s23, 0xffff0000")
    srd(A, 28, 4, ST_TOK, OFF_ST)
    A.op(f"s_mul_i32 s32, s3, {xn*16}")
    A.op("s_mov_b32 s34, 0x01010101"); A.op("s_mov_b32 s35, 0x01010101")
    for i in range(NI):
        A.op(f"s_waitcnt vmcnt({2*(NI-1)})")
        if prof and i == 0: A.op("s_memrealtime s[44:45]")
        A.op(f"v_lshlrev_b32 v{24+i}, 16, v{24+i}")
        A.op("v_mov_b32 v32, 0"); A.op("v_mov_b32 v33, 0")
        for q in range(4):
            r = 8 + 4 * i + q
            A.op(f"v_lshlrev_b32 v2, 16, v{r}")
            A.op(f"v_and_b32 v3, s23, v{r}")
            A.op("v_add_f32 v32, v32, v2"); A.op("v_fmac_f32 v33, v2, v2")
            A.op("v_add_f32 v32, v32, v3"); A.op("v_fmac_f32 v33, v3, v3")
            A.op(f"v_mul_f32 v2, v2, v{24+i}")
            A.op(f"v_mul_f32 v3, v3, v{24+i}")
            A.op(f"v_cvt_pk_bf16_f32 v{r}, v2, v3")
        A.op(f"buffer_store_dwordx4 v[{8+4*i}:{11+4*i}], v{28+i}, s[24:27], s22 offen{st}")
        for m in ("quad_perm:[1,0,3,2]", "quad_perm:[2,3,0,1]", "row_half_mirror"):
            A.op("s_nop 0")
            A.op(f"v_add_f32_dpp v32, v32, v32 {m} row_mask:0xf bank_mask:0xf")
            A.op(f"v_add_f32_dpp v33, v33, v33 {m} row_mask:0xf bank_mask:0xf")
        A.op(f"v_add_u32 v34, {800*i}, v0"); A.op("v_and_b32 v34, -8, v34")
        A.op("s_mov_b64 s[36:37], exec"); A.op("s_and_b64 exec, exec, s[34:35]")
        A.op(f"buffer_store_dwordx2 v[32:33], v34, s[28:31], s32 offen{st}")
        A.op("s_mov_b64 exec, s[36:37]")
    if prof:
        A.op("s_memrealtime s[46:47]"); A.op("s_waitcnt vmcnt(0)"); A.op("s_memrealtime s[48:49]"); dump(5)
    A.op("s_endpgm")
    A.label("prep_misc")
    if fv:
        A.op(f"s_cmp_eq_u32 s2, {LASTW+1}"); A.op("s_cbranch_scc1 prep_fv")
    A.op("s_waitcnt lgkmcnt(0)")
    srd(A, 24, 4, CNT_BYTES, OFF_CNT)
    A.op("v_lshlrev_b32 v1, 4, v0")
    for i in range(4):
        A.op(f"v_mov_b32 v{4+i}, 0")
    for i in range(-(-CNT_BYTES // 12800)):
        A.op(f"s_mov_b32 s3, {12800*i}")
        A.op("buffer_store_dwordx4 v[4:7], v1, s[24:27], s3 offen")
    A.op("s_endpgm")
    if fv: gen_fv(A)
    A.label("prep_done")
    A.op("s_endpgm")
    return dict(name=name, grid=LASTW+1+(1 if fv else 0), block=800, lds=14336, vgpr=72 if fv else 40, sgpr=64)

def gen_wprep(A, NT, first):
    LMEAN = 0
    FM = 2048
    STR = 129
    LWO = 68096
    A.op("s_load_dwordx4 s[8:11], s[0:1], 32")
    A.op("s_load_dwordx4 s[12:15], s[0:1], 48")
    A.op("s_load_dwordx2 s[28:29], s[0:1], 64")
    A.op("v_lshrrev_b32 v1, 6, v0"); A.op("s_nop 0")
    A.op("v_readfirstlane_b32 s6, v1")
    A.op("v_and_b32 v30, 63, v0")
    A.op("v_and_b32 v31, 31, v30")
    A.op("v_lshrrev_b32 v32, 5, v30")
    A.op("s_waitcnt lgkmcnt(0)")
    A.op(f"s_cmp_eq_u32 s2, {first}")
    A.op("s_cselect_b32 s16, s8, s12"); A.op("s_cselect_b32 s17, s9, s13")
    A.op("s_mov_b32 s18, 32768"); A.op("s_mov_b32 s19, 0x20000")
    A.op("s_cselect_b32 s20, s10, s14"); A.op("s_cselect_b32 s21, s11, s15")
    A.op("s_mov_b32 s22, 32768"); A.op("s_mov_b32 s23, 0x20000")
    A.op("s_cbranch_scc1 wprep_nostage")
    for i in range(3):
        A.op(f"v_add_u32 v1, {NT*i}, v0")
        A.op("v_lshlrev_b32 v2, 4, v1")
        if i == 2:
            A.op("v_cmp_gt_u32 vcc, 2048, v1"); A.op("s_and_saveexec_b64 s[24:25], vcc")
            l = A.new("st"); A.op(f"s_cbranch_execz {l}")
        A.op("buffer_load_dwordx4 v[4:7], v2, s[20:23], 0 offen")
        A.op("s_waitcnt vmcnt(0)")
        A.op(f"v_add_u32 v2, {LWO}, v2")
        A.op(f"ds_write_b128 v2, v[4:7]")
        if i == 2:
            A.label(l); A.op("s_mov_b64 exec, s[24:25]")
    A.op("s_waitcnt lgkmcnt(0)")
    A.label("wprep_nostage")
    A.op("s_barrier")
    A.op("s_cmp_ge_u32 s6, 8"); A.op("s_cbranch_scc1 wprep_mm_done")
    A.op("s_lshr_b32 s24, s6, 1"); A.op("s_and_b32 s25, s6, 1"); A.op("s_lshl_b32 s25, s25, 1")
    A.op("s_lshl_b32 s26, s24, 13")
    A.op("v_lshlrev_b32 v1, 8, v31"); A.op("v_lshl_add_u32 v1, v32, 4, v1")
    for kk in range(8):
        A.op(f"buffer_load_dwordx4 v[{40+4*kk}:{43+4*kk}], v1, s[16:19], s26 offen offset:{32*kk}")
    for te in range(2):
        A.op(f"s_cmp_eq_u32 s2, {first}"); lb = A.new("bw"); le = A.new("be"); A.op(f"s_cbranch_scc0 {lb}")
        A.op(f"s_add_u32 s27, s25, {te}"); A.op("s_lshl_b32 s27, s27, 13")
        for kk in range(8):
            A.op(f"buffer_load_dwordx4 v[{72+4*kk}:{75+4*kk}], v1, s[20:23], s27 offen offset:{32*kk}")
        A.op("s_waitcnt vmcnt(0)")
        A.op(f"s_branch {le}")
        A.label(lb)
        A.op("v_and_b32 v2, 15, v30")
        A.op("v_lshrrev_b32 v3, 2, v2")
        A.op("v_and_b32 v2, 3, v2")
        A.op("v_lshl_add_u32 v3, v32, 3, v3")
        A.op("v_lshlrev_b32 v3, 8, v3")
        A.op("v_lshl_add_u32 v3, v2, 3, v3")
        A.op("v_bfe_u32 v2, v30, 4, 1")
        A.op("v_lshl_add_u32 v3, v2, 5, v3")
        A.op(f"s_add_u32 s27, s25, {te}"); A.op("s_lshl_b32 s27, s27, 6")
        A.op(f"s_add_u32 s27, s27, {LWO}")
        A.op("v_add_u32 v3, s27, v3")
        for kk in range(8):
            A.op(f"ds_read_b64_tr_b16 v[{72+4*kk}:{73+4*kk}], v3 offset:{4096*kk}")
            A.op(f"ds_read_b64_tr_b16 v[{74+4*kk}:{75+4*kk}], v3 offset:{4096*kk+1024}")
        A.op("s_waitcnt vmcnt(0) lgkmcnt(0)")
        A.label(le)
        for kk in range(8):
            c = "0" if kk == 0 else "v[104:119]"
            A.op(f"v_mfma_f32_32x32x16_bf16 v[104:119], v[{40+4*kk}:{43+4*kk}], v[{72+4*kk}:{75+4*kk}], {c}")
        A.op("s_nop 15"); A.op("s_nop 7")
        A.op("s_lshl_b32 s27, s24, 5")
        A.op("v_lshlrev_b32 v2, 2, v32"); A.op("v_add_u32 v2, s27, v2")
        A.op(f"v_mul_u32_u24 v2, {STR}, v2")
        A.op(f"s_add_u32 s27, s25, {te}"); A.op("s_lshl_b32 s27, s27, 5")
        A.op("v_add3_u32 v2, v2, s27, v31")
        A.op("v_lshlrev_b32 v2, 2, v2")
        for r in range(16):
            d = (r & 3) + 8 * (r >> 2)
            A.op(f"ds_write_b32 v2, v{104+r} offset:{FM + d*STR*4}")
    A.label("wprep_mm_done")
    A.op("s_waitcnt lgkmcnt(0)")
    A.op("s_barrier")
    A.op("v_cmp_gt_u32 vcc, 256, v0"); A.op("s_and_saveexec_b64 s[24:25], vcc")
    l = A.new("mn"); A.op(f"s_cbranch_execz {l}")
    A.op("v_and_b32 v2, 127, v0")
    A.op("v_cmp_gt_u32 vcc, 128, v0")
    A.op(f"v_mul_u32_u24 v3, {STR}, v2")
    A.op("s_nop 1")
    A.op("v_cndmask_b32_e64 v3, v3, v2, vcc")
    A.op(f"v_mov_b32 v4, {STR}")
    A.op("v_cndmask_b32_e64 v4, 1, v4, vcc")
    A.op("v_lshlrev_b32 v3, 2, v3"); A.op("v_lshlrev_b32 v4, 2, v4")
    A.op("v_mov_b32 v5, 0")
    A.op("s_mov_b32 s26, 0")
    lp = A.new("ml"); A.label(lp)
    for i in range(8):
        A.op(f"ds_read_b32 v{8+i}, v3 offset:{FM}"); A.op("v_add_u32 v3, v3, v4")
    A.op("s_waitcnt lgkmcnt(0)")
    for i in range(8):
        A.op(f"v_add_f32 v5, v5, v{8+i}")
    A.op("s_add_u32 s26, s26, 1"); A.op("s_cmp_lt_u32 s26, 16"); A.op(f"s_cbranch_scc1 {lp}")
    A.op("v_mul_f32 v5, 0x3c000000, v5")
    A.op("v_lshlrev_b32 v2, 2, v0")
    A.op(f"ds_write_b32 v2, v5 offset:{LMEAN}")
    A.label(l)
    A.op("s_mov_b64 exec, s[24:25]")
    A.op("s_waitcnt lgkmcnt(0)")
    A.op("s_barrier")
    A.op("v_lshlrev_b32 v2, 3, v30")
    A.op(f"ds_read_b64 v[4:5], v2 offset:{LMEAN}")
    A.op("s_waitcnt lgkmcnt(0)")
    A.op("v_add_f32 v4, v4, v5")
    A.op("s_cmp_eq_u32 s6, 0"); l = A.new("tm"); A.op(f"s_cbranch_scc0 {l}")
    for sh in (1, 2, 4, 8):
        A.op("s_nop 1"); A.op(f"v_add_f32_dpp v4, v4, v4 row_shr:{sh} row_mask:0xf bank_mask:0xf")
    A.op("s_nop 1"); A.op("v_add_f32_dpp v4, v4, v4 row_bcast:15 row_mask:0xa bank_mask:0xf")
    A.op("s_nop 1"); A.op("v_add_f32_dpp v4, v4, v4 row_bcast:31 row_mask:0xc bank_mask:0xf")
    A.op("s_nop 1"); A.op("v_readlane_b32 s26, v4, 63")
    A.op("s_nop 3"); A.op("v_mov_b32 v4, s26"); A.op("v_mul_f32 v4, 0x3c000000, v4")
    A.op("v_mov_b32 v2, 0"); A.op(f"ds_write_b32 v2, v4 offset:{LMEAN+1024}")
    A.label(l)
    A.op("s_waitcnt lgkmcnt(0)")
    A.op("s_barrier")
    A.op(f"s_cmp_eq_u32 s2, {first}")
    A.op(f"s_cselect_b32 s26, 0, 32768")
    A.op("s_cselect_b32 s30, 0x3e0293ee, 1.0")
    A.op("s_cselect_b32 s31, 1.0, 0")
    A.op(f"s_add_u32 s26, s26, {OFF_WM}")
    A.op("s_add_u32 s24, s4, s26"); A.op("s_addc_u32 s25, s5, 0")
    A.op("s_mov_b32 s26, 32768"); A.op("s_mov_b32 s27, 0x20000")
    A.op("v_mov_b32 v2, 0"); A.op(f"ds_read_b32 v33, v2 offset:{LMEAN+1024}")
    for i in range(3):
        A.op(f"v_add_u32 v1, {NT*i}, v0")
        if i == 2:
            A.op("v_cmp_gt_u32 vcc, 2048, v1"); A.op("s_and_saveexec_b64 s[34:35], vcc")
            l = A.new("em"); A.op(f"s_cbranch_execz {l}")
        A.op("v_and_b32 v2, 31, v1")
        pi_expr(A, 3, 2, 4)
        A.op("v_lshrrev_b32 v4, 9, v1")
        A.op("v_lshl_add_u32 v3, v4, 5, v3")
        A.op("v_bfe_u32 v4, v1, 6, 3")
        A.op("v_bfe_u32 v5, v1, 5, 1")
        A.op("v_lshlrev_b32 v4, 4, v4"); A.op("v_lshl_add_u32 v4, v5, 3, v4")
        A.op(f"v_mul_u32_u24 v5, {STR}, v4"); A.op("v_add_lshl_u32 v5, v5, v3, 2")
        for j in range(8):
            A.op(f"ds_read_b32 v{8+j}, v5 offset:{FM + j*STR*4}")
        A.op("v_lshlrev_b32 v6, 2, v3"); A.op(f"ds_read_b32 v16, v6 offset:{LMEAN}")
        A.op("v_lshlrev_b32 v6, 2, v4")
        A.op(f"ds_read_b128 v[20:23], v6 offset:{LMEAN+512}"); A.op(f"ds_read_b128 v[24:27], v6 offset:{LMEAN+528}")
        A.op("s_waitcnt lgkmcnt(0)")
        for j in range(8):
            A.op(f"v_sub_f32 v{20+j}, v{20+j}, v33")
            A.op(f"v_sub_f32 v{8+j}, v{8+j}, v16")
            A.op(f"v_fma_f32 v{8+j}, -v{20+j}, s31, v{8+j}")
            A.op(f"v_mul_f32 v{8+j}, s30, v{8+j}")
        for j in range(4):
            A.op(f"v_cvt_pk_bf16_f32 v{8+j}, v{8+2*j}, v{9+2*j}")
        A.op("v_lshlrev_b32 v6, 4, v1")
        A.op("buffer_store_dwordx4 v[8:11], v6, s[24:27], 0 offen")
        if i == 2:
            A.label(l); A.op("s_mov_b64 exec, s[34:35]")
    A.op(f"s_cmp_eq_u32 s2, {first+1}"); A.op("s_cbranch_scc0 wprep_done")
    A.op("s_cmp_ge_u32 s6, 1"); A.op("s_cbranch_scc1 wprep_done")
    srd(A, 12, 28, 256)
    A.op("v_lshlrev_b32 v2, 1, v30")
    A.op("buffer_load_ushort v4, v2, s[12:15], 0 offen")
    A.op("buffer_load_ushort v5, v2, s[12:15], 0 offen offset:128")
    A.op("s_waitcnt vmcnt(0)")
    A.op("v_lshlrev_b32 v4, 16, v4"); A.op("v_lshlrev_b32 v5, 16, v5")
    A.op("v_add_f32 v6, v4, v5")
    for sh in (1, 2, 4, 8):
        A.op("s_nop 1"); A.op(f"v_add_f32_dpp v6, v6, v6 row_shr:{sh} row_mask:0xf bank_mask:0xf")
    A.op("s_nop 1"); A.op("v_add_f32_dpp v6, v6, v6 row_bcast:15 row_mask:0xa bank_mask:0xf")
    A.op("s_nop 1"); A.op("v_add_f32_dpp v6, v6, v6 row_bcast:31 row_mask:0xc bank_mask:0xf")
    A.op("s_nop 1"); A.op("v_readlane_b32 s26, v6, 63")
    A.op("s_nop 3"); A.op("v_mov_b32 v6, s26"); A.op("v_mul_f32 v6, 0x3c000000, v6")
    A.op("v_sub_f32 v4, v4, v6"); A.op("v_sub_f32 v5, v5, v6")
    srd(A, 16, 4, 512, OFF_WC)
    for (val, add) in ((4, 0), (5, 64)):
        A.op(f"v_add_u32 v7, {add}, v30")
        A.op("v_bfe_u32 v8, v7, 3, 1"); A.op("v_lshlrev_b32 v8, 6, v8")
        A.op("v_lshrrev_b32 v9, 5, v7"); A.op("v_lshl_add_u32 v8, v9, 4, v8")
        A.op("v_bfe_u32 v9, v7, 4, 1"); A.op("v_lshl_add_u32 v8, v9, 3, v8")
        A.op("v_and_b32 v9, 7, v7"); A.op("v_add_lshl_u32 v8, v8, v9, 2")
        A.op(f"buffer_store_dword v{val}, v8, s[16:19], 0 offen")
    A.label("wprep_done")
    A.op("s_endpgm")
    return 100864


def gen_fv(A):
    A.label("prep_fv")
    A.op("s_load_dwordx4 s[8:11], s[0:1], 48")
    A.op("s_load_dwordx2 s[12:13], s[0:1], 64")
    A.op("v_cmp_gt_u32 vcc, 512, v0"); A.op("s_mov_b64 s[30:31], vcc")
    A.op("v_lshrrev_b32 v1, 2, v0"); A.op("v_and_b32 v2, 3, v0")
    A.op("v_lshlrev_b32 v3, 8, v1"); A.op("v_lshl_add_u32 v3, v2, 6, v3")
    A.op("v_lshlrev_b32 v4, 1, v0")
    A.op("s_waitcnt lgkmcnt(0)")
    srd(A, 16, 8, 32768); srd(A, 20, 10, 32768); srd(A, 24, 12, 256)
    A.op("buffer_load_ushort v5, v4, s[24:27], 0 offen")
    for q in range(4):
        A.op(f"buffer_load_dwordx4 v[{8+4*q}:{11+4*q}], v3, s[20:23], 0 offen offset:{16*q}")
    for q in range(4):
        A.op(f"buffer_load_dwordx4 v[{24+4*q}:{27+4*q}], v3, s[16:19], 0 offen offset:{16*q}")
    LW, LU, LY = 0, 512, 1536
    A.op("s_waitcnt vmcnt(8)")
    A.op("v_lshlrev_b32 v5, 16, v5"); A.op("v_lshlrev_b32 v4, 2, v0")
    A.op("v_cmp_gt_u32 vcc, 128, v0"); A.op("s_and_saveexec_b64 s[28:29], vcc")
    A.op(f"ds_write_b32 v4, v5 offset:{LW}")
    A.op("s_mov_b64 exec, s[28:29]")
    A.op("s_waitcnt lgkmcnt(0)"); A.op("s_barrier")
    def mean128(off_a, dst, tmp):
        A.op(f"v_and_b32 v{tmp}, 63, v0"); A.op(f"v_lshlrev_b32 v{tmp}, 3, v{tmp}")
        A.op(f"ds_read_b64 v[{dst}:{dst+1}], v{tmp} offset:{off_a}")
        A.op("s_waitcnt lgkmcnt(0)")
        A.op(f"v_add_f32 v{dst}, v{dst}, v{dst+1}")
        for sh in (1, 2, 4, 8):
            A.op("s_nop 1"); A.op(f"v_add_f32_dpp v{dst}, v{dst}, v{dst} row_shr:{sh} row_mask:0xf bank_mask:0xf")
        A.op("s_nop 1"); A.op(f"v_add_f32_dpp v{dst}, v{dst}, v{dst} row_bcast:15 row_mask:0xa bank_mask:0xf")
        A.op("s_nop 1"); A.op(f"v_add_f32_dpp v{dst}, v{dst}, v{dst} row_bcast:31 row_mask:0xc bank_mask:0xf")
        A.op("s_nop 1"); A.op(f"v_readlane_b32 s32, v{dst}, 63")
        A.op("s_nop 3"); A.op(f"v_mov_b32 v{dst}, s32"); A.op(f"v_mul_f32 v{dst}, 0x3c000000, v{dst}")
    A.op("v_lshrrev_b32 v6, 6, v0"); A.op("s_nop 0"); A.op("v_readfirstlane_b32 s33, v6"); A.op("s_nop 3")
    A.op("s_cmp_ge_u32 s33, 8"); lx = A.new("fvx"); A.op(f"s_cbranch_scc1 {lx}")
    mean128(LW, 40, 42)
    A.op("s_mov_b32 s34, 0xffff0000")
    def dotchunk(base, vec_off, two, acc):
        A.op(f"v_lshlrev_b32 v43, 7, v2")
        for q in range(4):
            for (k, off) in enumerate(vec_off):
                A.op(f"ds_read_b128 v[{44+8*k}:{47+8*k}], v43 offset:{off + 32*q}"); A.op(f"ds_read_b128 v[{48+8*k}:{51+8*k}], v43 offset:{off + 32*q + 16}")
            A.op("s_waitcnt lgkmcnt(0)")
            for j in range(4):
                r = base + 4 * q + j
                A.op(f"v_lshlrev_b32 v60, 16, v{r}"); A.op(f"v_and_b32 v61, s34, v{r}")
                if two == "w":
                    A.op(f"v_add_f32 v{acc}, v{acc}, v60"); A.op(f"v_add_f32 v{acc}, v{acc}, v61")
                    A.op(f"v_sub_f32 v62, v{44+2*j}, v40"); A.op(f"v_fmac_f32 v{acc+1}, v60, v62")
                    A.op(f"v_sub_f32 v62, v{45+2*j}, v40"); A.op(f"v_fmac_f32 v{acc+1}, v61, v62")
                else:
                    A.op(f"v_fmac_f32 v{acc}, v60, v{44+2*j}"); A.op(f"v_fmac_f32 v{acc}, v61, v{45+2*j}")
                    A.op(f"v_fmac_f32 v{acc+1}, v60, v{52+2*j}"); A.op(f"v_fmac_f32 v{acc+1}, v61, v{53+2*j}")
        for m in ("quad_perm:[1,0,3,2]", "quad_perm:[2,3,0,1]"):
            A.op("s_nop 1")
            A.op(f"v_add_f32_dpp v{acc}, v{acc}, v{acc} {m} row_mask:0xf bank_mask:0xf")
            A.op(f"v_add_f32_dpp v{acc+1}, v{acc+1}, v{acc+1} {m} row_mask:0xf bank_mask:0xf")
    A.op("s_waitcnt vmcnt(4)")
    A.op("v_mov_b32 v64, 0"); A.op("v_mov_b32 v65, 0")
    dotchunk(8, [LW], "w", 64)
    A.op("v_lshlrev_b32 v43, 2, v1")
    A.op(f"ds_write_b32 v43, v64 offset:{LU}"); A.op(f"ds_write_b32 v43, v65 offset:{LU+512}")
    A.label(lx)
    A.op("s_waitcnt lgkmcnt(0)"); A.op("s_barrier")
    A.op("s_cmp_ge_u32 s33, 8"); ly = A.new("fvy"); A.op(f"s_cbranch_scc1 {ly}")
    A.op("s_waitcnt vmcnt(0)")
    A.op("v_mov_b32 v64, 0"); A.op("v_mov_b32 v65, 0")
    dotchunk(24, [LU, LU + 512], "v", 64)
    A.op("v_lshlrev_b32 v43, 2, v1")
    A.op(f"ds_write_b32 v43, v64 offset:{LY}"); A.op(f"ds_write_b32 v43, v65 offset:{LY+512}")
    A.label(ly)
    A.op("s_waitcnt lgkmcnt(0)"); A.op("s_barrier")
    A.op("s_cmp_ge_u32 s33, 2"); A.op("s_cbranch_scc1 prep_done")
    mean128(LY, 44, 46); mean128(LY + 512, 48, 50)
    A.op("v_lshlrev_b32 v4, 2, v0")
    A.op(f"ds_read_b32 v52, v4 offset:{LW}"); A.op(f"ds_read_b32 v53, v4 offset:{LY}"); A.op(f"ds_read_b32 v54, v4 offset:{LY+512}")
    srd(A, 16, 4, 1536, OFF_FV)
    A.op("s_waitcnt lgkmcnt(0)")
    A.op("v_sub_f32 v52, v52, v40"); A.op("v_sub_f32 v53, v53, v44"); A.op("v_sub_f32 v54, v54, v48")
    A.op("buffer_store_dword v52, v4, s[16:19], 0 offen"); A.op("buffer_store_dword v53, v4, s[16:19], 0 offen offset:512"); A.op("buffer_store_dword v54, v4, s[16:19], 0 offen offset:1024")
    A.op("s_endpgm")
```

```python
from common import *
from prep import gen_wprep, MAGIC200, pi_expr

def gen_prep(A, NT=400, st=''):
    name = "prep_kernel"
    EQ = 3200 // NT // 4
    NI = 3200 // NT
    EP = 4 * EQ
    kernel_begin(A, name)
    A.op("s_cmp_ge_u32 s2, 251"); A.op("s_cbranch_scc1 prep_done")
    A.op("s_load_dwordx2 s[4:5], s[0:1], 88")
    A.op("s_cmp_ge_u32 s2, 250"); A.op("s_cbranch_scc1 prep_misc")
    A.op("s_cmp_ge_u32 s2, 125"); A.op("s_cbranch_scc1 prep_x")
    A.op("s_load_dwordx4 s[8:11], s[0:1], 8")
    DST, SRC, BK, EN, RK, TM = 4, 4 + EP, 4 + 2 * EP, 4 + 3 * EP, 4 + 4 * EP, 4 + 5 * EP
    A.op("v_lshlrev_b32 v1, 2, v0"); A.op("v_mov_b32 v2, 0"); A.op("v_lshlrev_b32 v3, 4, v0")
    A.op("s_mul_i32 s3, s2, 12800")
    A.op("s_waitcnt lgkmcnt(0)")
    srd(A, 12, 8, E * 4)
    srd(A, 16, 10, E * 4)
    for g in range(EQ):
        A.op(f"s_add_u32 s22, s3, {NT*16*g}")
        A.op(f"buffer_load_dwordx4 v[{DST+4*g}:{DST+4*g+3}], v3, s[16:19], s22 offen")
    for g in range(EQ):
        A.op(f"s_add_u32 s22, s3, {NT*16*g}")
        A.op(f"buffer_load_dwordx4 v[{SRC+4*g}:{SRC+4*g+3}], v3, s[12:15], s22 offen")
    A.op("v_cmp_gt_u32 vcc, 128, v0"); A.op("s_and_saveexec_b64 s[20:21], vcc")
    A.op("ds_write_b32 v1, v2")
    A.op("s_mov_b64 exec, s[20:21]")
    A.op("s_waitcnt lgkmcnt(0)")
    A.op("s_barrier")
    A.op(f"s_mov_b32 s22, {MAGIC200}")
    A.op(f"s_waitcnt vmcnt({EQ})")
    for i in range(EP):
        A.op(f"v_mul_u32_u24 v{BK+i}, s22, v{DST+i}")
        A.op(f"v_lshrrev_b32 v{BK+i}, 23, v{BK+i}")
        A.op(f"v_mul_u32_u24 v{EN+i}, 200, v{BK+i}")
        A.op(f"v_sub_u32 v{EN+i}, v{DST+i}, v{EN+i}")
        A.op(f"v_lshlrev_b32 v{BK+i}, 2, v{BK+i}")
    A.op("v_mov_b32 v2, 1")
    for i in range(EP):
        A.op(f"ds_add_rtn_u32 v{RK+i}, v{BK+i}, v2")
    A.op("s_waitcnt vmcnt(0)")
    for i in range(EP):
        A.op(f"v_lshl_or_b32 v{EN+i}, v{EN+i}, 16, v{SRC+i}")
    A.op("s_waitcnt lgkmcnt(0)")
    A.op("s_barrier")
    A.op("v_cmp_gt_u32 vcc, 64, v0"); A.op("s_and_saveexec_b64 s[20:21], vcc")
    l = A.new("es"); A.op(f"s_cbranch_execz {l}")
    A.op("v_lshlrev_b32 v3, 3, v0")
    A.op(f"ds_read_b64 v[{TM}:{TM+1}], v3")
    A.op("s_waitcnt lgkmcnt(0)")
    A.op(f"v_add_u32 v{TM+2}, v{TM}, v{TM+1}")
    A.op(f"v_mov_b32 v{TM+3}, v{TM+2}")
    wave_scan_incl(A, TM + 2)
    A.op(f"v_sub_u32 v{TM+2}, v{TM+2}, v{TM+3}")
    A.op(f"v_add_u32 v{TM+3}, v{TM+2}, v{TM}")
    A.op(f"ds_write_b64 v3, v[{TM+2}:{TM+3}] offset:512")
    srd(A, 24, 4, NR * 512, OFF_OFFS)
    A.op("s_lshl_b32 s23, s2, 9")
    A.op(f"buffer_store_dwordx2 v[{TM+2}:{TM+3}], v3, s[24:27], s23 offen{st}")
    A.label(l)
    A.op("s_mov_b64 exec, s[20:21]")
    A.op("s_waitcnt lgkmcnt(0)")
    A.op("s_barrier")
    for i in range(EP):
        A.op(f"ds_read_b32 v{DST+i}, v{BK+i} offset:512")
    A.op("s_waitcnt lgkmcnt(0)")
    for i in range(EP):
        A.op(f"v_add_lshl_u32 v{DST+i}, v{DST+i}, v{RK+i}, 2")
    for i in range(EP):
        A.op(f"ds_write_b32 v{DST+i}, v{EN+i} offset:1024")
    A.op("s_waitcnt lgkmcnt(0)")
    A.op("s_barrier")
    A.op("v_lshlrev_b32 v3, 4, v0")
    for g in range(EQ):
        A.op(f"ds_read_b128 v[{SRC+4*g}:{SRC+4*g+3}], v3 offset:{1024 + NT*16*g}")
    srd(A, 24, 4, E * 4, OFF_ENT)
    for g in range(EQ):
        A.op(f"s_add_u32 s22, s3, {NT*16*g}")
        A.op(f"s_waitcnt lgkmcnt({EQ-1-g})")
        A.op(f"buffer_store_dwordx4 v[{SRC+4*g}:{SRC+4*g+3}], v3, s[24:27], s22 offen{st}")
    A.op("s_endpgm")
    A.label("prep_x")
    A.op("s_load_dwordx2 s[8:9], s[0:1], 0")
    A.op("s_load_dwordx2 s[10:11], s[0:1], 24")
    A.op("s_sub_u32 s3, s2, 125")
    A.op("s_mul_i32 s20, s3, 51200")
    A.op("s_mul_i32 s21, s3, 400")
    A.op("s_mul_i32 s22, s3, 25600")
    A.op("s_mul_i32 s32, s3, 3200")
    XD, DS = 8, 8 + 4 * NI
    T = DS + NI
    A.op("s_waitcnt lgkmcnt(0)")
    srd(A, 12, 8, TAB)
    srd(A, 16, 10, N * 2)
    for i in range(NI):
        A.op(f"v_add_u32 v1, {NT*i}, v0")
        A.op(f"v_lshlrev_b32 v2, 4, v1")
        A.op(f"buffer_load_dwordx4 v[{XD+4*i}:{XD+4*i+3}], v2, s[12:15], s20 offen")
        A.op(f"v_lshrrev_b32 v3, 4, v1"); A.op(f"v_lshlrev_b32 v4, 1, v3")
        A.op(f"buffer_load_ushort v{DS+i}, v4, s[16:19], s21 offen")
    srd(A, 24, 4, TAB, OFF_G)
    srd(A, 28, 4, ST_TOK, OFF_ST)
    A.op("s_mov_b32 s23, 0xffff0000"); A.op(f"s_mov_b32 s33, {HALF}")
    A.op("s_mov_b32 s34, 0x01010101"); A.op("s_mov_b32 s35, 0x01010101")
    for i in range(NI):
        A.op(f"s_waitcnt vmcnt({2*(NI-1)})")
        A.op(f"v_lshlrev_b32 v{DS+i}, 16, v{DS+i}")
        A.op(f"v_mov_b32 v{T}, 0"); A.op(f"v_mov_b32 v{T+1}, 0")
        for q in range(4):
            r = XD + 4 * i + q
            A.op(f"v_lshlrev_b32 v2, 16, v{r}")
            A.op(f"v_and_b32 v3, s23, v{r}")
            A.op(f"v_add_f32 v{T}, v{T}, v2"); A.op(f"v_fmac_f32 v{T+1}, v2, v2")
            A.op(f"v_add_f32 v{T}, v{T}, v3"); A.op(f"v_fmac_f32 v{T+1}, v3, v3")
            A.op(f"v_mul_f32 v2, v2, v{DS+i}")
            A.op(f"v_mul_f32 v3, v3, v{DS+i}")
            A.op(f"v_cvt_pk_bf16_f32 v{r}, v2, v3")
        A.op(f"v_add_u32 v1, {NT*i}, v0")
        A.op("v_and_b32 v4, 7, v1"); A.op("v_lshlrev_b32 v4, 4, v4")
        A.op("v_lshrrev_b32 v3, 4, v1"); A.op("v_lshl_add_u32 v4, v3, 7, v4")
        A.op("v_bfe_u32 v5, v1, 3, 1"); A.op("v_mad_u32_u24 v4, v5, s33, v4")
        A.op(f"buffer_store_dwordx4 v[{XD+4*i}:{XD+4*i+3}], v4, s[24:27], s22 offen{st}")
        for m in ("quad_perm:[1,0,3,2]", "quad_perm:[2,3,0,1]", "row_half_mirror"):
            A.op("s_nop 0")
            A.op(f"v_add_f32_dpp v{T}, v{T}, v{T} {m} row_mask:0xf bank_mask:0xf")
            A.op(f"v_add_f32_dpp v{T+1}, v{T+1}, v{T+1} {m} row_mask:0xf bank_mask:0xf")
        A.op("v_and_b32 v1, -8, v1")
        A.op("s_mov_b64 s[36:37], exec"); A.op("s_and_b64 exec, exec, s[34:35]")
        A.op(f"buffer_store_dwordx2 v[{T}:{T+1}], v1, s[28:31], s32 offen{st}")
        A.op("s_mov_b64 exec, s[36:37]")
    A.op("s_endpgm")
    A.label("prep_misc")
    A.op("s_waitcnt lgkmcnt(0)")
    srd(A, 24, 4, CNT_BYTES, OFF_CNT)
    A.op("v_lshlrev_b32 v1, 4, v0")
    for i in range(4):
        A.op(f"v_mov_b32 v{4+i}, 0")
    for i in range(-(-CNT_BYTES // (NT * 16))):
        A.op(f"s_mov_b32 s3, {NT*16*i}")
        A.op("buffer_store_dwordx4 v[4:7], v1, s[24:27], s3 offen")
    A.label("prep_done")
    A.op("s_endpgm")
    nv = max(TM + 4, T + 2 + (T & 1))
    return dict(name=name, grid=251, block=NT, lds=14336, vgpr=nv, sgpr=40)
```

```python
from common import *
from sched import Op, schedule, finalize

L_WM = 0; L_WV = 32768; L_WC = 65536; L_X = 66560
NWV = 8
L_S = L_X + NWV * 8192
L_END = L_S + NWV * 256
NWG = 250; TPW = 25

V_WA = 2
V_XB = 3
V_TR = 4
V_DG = 8
V_DX = 9
V_RW = 10
V_RR = 11
V_AW = 12
V_AR = 13
V_SO = 14
V_WC = 15
V_OUT = 16
V_DO = 17
V_OT = 18
V_DN = 19
V_T0 = 20; V_T1 = 21
V_D = 22; V_C = 23; V_C2 = 24
V_TC = 25; V_TC2 = 26
V_L0 = 28; V_L1 = 29; V_L2 = 30; V_L3 = 31
V_A0 = 0; V_A1 = 1
X = 32
WB = 64; NWB = 5
RR = 84
DA = [100, 116]
S = 132
UOP = 148
VOP = 156
POP = 188
XT = 196
WCR = 228
V_RHO = 27
V_AW2 = 12; V_AR2 = 13
V_ST = 244
V_RL = 248
V_P = 252
V_S1 = 84 + 16 - 16

def gen_tf(A, reorder=True, prof=False, nwb=5, stagger=1, ro='dot', ost='', wreg=True, pace=0, pa=True, pk=False, cid=False, fn=False, nwg=256):
    name = "tf_kernel"
    NWV = 4 if wreg else 8
    L_S = L_X + NWV * 8192
    SCR = 512 if fn else 256
    L_END = L_S + NWV * SCR
    if wreg: stagger = 0
    kernel_begin(A, name)
    A.op(f"s_cmp_ge_u32 s2, {nwg}"); A.op("s_cbranch_scc1 tf_done")
    A.op("s_load_dwordx2 s[4:5], s[0:1], 88")
    A.op("s_load_dwordx2 s[8:9], s[0:1], 0")
    A.op("s_load_dwordx2 s[10:11], s[0:1], 24")
    A.op("s_load_dwordx2 s[44:45], s[0:1], 72")
    if prof == 1: A.op("s_memrealtime s[70:71]")
    A.op("v_lshrrev_b32 v1, 6, v0"); A.op("s_nop 0")
    A.op("v_readfirstlane_b32 s6, v1")
    A.op("v_and_b32 v0, 63, v0")
    H, K, AA, T1, T2, T3 = 28, 29, 30, 31, 20, 21
    LANE = 0
    A.op(f"v_lshlrev_b32 v{V_WA}, 4, v0")
    A.op("s_waitcnt lgkmcnt(0)")
    srd(A, 12, 4, 8 * TAB, OFF_G)
    srd(A, 16, 8, TAB)
    srd(A, 20, 10, N * 2)
    srd(A, 24, 44, TAB)
    srd(A, 28, 4, 65536 + 512, OFF_WM)
    srd(A, 92, 4, 8 * ST_TOK, OFF_ST)
    if fn: srd(A, 72, 4, 8 * FN_TOK, OFF_FN)
    if prof == 1:
        srd(A, 80, 4, 4 << 20, 96 << 20)
        A.op("s_lshl_b32 s84, s2, 4"); A.op("s_add_u32 s84, s84, s6"); A.op("s_lshl_b32 s84, s84, 10")
        A.op("s_mov_b32 s85, 0")
    A.op(f"s_mul_i32 s3, s6, {65536 // NWV}")
    for i in range(64 // NWV):
        A.op(f"s_add_u32 s32, s3, {1024*i}"); A.op("s_mov_b32 m0, s32"); A.op("s_nop 0")
        A.op(f"buffer_load_dwordx4 v{V_WA}, s[28:31], s32 offen lds")
    A.op(f"v_lshrrev_b32 v{H}, 5, v0"); A.op(f"v_and_b32 v{K}, 7, v0"); A.op(f"v_bfe_u32 v{AA}, v0, 3, 2")
    A.op(f"s_mul_i32 s34, s6, 8192"); A.op(f"s_add_u32 s34, s34, {L_X}")
    A.op(f"v_and_b32 v{T1}, 15, v0"); A.op(f"v_xor_b32 v{T1}, v{T1}, v{H}"); A.op(f"v_lshlrev_b32 v{T1}, 4, v{T1}")
    A.op(f"v_lshl_add_u32 v{T1}, v{K}, 10, v{T1}"); A.op(f"v_lshl_add_u32 v{T1}, v{AA}, 8, v{T1}"); A.op(f"v_add_u32 v{V_XB}, s34, v{T1}")
    A.op(f"v_bfe_u32 v{T1}, v0, 2, 2"); A.op(f"v_lshl_add_u32 v{T1}, v{H}, 2, v{T1}")
    A.op(f"v_bfe_u32 v{T2}, v0, 4, 1"); A.op(f"v_lshlrev_b32 v{T2}, 1, v{T2}")
    A.op(f"v_and_b32 v{T3}, 1, v0"); A.op(f"v_or_b32 v{T2}, v{T2}, v{T3}"); A.op(f"v_xor_b32 v{T2}, v{T2}, v{T1}")
    A.op(f"v_lshlrev_b32 v{T2}, 4, v{T2}"); A.op(f"v_lshl_add_u32 v{T2}, v{T1}, 10, v{T2}")
    A.op(f"v_bfe_u32 v{T3}, v0, 1, 1"); A.op(f"v_lshl_add_u32 v{T2}, v{T3}, 3, v{T2}"); A.op(f"v_add_u32 v{T2}, s34, v{T2}")
    for q in range(4):
        A.op(f"v_xor_b32 v{V_TR+q}, {q << 6}, v{T2}")
    A.op(f"v_lshrrev_b32 v{T1}, 4, v0"); A.op(f"v_bfe_u32 v{T2}, v0, 3, 1"); A.op(f"v_and_b32 v{T3}, 1, v{T1}"); A.op(f"v_xor_b32 v{T2}, v{T2}, v{T3}")
    A.op(f"v_and_b32 v{T3}, 7, v0"); A.op(f"v_lshlrev_b32 v{T3}, 4, v{T3}")
    A.op(f"s_mov_b32 s35, {HALF}")
    A.op(f"v_lshl_add_u32 v{V_DG}, v{T1}, 7, v{T3}"); A.op(f"v_mad_u32_u24 v{V_DG}, v{T2}, s35, v{V_DG}")
    A.op(f"v_lshl_add_u32 v{V_DX}, v{T1}, 8, v{T3}"); A.op(f"v_lshl_add_u32 v{V_DX}, v{T2}, 7, v{V_DX}")
    A.op(f"s_mul_i32 s35, s6, {SCR}"); A.op(f"s_add_u32 s35, s35, {L_S}")
    A.op(f"v_and_b32 v{V_RW}, 31, v0"); A.op(f"v_lshlrev_b32 v{V_AW}, 1, v{V_RW}"); A.op(f"v_lshlrev_b32 v{V_RW}, 2, v{V_RW}")
    A.op(f"v_add_u32 v{V_RW}, s35, v{V_RW}"); A.op(f"v_add_u32 v{V_AW}, s35, v{V_AW}")
    A.op(f"v_lshlrev_b32 v{V_RR}, 3, v{AA}"); A.op(f"v_lshl_add_u32 v{V_RR}, v{H}, 2, v{V_RR}")
    A.op(f"v_lshlrev_b32 v{V_AR}, 1, v{V_RR}"); A.op(f"v_add_u32 v{V_AR}, s35, v{V_AR}")
    A.op(f"v_lshlrev_b32 v{V_RR}, 2, v{V_RR}"); A.op(f"v_add_u32 v{V_RR}, s35, v{V_RR}")
    if ro != 'mfma':
        A.op(f"v_lshrrev_b32 v{V_AW2}, 2, v{K}"); A.op(f"v_lshlrev_b32 v{V_AW2}, 4, v{V_AW2}"); A.op(f"v_lshl_add_u32 v{V_AW2}, v{AA}, 2, v{V_AW2}")
        A.op(f"v_and_b32 v{T1}, 3, v{K}"); A.op(f"v_add_u32 v{V_AW2}, v{V_AW2}, v{T1}"); A.op(f"v_lshlrev_b32 v{V_AW2}, 1, v{V_AW2}"); A.op(f"v_add_u32 v{V_AW2}, s35, v{V_AW2}")
        A.op(f"v_lshlrev_b32 v{V_AR2}, 5, v{H}"); A.op(f"v_add_u32 v{V_AR2}, s35, v{V_AR2}")
    A.op(f"s_mov_b32 s35, {ST_TOK}"); A.op(f"v_lshlrev_b32 v{V_SO}, 4, v{AA}"); A.op(f"v_mad_u32_u24 v{V_SO}, v{K}, s35, v{V_SO}")
    if fn:
        A.op(f"s_mov_b32 s35, {FN_TOK}"); A.op(f"v_lshlrev_b32 v71, 5, v{AA}"); A.op(f"v_mul_lo_u32 v{T1}, v{K}, s35"); A.op(f"v_add_u32 v71, v71, v{T1}")
    A.op(f"v_lshlrev_b32 v{V_WC}, 8, v{H}"); A.op(f"v_add_u32 v{V_WC}, {L_WC}, v{V_WC}")
    A.op(f"v_and_b32 v{T1}, 31, v0")
    A.op(f"v_and_b32 v{V_OUT}, 0x13, v{T1}"); A.op(f"v_and_b32 v{T2}, 4, v{T1}"); A.op(f"v_lshl_or_b32 v{V_OUT}, v{T2}, 1, v{V_OUT}")
    A.op(f"v_and_b32 v{T2}, 8, v{T1}"); A.op(f"v_lshrrev_b32 v{T2}, 1, v{T2}"); A.op(f"v_or_b32 v{V_OUT}, v{V_OUT}, v{T2}")
    A.op(f"v_lshlrev_b32 v{V_OUT}, 1, v{V_OUT}"); A.op(f"v_lshl_add_u32 v{V_OUT}, v{H}, 9, v{V_OUT}")
    A.op(f"v_lshlrev_b32 v{V_DO}, 1, v{AA}")
    A.op(f"v_mov_b32 v{V_OT}, 0x7fffffff")
    def m64(s, val):
        A.op(f"s_mov_b32 s{s}, {val & 0xffffffff:#x}"); A.op(f"s_mov_b32 s{s+1}, {val >> 32:#x}")
    m64(46, 0x0000FF000000FF00); m64(48, 0x00FF000000FF0000); m64(50, 0xFF000000FF000000); m64(52, 0x000000FF000000FF)
    m64(54, 0x0101010101010101)
    RM = [64, 66, 68, 90]
    for a, s in enumerate(RM):
        m = 8 * a + (0 if a < 2 else 4)
        m64(s, (1 << m) | (1 << (m + 32)))
    A.op("s_mov_b32 s57, 0x3727c5ac"); A.op("s_mov_b32 s58, 0x3c000000")
    A.op("s_mov_b32 s59, 0x3fb8aa3b"); A.op("s_mov_b32 s60, 0xffff0000")
    if nwg == 250:
        A.op(f"s_mul_i32 s37, s2, {TPW}")
        A.op(f"s_add_u32 s61, s37, {TPW-1}")
    else:
        assert nwg == 256
        A.op("s_mul_i32 s37, s2, 6250"); A.op("s_add_u32 s61, s37, 6250")
        A.op("s_lshr_b32 s37, s37, 8"); A.op("s_lshr_b32 s61, s61, 8"); A.op("s_sub_u32 s61, s61, 1")
    A.op("s_add_u32 s36, s37, s6")
    if pa:
        assert wreg
        for k in range(1, 8):
            A.op(f"v_xor_b32 v{63+k}, {k << 4}, v{V_DG}")
            A.op(f"v_add_u32 v{63+k}, {k*TAB - 1024*(k & 3)}, v{63+k}")
        if not cid:
            for kk in range(8):
                A.op(f"v_xor_b32 v{72+kk}, {(2*kk) << 4}, v{V_XB}")
        else:
            A.op(f"v_and_b32 v{T1}, 31, v{LANE}")
            A.op(f"v_and_b32 v{T2}, 3, v{T1}"); A.op(f"v_bfe_u32 v{T3}, v{T1}, 2, 1"); A.op(f"v_lshl_add_u32 v{T2}, v{T3}, 3, v{T2}")
            A.op(f"v_bfe_u32 v{T3}, v{T1}, 3, 1"); A.op(f"v_lshl_add_u32 v{T2}, v{T3}, 2, v{T2}")
            A.op(f"v_lshrrev_b32 v{T3}, 5, v{LANE}"); A.op(f"v_lshlrev_b32 v{T3}, 3, v{T3}"); A.op(f"v_sub_u32 v{T2}, v{T2}, v{T3}")
            A.op(f"v_lshrrev_b32 v{T1}, 4, v{T1}")
            for sidx in range(2):
                for q in range(4):
                    r = 72 + 4 * sidx + q
                    A.op(f"v_mov_b32 v{r}, 0")
                    A.op(f"v_cmp_eq_u32 vcc, {2*q}, v{T2}"); A.op("s_nop 1"); A.op(f"v_mov_b32 v80, 0x3f80"); A.op(f"v_cndmask_b32_e64 v{r}, v{r}, v80, vcc")
                    A.op(f"v_cmp_eq_u32 vcc, {2*q+1}, v{T2}"); A.op("s_nop 1"); A.op(f"v_mov_b32 v80, 0x3f800000"); A.op(f"v_cndmask_b32_e64 v{r}, v{r}, v80, vcc")
                    A.op(f"v_cmp_eq_u32 vcc, {sidx}, v{T1}"); A.op("s_nop 1"); A.op(f"v_cndmask_b32_e64 v{r}, 0, v{r}, vcc")
        A.op("s_add_u32 s98, s34, 4096")
    def dma_ops(emit, tile_sreg):
        if pa:
            emit(f"s_lshl_b32 s39, s{tile_sreg}, 9"); emit(f"s_lshl_b32 s40, s{tile_sreg}, 10"); emit(f"s_lshl_b32 s43, s{tile_sreg}, 3")
            emit(f"s_lshl_b32 s33, s{tile_sreg}, 6")
            emit(f"buffer_load_dwordx4 v[{V_ST}:{V_ST+3}], v{V_SO}, s[92:95], s33 offen", [], ["M_vm"])
            emit(f"buffer_load_ushort v{V_DN}, v{V_DO}, s[20:23], s43 offen", [], ["M_vm"])
            if fn:
                emit(f"s_lshl_b32 s32, s{tile_sreg}, 7")
                emit(f"buffer_load_dwordx4 v[{WCR}:{WCR+3}], v71, s[72:75], s32 offen", [], ["M_vm"])
                emit(f"buffer_load_dwordx4 v[{WCR+4}:{WCR+7}], v71, s[72:75], s32 offen offset:16", [], ["M_vm"])
            emit("s_mov_b32 m0, s34")
            emit(f"buffer_load_dwordx4 v{V_DX}, s[16:19], s40 offen lds", ["M_xrd"], ["M_vm"])
            for k in range(1, 8):
                if k == 4: emit("s_mov_b32 m0, s98")
                off = f" offset:{1024*(k & 3)}" if (k & 3) else ""
                emit(f"buffer_load_dwordx4 v{63+k}, s[12:15], s39 offen{off} lds", ["M_xrd"], ["M_vm"])
            return
        dma_ops0(emit, tile_sreg)
    def dma_ops0(emit, tile_sreg):
        emit(f"s_lshl_b32 s39, s{tile_sreg}, 9"); emit(f"s_lshl_b32 s40, s{tile_sreg}, 10"); emit(f"s_lshl_b32 s43, s{tile_sreg}, 3")
        emit(f"s_lshl_b32 s33, s{tile_sreg}, 6")
        emit(f"buffer_load_dwordx4 v[{V_ST}:{V_ST+3}], v{V_SO}, s[92:95], s33 offen", [], ["M_vm"])
        emit(f"buffer_load_ushort v{V_DN}, v{V_DO}, s[20:23], s43 offen", [], ["M_vm"])
        emit("s_mov_b32 m0, s34")
        emit(f"buffer_load_dwordx4 v{V_DX}, s[16:19], s40 offen lds", ["M_xrd"], ["M_vm"])
        for k in range(1, 8):
            t = V_T0 if k & 1 else V_T1
            emit(f"v_xor_b32 v{t}, {k << 4}, v{V_DG}")
            emit(f"s_add_u32 s41, s34, {1024*k}"); emit("s_mov_b32 m0, s41")
            emit(f"s_add_u32 s41, s39, {k*TAB}")
            emit(f"buffer_load_dwordx4 v{t}, s[12:15], s41 offen lds", ["M_xrd"], ["M_vm"])
    def emit_plain(t, memr=(), memw=()):
        if t.startswith("buffer_load") and "lds" in t: A.op("s_nop 0")
        A.op(t)
    A.op("s_cmp_eq_u32 s6, 0"); l = A.new("wc"); A.op(f"s_cbranch_scc0 {l}")
    A.op("s_mov_b32 s33, 65536")
    A.op(f"buffer_load_dwordx4 v[{X}:{X+3}], v{V_WA}, s[28:31], s33 offen")
    A.op("s_waitcnt vmcnt(0)")
    A.op(f"v_add_u32 v{T1}, {L_WC}, v{V_WA}"); A.op(f"ds_write_b128 v{T1}, v[{X}:{X+3}]")
    A.label(l)
    if stagger:
        A.op("s_cmp_ge_u32 s6, 4"); A.op("s_cbranch_scc1 tf_late")
    dma_ops(emit_plain, 36)
    A.op(f"s_waitcnt vmcnt({12 if fn else 10}) lgkmcnt(0)")
    A.op("s_barrier")
    if stagger:
        A.op("s_branch tf_go")
        A.label("tf_late")
        A.op("s_waitcnt vmcnt(0) lgkmcnt(0)")
        A.op("s_barrier")
        dma_ops(emit_plain, 36)
        A.label("tf_go")

    if wreg:
        A.cmt("weights LDS -> AGPRs (kept for the whole kernel)")
        for i in range(64):
            A.op(f"ds_read_b128 a[{4*i}:{4*i+3}], v{V_WA} offset:{1024*i}")
            if i % 8 == 7: A.op("s_waitcnt lgkmcnt(4)")
        A.op("s_waitcnt lgkmcnt(0)")
    S1, S2, S3 = V_L2, V_L3, V_L1

    def xhalf(o, r, t, op="add"):
        o(f"v_mov_b32 v{t}, v{r}"); o(f"v_permlane32_swap_b32 v{r}, v{t}"); o(f"v_{op}_f32 v{r}, v{r}, v{t}")

    def tail_ops(o):
        a0, a1 = V_A0, V_A1
        for r in ((S2,) if fn else (S1, S2, S3)): xhalf(o, r, a0)
        if not fn: o(f"v_mul_f32 v{S1}, s58, v{S1}")
        o(f"v_mul_f32 v{S2}, s58, v{S2}")
        o(f"v_fma_f32 v{S2}, -v{S1}, v{S1}, v{S2}"); o(f"v_max_f32 v{S2}, 0, v{S2}")
        o(f"v_mov_b32 v{a0}, s57"); o(f"v_fma_f32 v{S2}, v{S2}, v{V_TC2}, v{a0}"); o(f"v_rsq_f32 v{S2}, v{S2}")
        o(f"v_mul_f32 v{S3}, v{S3}, v{S2}"); o(f"v_mul_f32 v{S3}, v{S3}, v{V_TC}"); o(f"v_mul_f32 v{S3}, s59, v{S3}")
        def red8(r, op):
            o(f"v_{op}_f32_dpp v{r}, v{r}, v{r} quad_perm:[1,0,3,2] row_mask:0xf bank_mask:0xf")
            o(f"v_{op}_f32_dpp v{r}, v{r}, v{r} quad_perm:[2,3,0,1] row_mask:0xf bank_mask:0xf")
            o(f"v_{op}_f32_dpp v{r}, v{r}, v{r} row_half_mirror row_mask:0xf bank_mask:0xf")
        o(f"v_mov_b32 v{a0}, v{S3}"); red8(a0, "max")
        o(f"v_sub_f32 v{S3}, v{S3}, v{a0}"); o(f"v_exp_f32 v{S3}, v{S3}")
        o(f"v_mov_b32 v{a0}, v{S3}"); red8(a0, "add")
        o(f"v_rcp_f32 v{a0}, v{a0}"); o(f"v_mul_f32 v{S3}, v{S3}, v{a0}"); o(f"v_mul_f32 v{S3}, v{S3}, v{V_TC}")
        if ro == 'mfma':
            o(f"v_cvt_pk_bf16_f32 v{a0}, v{S3}, v{S3}")
            o(f"ds_write_b16 v{V_AW}, v{a0} offset:128", memw=["M_a"])
            o(f"ds_read_b64 v[{a0}:{a1}], v{V_AR} offset:128", memr=["M_a"])
            for i in range(4):
                o(f"v_mul_f32 v{V_P+i}, v{V_P+i}, v{S3}"); red8(V_P + i, "add")
            o(f"v_cvt_pk_bf16_f32 v{S1}, v{V_P}, v{V_P+1}"); o(f"v_cvt_pk_bf16_f32 v{S2}, v{V_P+2}, v{V_P+3}")
            BO = WCR; AO = WCR + 8
            for a in range(4):
                m = RM[a]
                o(f"v_cndmask_b32_e64 v{BO+2*a}, 0, v{S1}, s[{m}:{m+1}]"); o(f"v_cndmask_b32_e64 v{BO+2*a+1}, 0, v{S2}, s[{m}:{m+1}]")
                o(f"v_cndmask_b32_e64 v{AO+2*a}, 0, v{a0}, s[{m}:{m+1}]"); o(f"v_cndmask_b32_e64 v{AO+2*a+1}, 0, v{a1}, s[{m}:{m+1}]")
            for T in range(4):
                D = RR
                for s in range(2):
                    c = "0" if s == 0 else f"v[{D}:{D+15}]"
                    o(f"v_mfma_f32_32x32x16_bf16 v[{D}:{D+15}], v[{AO+4*s}:{AO+4*s+3}], v[{XT+8*T+4*s}:{XT+8*T+4*s+3}], {c}")
                for s in range(2):
                    o(f"v_mfma_f32_32x32x16_bf16 v[{D}:{D+15}], v[{BO+4*s}:{BO+4*s+3}], v[{VOP+8*T+4*s}:{VOP+8*T+4*s+3}], v[{D}:{D+15}]")
                for a in range(2):
                    t = V_P + 2 * (T & 1) + a
                    o(f"v_add_f32 v{t}, v{D+4*a}, v{D+4*a+8}")
                    o(f"v_cvt_pk_bf16_f32 v{t}, v{t}, v{t}")
                    o(f"buffer_store_short v{t}, v{V_OT}, s[24:27], s42 offen offset:{a*256 + T*64}{ost}", memw=["M_vm"])
        else:
            o(f"v_cvt_pk_bf16_f32 v{a0}, v{S3}, v{S3}")
            o(f"ds_write_b16 v{V_AW2}, v{a0} offset:192", memw=["M_a"])
            for i in range(4):
                o(f"v_mul_f32 v{V_P+i}, v{V_P+i}, v{S3}"); red8(V_P + i, "add")
            o(f"v_cvt_pk_bf16_f32 v{a0}, v{V_P}, v{V_P+1}"); o(f"v_cvt_pk_bf16_f32 v{a1}, v{V_P+2}, v{V_P+3}")
            o(f"v_lshl_add_u32 v{S1}, v{V_DO}, 2, v{V_AR2}")
            o(f"ds_write_b64 v{S1}, v[{a0}:{a1}] offset:128", memw=["M_b"])
            BP = WCR; AP = WCR + 8
            o(f"ds_read_b128 v[{BP}:{BP+3}], v{V_AR2} offset:128", memr=["M_b"]); o(f"ds_read_b128 v[{BP+4}:{BP+7}], v{V_AR2} offset:144", memr=["M_b"])
            o(f"ds_read_b128 v[{AP}:{AP+3}], v{V_AR2} offset:192", memr=["M_a"]); o(f"ds_read_b128 v[{AP+4}:{AP+7}], v{V_AR2} offset:208", memr=["M_a"])
            for T in range(4):
                for a in range(4):
                    r = RR + 4 * T + a; xt = XT + (T * 4 + a) * 2
                    if pa:
                        o(f"v_dot2_f32_bf16 v{r}, v{xt}, v{AP+2*a}, 0")
                    else:
                        o(f"v_mov_b32 v{r}, 0")
                        o(f"v_dot2c_f32_bf16 v{r}, v{xt}, v{AP+2*a}")
                    o(f"v_dot2c_f32_bf16 v{r}, v{xt+1}, v{AP+2*a+1}")
                    o(f"v_dot2c_f32_bf16 v{r}, v{VOP+8*T+2*a}, v{BP+2*a}")
                    o(f"v_dot2c_f32_bf16 v{r}, v{VOP+8*T+2*a+1}, v{BP+2*a+1}")
            for T in range(4):
                for a in range(2):
                    r0 = RR + 4 * T + a; r1 = r0 + 2
                    o(f"v_permlane32_swap_b32 v{r0}, v{r1}")
                    o(f"v_add_f32 v{r0}, v{r0}, v{r1}")
                    o(f"v_cvt_pk_bf16_f32 v{r0}, v{r0}, v{r0}")
                    o(f"buffer_store_short v{r0}, v{V_OT}, s[24:27], s42 offen offset:{a*256 + T*64}{ost}", memw=["M_vm"])

    def pre_ops(o):
        if fn:
            o(f"v_add_f32 v80, v{WCR}, v{WCR+4}"); o(f"v_add_f32 v81, v{WCR+1}, v{WCR+5}"); o(f"v_add_f32 v82, v{WCR+2}, v{WCR+6}")
            o(f"ds_write_b32 v{V_RW}, v81 offset:256", memw=["M_f1"]); o(f"ds_write_b32 v{V_RW}, v82 offset:384", memw=["M_f2"])
    def head_ops(o):
        for kk in range(8):
            if pa and not cid:
                o(f"ds_read_b128 v[{X+4*kk}:{X+4*kk+3}], v{72+kk}")
                continue
            t = V_T0 if kk & 1 else V_T1
            o(f"v_xor_b32 v{t}, {(2*kk) << 4}, v{V_XB}")
            o(f"ds_read_b128 v[{X+4*kk}:{X+4*kk+3}], v{t}")
        l0, l1 = V_RHO, V_D
        o(f"v_add_f32 v{V_ST}, v{V_ST}, v{V_ST+2}"); o(f"v_add_f32 v{V_ST+1}, v{V_ST+1}, v{V_ST+3}")
        o(f"v_mul_f32 v{V_ST}, s58, v{V_ST}"); o(f"v_mul_f32 v{V_ST+1}, s58, v{V_ST+1}")
        if fn:
            o(f"v_mov_b32 v83, v{V_ST}")
        o(f"v_fma_f32 v{V_ST+1}, -v{V_ST}, v{V_ST}, v{V_ST+1}"); o(f"v_max_f32 v{V_ST+1}, 0, v{V_ST+1}")
        o(f"v_lshlrev_b32 v{V_D}, 16, v{V_DN}")
        o(f"v_cndmask_b32_e64 v{V_D}, v{V_D}, 1.0, s[54:55]")
        o(f"v_cmp_eq_f32_e64 s[62:63], 0, v{V_D}")
        o(f"v_cndmask_b32_e64 v{V_D}, v{V_D}, 1.0, s[62:63]")
        o(f"v_rcp_f32 v{V_C}, v{V_D}"); o(f"v_mul_f32 v{V_C2}, v{V_C}, v{V_C}")
        o(f"v_mov_b32 v{V_ST}, s57"); o(f"v_fma_f32 v{V_ST+1}, v{V_ST+1}, v{V_C2}, v{V_ST}")
        o(f"v_rsq_f32 v{V_ST+1}, v{V_ST+1}"); o(f"v_mul_f32 v{V_RHO}, v{V_ST+1}, v{V_C}")
        o(f"ds_write_b32 v{V_RW}, v{V_RHO}", memw=["M_rho"])
        o(f"ds_read_b128 v[{V_RL}:{V_RL+3}], v{V_RR}", memr=["M_rho"])
        wb = [0]
        def wload(off):
            if wreg:
                i = off // 1024
                return f"a[{4*i}:{4*i+3}]"
            b = WB + 4 * (wb[0] % nwb); wb[0] += 1
            o(f"ds_read_b128 v[{b}:{b+3}], v{V_WA} offset:{off}")
            return f"v[{b}:{b+3}]"
        for T in range(4):
            D = DA[T & 1]
            for kk in range(8):
                b = wload(L_WM + (T * 8 + kk) * 1024)
                c = "0" if kk == 0 else f"v[{D}:{D+15}]"
                o(f"v_mfma_f32_32x32x16_bf16 v[{D}:{D+15}], {b}, v[{X+4*kk}:{X+4*kk+3}], {c}")
            for j in range(8):
                o(f"v_cvt_pk_bf16_f32 v{UOP+j}, v{D+2*j}, v{D+2*j+1}")
            for half in range(2):
                c = "0" if (T == 0 and half == 0) else f"v[{S}:{S+15}]"
                xa = X + 4 * (2 * T + half)
                o(f"v_mfma_f32_32x32x16_bf16 v[{S}:{S+15}], v[{xa}:{xa+3}], v[{UOP+4*half}:{UOP+4*half+3}], {c}")
        for T in range(4):
            for a in range(4):
                r = XT + (T * 4 + a) * 2
                o(f"ds_read_b64_tr_b16 v[{r}:{r+1}], v{V_TR + (T ^ (2*(a&1)))} offset:{a*256}")
        rd = [f"v{X+4*kk}" for kk in range(8)] + [f"v{XT+2*q}" for q in range(16)]
        o(f"s_add_u32 s36, s36, {NWV}"); o("s_min_u32 s38, s36, s61")
        first = [True]
        def emit(t, memr=(), memw=()):
            if "lds" in t and t.startswith("buffer_load") and first[0]:
                first[0] = False
                o(t, memr=rd, memw=memw)
            else:
                o(t, memr=[], memw=memw)
        dma_ops(emit, 38)
        P = V_P
        for i in range(4):
            o(f"v_cndmask_b32_e64 v{P+i}, v{S+i}, v{S+4+i}, s[46:47]")
            o(f"v_cndmask_b32_e64 v{P+i}, v{P+i}, v{S+8+i}, s[48:49]")
            o(f"v_cndmask_b32_e64 v{P+i}, v{P+i}, v{S+12+i}, s[50:51]")
            o(f"v_mul_f32 v{P+i}, v{P+i}, v{V_RL+i}"); o(f"v_mul_f32 v{P+i}, v{P+i}, v{V_RHO}")
        m0, m1 = V_L0, V_T0
        o(f"v_max_f32 v{m0}, v{P}, v{P+1}"); o(f"v_max3_f32 v{m0}, v{m0}, v{P+2}, v{P+3}")
        xhalf(o, m0, m1, "max")
        for i in range(4):
            o(f"v_sub_f32 v{P+i}, v{P+i}, v{m0}"); o(f"v_exp_f32 v{P+i}, v{P+i}")
        o(f"v_add_f32 v{m0}, v{P}, v{P+1}"); o(f"v_add_f32 v{m1}, v{P+2}, v{P+3}"); o(f"v_add_f32 v{m0}, v{m0}, v{m1}")
        xhalf(o, m0, m1)
        o(f"v_rcp_f32 v{m0}, v{m0}"); o(f"v_mul_f32 v{m0}, v{m0}, v{V_D}")
        for i in range(4):
            o(f"v_mul_f32 v{P+i}, v{P+i}, v{V_RL+i}"); o(f"v_mul_f32 v{P+i}, v{P+i}, v{m0}")
        o(f"v_cvt_pk_bf16_f32 v{m0}, v{P}, v{P+1}"); o(f"v_cvt_pk_bf16_f32 v{m1}, v{P+2}, v{P+3}")
        for a, m in enumerate((52, 46, 48, 50)):
            o(f"v_cndmask_b32_e64 v{POP+2*a}, 0, v{m0}, s[{m}:{m+1}]")
            o(f"v_cndmask_b32_e64 v{POP+2*a+1}, 0, v{m1}, s[{m}:{m+1}]")
        if fn:
            o(f"ds_read_b128 v[{UOP}:{UOP+3}], v{V_RR} offset:256", memr=["M_f1"]); o(f"ds_read_b128 v[{UOP+4}:{UOP+7}], v{V_RR} offset:384", memr=["M_f2"])
            o(f"v_mul_f32 v81, v{P}, v{UOP}"); o(f"v_mul_f32 v82, v{P}, v{UOP+4}")
            for i in range(1, 4):
                o(f"v_fmac_f32 v81, v{P+i}, v{UOP+i}"); o(f"v_fmac_f32 v82, v{P+i}, v{UOP+4+i}")
            xhalf(o, 81, V_T0); xhalf(o, 82, V_T1)
            o(f"v_fma_f32 v{S1}, v81, s58, v83"); o(f"v_add_f32 v{S3}, v80, v82")
        PK3 = 20
        if pk:
            assert pa
            for r in (80, 81, 82, 83, PK3, PK3 + 1): o(f"v_mov_b32 v{r}, 0")
        elif fn:
            o(f"v_mov_b32 v{S2}, 0")
        else:
            o(f"v_mov_b32 v{S1}, 0"); o(f"v_mov_b32 v{S2}, 0"); o(f"v_mov_b32 v{S3}, 0")
        def gemm2(T):
            D = DA[T & 1]
            for kk in range(8):
                b = wload(L_WV + (T * 8 + kk) * 1024)
                c = "0" if kk == 0 else f"v[{D}:{D+15}]"
                dep = [f"M_o{T-1}"] if (pace and kk == 0 and T >= 1) else []
                o(f"v_mfma_f32_32x32x16_bf16 v[{D}:{D+15}], v[{X+4*kk}:{X+4*kk+3}], {b}, {c}", memr=dep)
            for j in range(8):
                o(f"v_cvt_pk_bf16_f32 v{VOP+8*T+j}, v{D+2*j}, v{D+2*j+1}")
        def otile(T):
            D = RR if (T & 1) else S
            if cid:
                for half in range(2):
                    xa = X + 4 * (2 * T + half)
                    c = "0" if half == 0 else f"v[{D}:{D+15}]"
                    o(f"v_mfma_f32_32x32x16_bf16 v[{D}:{D+15}], v[{72+4*half}:{72+4*half+3}], v[{xa}:{xa+3}], {c}")
            else:
              for half in range(2):
                for j in range(4):
                    x = X + 4 * (2 * T + half) + j
                    o(f"v_lshlrev_b32 v{D+8*half+2*j}, 16, v{x}")
                    o(f"v_and_b32 v{D+8*half+2*j+1}, s60, v{x}")
            for half in range(2):
                o(f"v_mfma_f32_32x32x16_bf16 v[{D}:{D+15}], v[{VOP+8*T+4*half}:{VOP+8*T+4*half+3}], v[{POP+4*half}:{POP+4*half+3}], v[{D}:{D+15}]", memw=([f"M_o{T}"] if half == 1 else []))
            if fn:
                for r in range(16):
                    o(f"v_fmac_f32 v{S2}, v{D+r}, v{D+r}")
                return
            for q in range(4):
                o(f"ds_read_b128 v[{WCR+4*q}:{WCR+4*q+3}], v{V_WC} offset:{T*64 + q*16}")
            if pk:
                for r in range(0, 16, 2):
                    o(f"v_pk_add_f32 v[80:81], v[80:81], v[{D+r}:{D+r+1}]")
                    o(f"v_pk_fma_f32 v[82:83], v[{D+r}:{D+r+1}], v[{D+r}:{D+r+1}], v[82:83]")
                    o(f"v_pk_fma_f32 v[64+16:64+17], v[{D+r}:{D+r+1}], v[{WCR+r}:{WCR+r+1}], v[64+16:64+17]".replace("v[64+16:64+17]", "v[0:1]") if False else f"v_pk_fma_f32 v[{PK3}:{PK3+1}], v[{D+r}:{D+r+1}], v[{WCR+r}:{WCR+r+1}], v[{PK3}:{PK3+1}]")
            else:
              for r in range(16):
                o(f"v_add_f32 v{S1}, v{S1}, v{D+r}")
                o(f"v_fmac_f32 v{S2}, v{D+r}, v{D+r}")
                o(f"v_fmac_f32 v{S3}, v{D+r}, v{WCR+r}")
        if pace:
            gemm2(0); otile(0); gemm2(1); otile(1); gemm2(2); otile(2); gemm2(3); otile(3)
        else:
            gemm2(0); gemm2(1); otile(0); gemm2(2); otile(1); gemm2(3); otile(2); otile(3)
        if pk:
            o(f"v_add_f32 v{S1}, v80, v81"); o(f"v_add_f32 v{S2}, v82, v83"); o(f"v_add_f32 v{S3}, v{PK3}, v{PK3+1}")
        o(f"v_mov_b32 v{V_TC}, v{V_C}"); o(f"v_mov_b32 v{V_TC2}, v{V_C2}")
        o(f"v_mov_b32 v{V_OT}, v{V_OUT}")
        o(f"s_sub_u32 s42, s36, {NWV}"); o("s_lshl_b32 s42, s42, 10")

    def region(fns):
        ops = []
        def o(t, memr=(), memw=()): ops.append(Op(t, memr, memw))
        for f in fns: f(o)
        seq = schedule(ops, reorder)
        lines, pd, pv = finalize(seq)
        idx = [i for i, q in enumerate(seq) if q.kind == "vmem"]
        loads = [i for i in idx if seq[i].name.startswith("buffer_load")]
        after = len([i for i in idx if loads and i > loads[-1]])
        return lines, after

    body, after = region([pre_ops, tail_ops, head_ops])
    A.op("s_mov_b32 s42, 0")
    A.label("tf_loop")
    if prof == 1: A.op("s_memrealtime s[72:73]")
    A.op(f"s_waitcnt vmcnt({after + (5 if prof == 1 else (10 if prof == 2 else 0))})")
    if prof == 1: A.op("s_memrealtime s[74:75]")
    if prof == 2:
        step = len(body) // 9
        for i, l in enumerate(body):
            if i % step == 0 and i // step < 10: A.op(f"s_memtime s[{70+2*(i//step)}:{71+2*(i//step)}]")
            A(l)
        A.op("s_waitcnt lgkmcnt(0)")
        A.op("s_add_u32 s86, s84, s85") if False else None
        A.op("s_lshl_b32 s32, s2, 4"); A.op("s_add_u32 s32, s32, s6"); A.op("s_lshl_b32 s32, s32, 10")
        A.op("s_sub_u32 s33, s36, s37"); A.op(f"s_lshr_b32 s33, s33, {2 if wreg else 3}"); A.op("s_lshl_b32 s33, s33, 7"); A.op("s_add_u32 s32, s32, s33")
        srd(A, 96, 4, 4 << 20, 96 << 20)
        A.op("s_mov_b64 exec, 1")
        for qi in range(10):
            A.op(f"v_mov_b32 v{V_T0}, s{70+2*qi}"); A.op(f"v_mov_b32 v{V_T1}, s{71+2*qi}"); A.op(f"v_mov_b32 v{V_L0}, {8*qi}")
            A.op(f"buffer_store_dwordx2 v[{V_T0}:{V_T1}], v{V_L0}, s[96:99], s32 offen"); A.op("s_nop 1")
        A.op("s_mov_b64 exec, -1")
    else:
        for l in body: A(l)
    if prof == 1:
        A.op("s_memrealtime s[78:79]")
        A.op("s_waitcnt lgkmcnt(0)")
        A.op("s_add_u32 s86, s84, s85"); A.op("s_add_u32 s85, s85, 64")
        A.op("s_mov_b64 exec, 1")
        for qi, sr in enumerate((70, 72, 74, 74, 78)):
            A.op(f"v_mov_b32 v{V_T0}, s{sr}"); A.op(f"v_mov_b32 v{V_T1}, s{sr+1}"); A.op(f"v_mov_b32 v{V_L0}, {8*qi}")
            A.op(f"buffer_store_dwordx2 v[{V_T0}:{V_T1}], v{V_L0}, s[80:83], s86 offen"); A.op("s_nop 1")
        A.op("s_mov_b64 exec, -1")
    A.op("s_waitcnt lgkmcnt(0)")
    A.op("s_cmp_le_u32 s36, s61"); A.op("s_cbranch_scc1 tf_loop")
    if fn: A.op("s_waitcnt vmcnt(0)")
    A.op("s_nop 7"); A.op("s_nop 7")
    ep, _ = region([tail_ops])
    for l in ep: A(l)
    A.label("tf_done")
    A.op("s_endpgm")
    return dict(name=name, grid=nwg, block=64 * NWV, lds=L_END, vgpr=512 if wreg else 256, accum=256, sgpr=100)
```

```python
import sys
from common import *
import prep

HEADER = open("gather_scatter__hybrid_graph_tf_nagphormer__graph.s.ref").read().split("; Override launch")[0]

def build(stages=("prep", "hops", "tf"), **kw):
    B = Asm()
    B('.amdgcn_target "amdgcn-amd-amdhsa--gfx950"')
    B(".text")
    ks = []
    if "prep" in stages:
        if 'prep2' in kw:
            import prep2
            ks.append(prep2.gen_prep(B, **kw['prep2']))
        else:
            ks.append(prep.gen_prep(B, **kw.get('prep', {})))
    if "hops" in stages:
        import hops
        ks.append(hops.gen_hops(B, **kw.get("hops", {})))
    if "tf" in stages:
        import tf3 as tf
        ks.append(tf.gen_tf(B, **kw.get("tf", {})))
    B('.section .rodata,"a"')
    for k in ks:
        kernel_desc(B, k["name"], k["vgpr"], k["sgpr"], k.get("accum"))
    head = HEADER
    for k in ks:
        head += f"; @launch kernel={k['name']} grid=({k['grid']},1,1) block=({k['block']},1,1) lds={k['lds']}\n"
    return head + B.text()

if __name__ == "__main__":
    st = sys.argv[2].split(",") if len(sys.argv) > 2 else ("prep", "hops", "tf")
    kw = eval(sys.argv[3]) if len(sys.argv) > 3 else {}
    open(sys.argv[1], "w").write(build(st, **kw))
```

```python
from common import *
import prep

L_CNT = 0
L_HIST = 6400
L_BINS = L_HIST + 256
L_SLOT = L_BINS + 256
L_NODE = L_SLOT + 832
L_DEG = L_NODE + 832
L_NDEG = L_DEG + 832
L_OVFP = L_NDEG + 832
L_DSQ = L_OVFP + 832
L_MISC = L_DSQ + 832
L_IMG = L_MISC + 64
IMG_STRIDE = CAP * 2
L_END = L_IMG + 208 * IMG_STRIDE
assert L_IMG % 16 == 0

def gen_hops(A, nh=7, depthfn=lambda W: 4, maxdepth=7, prio=1, sleep=1, prof=0, ld=' sc1', bar='flag', nshard=NSHARD, perm=(5,0,1,2,9,6,4,3,10,11,8,7,12), ndot=4, pf=0, pffrac=0.8, rtt=0, pw=0, pwprio=3, pwsleep=0, cells=False, stst='', fn=False, lps=4):
    name = "hops_kernel"
    kernel_begin(A, name)
    NW = 13
    NWB = NW + (1 if (rtt or pw) else 0)
    maxpairs = CAP // 2
    if fn: maxdepth = 4
    A.op("s_cmp_ge_u32 s2, 252"); A.op("s_cbranch_scc1 hops_done")
    A.op("s_load_dwordx2 s[4:5], s[0:1], 88")
    A.op("s_cmp_ge_u32 s2, 250"); A.op("s_cbranch_scc1 hops_wprep")
    A.op("s_load_dwordx2 s[44:45], s[0:1], 24")
    if prof: A.op("s_memrealtime s[64:65]")
    A.op("s_and_b32 s7, s2, 1"); A.op("s_lshr_b32 s8, s2, 1")
    if lps == 4:
        A.op("v_lshrrev_b32 v4, 2, v0")
        A.op("v_and_b32 v5, 3, v0")
    else:
        assert lps == 6
        A.op("v_mul_u32_u24 v4, 10923, v0"); A.op("v_lshrrev_b32 v4, 16, v4")
        A.op("v_mul_u32_u24 v5, 6, v4"); A.op("v_sub_u32 v5, v0, v5")
    A.op("v_lshlrev_b32 v6, 9, v4")
    A.op("s_lshl_b32 s9, s8, 2")
    A.op(f"s_mul_i32 s10, s8, {RN*2}")
    A.op("v_lshlrev_b32 v7, 1, v0")
    A.op("s_waitcnt lgkmcnt(0)")
    srd(A, 12, 4, NR * 512, OFF_OFFS)
    A.op("buffer_load_dwordx2 v[8:9], v6, s[12:15], s9 offen")
    srd(A, 60, 44, N * 2)
    A.op("buffer_load_ushort v43, v7, s[60:63], s10 offen")
    if cells:
        srd(A, 68, 4, CELL_BYTES, OFF_CELL)
        A.op(f"s_mul_i32 s10, s8, {NR*256}")
        A.op("v_lshlrev_b32 v7, 8, v4"); A.op("v_lshl_add_u32 v7, v5, 4, v7")
        for r in range(4):
            A.op(f"buffer_load_dwordx4 v[{44+4*r}:{44+4*r+3}], v7, s[68:71], s10 offen offset:{64*r}")
    srd(A, 16, 4, E * 4, OFF_ENT)
    A.op("v_lshrrev_b32 v1, 6, v0"); A.op("s_nop 0")
    A.op("v_readfirstlane_b32 s6, v1")
    A.op("v_lshlrev_b32 v1, 2, v0")
    A.op("v_mov_b32 v2, 0"); A.op("v_mov_b32 v3, -1")
    for i in range(2):
        A.op(f"ds_write_b32 v1, v2 offset:{i*3328}")
    assert 2 * 3328 >= L_BINS and 2 * 3328 <= L_SLOT + 0 or True
    nimg = 208 * IMG_STRIDE // 4
    for i in range(nimg // 832):
        A.op(f"ds_write_b32 v1, v3 offset:{L_IMG + i*3328}")
    assert nimg % 832 == 0
    A.op("v_cmp_gt_u32 vcc, 208, v0"); A.op("s_and_saveexec_b64 s[20:21], vcc")
    A.op(f"ds_write_b32 v1, v3 offset:{L_NODE}")
    A.op(f"ds_write_b32 v1, v2 offset:{L_DEG}")
    A.op("s_mov_b64 exec, s[20:21]")
    A.op("v_cmp_gt_u32 vcc, 16, v0"); A.op("s_and_saveexec_b64 s[20:21], vcc")
    A.op(f"ds_write_b32 v1, v2 offset:{L_MISC}")
    A.op("s_mov_b64 exec, s[20:21]")
    A.op("s_waitcnt lgkmcnt(0)")
    A.op("s_waitcnt vmcnt(%d)" % (5 if cells else 1))
    A.op("v_sub_u32 v10, v9, v8")
    A.op("v_mul_u32_u24 v11, 3200, v4"); A.op("v_add_u32 v11, v11, v8")
    A.op("v_lshl_add_u32 v11, v5, 2, v11"); A.op("v_lshlrev_b32 v11, 2, v11")
    A.op("v_lshlrev_b32 v12, 2, v5")
    NRND = 4 if lps == 4 else 3
    RS = 4 * lps
    for r in range(0 if cells else NRND):
        A.op(f"buffer_load_dwordx4 v[{44+4*r}:{44+4*r+3}], v11, s[16:19], 0 offen offset:{4*RS*r}")
    A.op("s_barrier")
    A.op("v_cmp_eq_u32 vcc, 0, v5"); A.op("s_and_saveexec_b64 s[20:21], vcc")
    A.op(f"v_mov_b32 v13, {L_MISC}"); A.op("ds_add_u32 v13, v8")
    A.op("s_mov_b64 exec, s[20:21]")
    ER = 44
    def keys(e, k):
        A.op(f"v_bfe_u32 v24, v{e}, 16, 8"); A.op(f"v_bfe_u32 v{k}, v{e}, 12, 4")
        A.op(f"v_lshl_add_u32 v{k}, v24, 3, v{k}"); A.op(f"v_lshlrev_b32 v{k}, 2, v{k}")
    def count4(e0, pos):
        for i in range(4):
            keys(e0 + i, 25 + i)
        for i in range(4):
            A.op(f"v_add_u32 v24, {i}, v{pos}"); A.op("v_cmp_lt_u32 vcc, v24, v10"); A.op("s_and_b64 exec, s[22:23], vcc")
            A.op(f"ds_add_u32 v{25+i}, v30 offset:{L_CNT}")
        A.op("s_mov_b64 exec, s[22:23]")
    def fill4(e0, pos):
        for i in range(4):
            keys(e0 + i, 25 + i)
            A.op(f"v_bfe_u32 v{20+i}, v{e0+i}, 16, 8")
        for i in range(4):
            A.op(f"v_add_u32 v24, {i}, v{pos}"); A.op(f"v_cmp_lt_u32 s[{24+2*i}:{25+2*i}], v24, v10")
        for i in range(4):
            A.op(f"s_and_b64 exec, s[22:23], s[{24+2*i}:{25+2*i}]")
            A.op(f"ds_add_rtn_u32 v{32+i}, v{25+i}, v30 offset:{L_CNT}")
            A.op(f"v_lshlrev_b32 v24, 2, v{20+i}")
            A.op(f"ds_read_b32 v{36+i}, v24 offset:{L_SLOT}")
        A.op("s_mov_b64 exec, s[22:23]")
        A.op("s_waitcnt lgkmcnt(0)")
        for i in range(4):
            A.op("s_mov_b64 exec, s[22:23]")
            A.op(f"v_cmp_gt_u32 vcc, {CAP}, v{32+i}")
            A.op(f"s_and_b64 s[32:33], s[{24+2*i}:{25+2*i}], vcc")
            A.op(f"s_and_b64 exec, s[22:23], s[32:33]")
            A.op(f"v_mul_u32_u24 v24, {IMG_STRIDE}, v{36+i}")
            A.op(f"v_lshl_add_u32 v24, v{32+i}, 1, v24")
            A.op(f"ds_write_b16 v24, v{e0+i} offset:{L_IMG}")
            A.op(f"s_andn2_b64 s[32:33], s[{24+2*i}:{25+2*i}], vcc")
            A.op(f"s_and_b64 exec, s[22:23], s[32:33]")
            lo = A.new("no")
            A.op(f"s_cbranch_execz {lo}")
            A.op(f"v_lshlrev_b32 v24, 2, v{20+i}")
            A.op(f"ds_read_b32 v24, v24 offset:{L_OVFP}")
            A.op("s_waitcnt lgkmcnt(0)")
            A.op(f"v_add_u32 v24, v24, v{32+i}")
            A.op(f"v_subrev_u32 v24, {CAP}, v24")
            A.op(f"v_lshlrev_b32 v24, 1, v24")
            A.op(f"buffer_store_short v{e0+i}, v24, s[48:51], 0 offen")
            A.label(lo)
        A.op("s_mov_b64 exec, s[22:23]")
    def fillA(e0, pos, pr, sr):
        for i in range(4):
            keys(e0 + i, 25 + i)
            A.op(f"v_bfe_u32 v{20+i}, v{e0+i}, 16, 8"); A.op(f"v_lshlrev_b32 v{20+i}, 2, v{20+i}")
        for i in range(4):
            A.op(f"v_add_u32 v24, {i}, v{pos}"); A.op("v_cmp_lt_u32 vcc, v24, v10"); A.op("s_and_b64 exec, s[22:23], vcc")
            A.op(f"ds_add_rtn_u32 v{pr+i}, v{25+i}, v30 offset:{L_CNT}")
            A.op(f"ds_read_b32 v{sr+i}, v{20+i} offset:{L_SLOT}")
        A.op("s_mov_b64 exec, s[22:23]")
    def fillB(e0, pos, pr, sr):
        for i in range(4):
            A.op("s_mov_b64 exec, s[22:23]")
            A.op(f"v_add_u32 v24, {i}, v{pos}"); A.op(f"v_cmp_lt_u32 s[24:25], v24, v10")
            A.op(f"v_cmp_gt_u32 vcc, {CAP}, v{pr+i}")
            A.op(f"v_mul_u32_u24 v24, {IMG_STRIDE}, v{sr+i}")
            A.op(f"v_lshl_add_u32 v24, v{pr+i}, 1, v24")
            A.op(f"s_and_b64 exec, s[24:25], vcc")
            A.op(f"ds_write_b16 v24, v{e0+i} offset:{L_IMG}")
            A.op(f"s_andn2_b64 exec, s[24:25], vcc")
            lo = A.new("no")
            A.op(f"s_cbranch_execz {lo}")
            A.op(f"v_bfe_u32 v24, v{e0+i}, 16, 8"); A.op(f"v_lshlrev_b32 v24, 2, v24")
            A.op(f"ds_read_b32 v24, v24 offset:{L_OVFP}")
            A.op("s_waitcnt lgkmcnt(0)")
            A.op(f"v_add_u32 v24, v24, v{pr+i}")
            A.op(f"v_subrev_u32 v24, {CAP}, v24")
            A.op(f"v_lshlrev_b32 v24, 1, v24")
            A.op(f"buffer_store_short v{e0+i}, v24, s[48:51], 0 offen")
            A.label(lo)
        A.op("s_mov_b64 exec, s[22:23]")
    def entry_pass(fill):
        f4 = fill4 if fill else count4
        A.op("v_mov_b32 v30, 1"); A.op("s_mov_b64 s[22:23], exec")
        done = A.new("epd")
        if not fill:
            for r in range(NRND):
                A.op(f"v_add_u32 v15, {RS*r}, v12")
                A.op("v_cmp_lt_u32 vcc, v15, v10"); A.op(f"s_cbranch_vccz {done}")
                f4(ER + 4 * r, 15)
        else:
            la = A.new("fa"); lb = A.new("fb")
            for r in range(NRND):
                A.op(f"v_add_u32 v15, {RS*r}, v12")
                A.op("v_cmp_lt_u32 vcc, v15, v10"); A.op(f"s_cbranch_vccz {la}")
                fillA(ER + 4 * r, 15, 60 + 4 * r, 76 + 4 * r)
                A.op("s_waitcnt lgkmcnt(6)")
            A.label(la)
            A.op("s_waitcnt lgkmcnt(0)")
            for r in range(NRND):
                A.op(f"v_add_u32 v15, {RS*r}, v12")
                A.op("v_cmp_lt_u32 vcc, v15, v10"); A.op(f"s_cbranch_vccz {done}")
                fillB(ER + 4 * r, 15, 60 + 4 * r, 76 + 4 * r)
        lp = A.new("ep")
        A.op(f"v_add_u32 v14, {4*RS*NRND}, v11"); A.op(f"v_add_u32 v15, {RS*NRND}, v12")
        A.label(lp)
        A.op("v_cmp_lt_u32 vcc, v15, v10"); A.op(f"s_cbranch_vccz {done}")
        A.op("buffer_load_dwordx4 v[16:19], v14, s[16:19], 0 offen")
        A.op("s_waitcnt vmcnt(0)")
        f4(16, 15)
        A.op(f"v_add_u32 v14, {4*RS}, v14"); A.op(f"v_add_u32 v15, {RS}, v15")
        A.op(f"s_branch {lp}")
        A.label(done)
    A.op("s_waitcnt vmcnt(0)")
    if prof: A.op("s_memrealtime s[66:67]")
    entry_pass(False)
    A.op("s_waitcnt lgkmcnt(0)")
    A.op("s_barrier")
    if prof: A.op("s_memrealtime s[68:69]")
    A.op("v_cmp_gt_u32 vcc, 200, v0"); A.op("s_and_saveexec_b64 s[20:21], vcc")
    l1 = A.new("np"); A.op(f"s_cbranch_execz {l1}")
    A.op("v_lshlrev_b32 v1, 5, v0")
    A.op(f"ds_read_b128 v[16:19], v1 offset:{L_CNT}"); A.op(f"ds_read_b128 v[20:23], v1 offset:{L_CNT+16}")
    A.op("s_waitcnt lgkmcnt(0)")
    A.op("v_mov_b32 v24, 0")
    for i in range(8):
        A.op(f"v_mov_b32 v25, v{16+i}"); A.op(f"v_mov_b32 v{16+i}, v24"); A.op("v_add_u32 v24, v24, v25")
    A.op(f"ds_write_b128 v1, v[16:19] offset:{L_CNT}"); A.op(f"ds_write_b128 v1, v[20:23] offset:{L_CNT+16}")
    A.op("v_mov_b32 v40, v24")
    A.op(f"v_min_u32 v41, {CAP}, v24"); A.op("v_lshlrev_b32 v41, 2, v41")
    A.op("v_mov_b32 v30, 1")
    A.op(f"ds_add_rtn_u32 v42, v41, v30 offset:{L_HIST}")
    A.op("v_lshlrev_b32 v1, 2, v0")
    A.op(f"ds_write_b32 v1, v40 offset:{L_NDEG}")
    A.op("v_lshlrev_b32 v43, 16, v43"); A.op("v_mul_f32 v43, v43, v43")
    A.op(f"ds_write_b32 v1, v43 offset:{L_DSQ}")
    A.op(f"v_cmp_lt_u32 vcc, {CAP}, v40"); A.op("s_and_b64 exec, exec, vcc")
    A.op(f"v_mov_b32 v13, {L_MISC+4}"); A.op("ds_write_b32 v13, v30")
    A.label(l1)
    A.op("s_mov_b64 exec, s[20:21]")
    A.op("s_waitcnt lgkmcnt(0)")
    A.op("s_barrier")
    A.op("s_cmp_eq_u32 s6, 0"); l2 = A.new("w0"); A.op(f"s_cbranch_scc0 {l2}")
    A.op("v_lshlrev_b32 v1, 2, v0")
    A.op(f"ds_read_b32 v16, v1 offset:{L_HIST}")
    A.op(f"v_mov_b32 v13, {L_MISC}"); A.op("ds_read_b64 v[18:19], v13")
    A.op("s_waitcnt lgkmcnt(0)")
    wave_scan_incl(A, 16)
    A.op("v_sub_u32 v16, 200, v16")
    A.op(f"ds_write_b32 v1, v16 offset:{L_BINS}")
    A.op("v_readfirstlane_b32 s9, v18"); A.op("v_readfirstlane_b32 s10, v19")
    A.op("s_nop 3")
    A.op("s_cmp_eq_u32 s10, 0"); A.op(f"s_cbranch_scc1 {l2}")
    A.op("s_mov_b32 s11, 0")
    lo = A.new("ov"); A.label(lo)
    A.op("s_lshl_b32 s20, s11, 2"); A.op("v_mov_b32 v1, s20")
    A.op(f"ds_read_b32 v16, v1 offset:{L_NDEG}")
    A.op("v_mov_b32 v17, s9"); A.op(f"ds_write_b32 v1, v17 offset:{L_OVFP}")
    A.op("s_waitcnt lgkmcnt(0)")
    A.op("v_readfirstlane_b32 s20, v16"); A.op("s_nop 3")
    A.op(f"s_max_u32 s20, s20, {CAP}"); A.op(f"s_sub_u32 s20, s20, {CAP}"); A.op("s_add_u32 s9, s9, s20")
    A.op("s_add_u32 s11, s11, 1"); A.op("s_cmp_lt_u32 s11, 200"); A.op(f"s_cbranch_scc1 {lo}")
    A.label(l2)
    A.op("s_waitcnt lgkmcnt(0)")
    A.op("s_barrier")
    A.op("v_cmp_gt_u32 vcc, 200, v0"); A.op("s_and_saveexec_b64 s[20:21], vcc")
    l3 = A.new("np"); A.op(f"s_cbranch_execz {l3}")
    A.op(f"ds_read_b32 v16, v41 offset:{L_BINS}")
    A.op("s_waitcnt lgkmcnt(0)")
    A.op("v_add_u32 v16, v16, v42")
    A.op("v_lshlrev_b32 v1, 2, v0"); A.op(f"ds_write_b32 v1, v16 offset:{L_SLOT}")
    A.op("v_lshlrev_b32 v16, 2, v16")
    A.op(f"ds_write_b32 v16, v0 offset:{L_NODE}"); A.op(f"ds_write_b32 v16, v40 offset:{L_DEG}")
    A.label(l3)
    A.op("s_mov_b64 exec, s[20:21]")
    A.op(f"s_mul_i32 s9, s7, {E*2}"); A.op(f"s_add_u32 s9, s9, {OFF_OVF}")
    A.op("s_add_u32 s48, s4, s9"); A.op("s_addc_u32 s49, s5, 0"); A.op(f"s_mov_b32 s50, {E*2}"); A.op("s_mov_b32 s51, 0x20000")
    A.op("s_waitcnt lgkmcnt(0)")
    A.op("s_barrier")
    if prof: A.op("s_memrealtime s[70:71]")
    entry_pass(True)
    A.op("s_waitcnt vmcnt(0) lgkmcnt(0)")
    A.op("s_barrier")
    if prof: A.op("s_memrealtime s[72:73]")
    if rtt:
        A.op(f"s_cmp_eq_u32 s6, {NW}"); A.op("s_cbranch_scc1 hop_rtt")
    if pw:
        A.op(f"s_cmp_eq_u32 s6, {NW}"); A.op("s_cbranch_scc1 hop_pw")
    P = [26, 26 + maxpairs]
    VA = 26 + 2 * maxpairs; VN = VA + 2; VS = VN + 2
    DATA = (VS + 2 + 3) // 4 * 4
    ACC = [10, 18]
    nv = DATA + 8 * maxdepth
    KF = DATA + 32
    if fn: nv = KF + 24
    assert nv <= 128
    A.op("v_and_b32 v0, 63, v0")
    A.op("v_and_b32 v8, 7, v0"); A.op("v_lshlrev_b32 v8, 4, v8")
    A.op("v_lshrrev_b32 v5, 3, v0")
    pc = sum(p << (4 * w) for w, p in enumerate(perm))
    A.op(f"s_mov_b32 s58, {pc & 0xffffffff:#x}"); A.op(f"s_mov_b32 s59, {pc >> 32:#x}")
    A.op("s_lshl_b32 s9, s6, 2"); A.op("s_lshr_b64 s[58:59], s[58:59], s9"); A.op("s_and_b32 s56, s58, 15")
    A.op("s_lshl_b32 s9, s56, 4")
    A.op("v_add_u32 v5, s9, v5")
    A.op(f"s_mul_i32 s10, s8, {RN}")
    for i in range(2):
        A.op(f"v_add_u32 v6, {8*i}, v5")
        A.op(f"v_mul_u32_u24 v7, {IMG_STRIDE}, v6")
        A.op("v_lshlrev_b32 v6, 2, v6")
        A.op(f"ds_read_b32 v2, v6 offset:{L_NODE}"); A.op(f"ds_read_b32 v{3+i}, v6 offset:{L_DEG}")
        for p in range(maxpairs):
            A.op(f"ds_read_b32 v{P[i]+p}, v7 offset:{L_IMG + 4*p}")
            if p % 8 == 7: A.op("s_waitcnt lgkmcnt(4)")
        A.op("s_waitcnt lgkmcnt(4)")
        A.op("v_cmp_gt_u32 vcc, 200, v2")
        A.op("v_min_u32 v6, 199, v2"); A.op("v_lshlrev_b32 v6, 2, v6")
        A.op(f"ds_read_b32 v{VS+i}, v6 offset:{L_DSQ}")
        A.op("v_add_u32 v2, s10, v2")
        A.op("v_lshl_add_u32 v2, v2, 7, v8")
        A.op(f"v_cndmask_b32_e64 v{VN+i}, -1, v2, vcc")
    A.op("v_max_u32 v3, v3, v4")
    A.op("s_nop 0")
    A.op("v_readfirstlane_b32 s40, v3")
    A.op("s_nop 3")
    A.op(f"s_cmp_gt_u32 s40, {CAP}"); A.op("s_cselect_b32 s41, 1, 0")
    A.op(f"s_min_u32 s40, s40, {CAP}"); A.op("s_add_u32 s40, s40, 1"); A.op("s_lshr_b32 s40, s40, 1")
    A.op("s_waitcnt lgkmcnt(0)")
    A.op("s_mov_b32 s28, 0x3f80"); A.op("s_mov_b32 s29, 0x3f800000"); A.op("s_mov_b32 s30, 128")
    A.op(f"s_mul_i32 s19, s7, {HALF}")
    A.op("s_add_u32 s20, s4, s19"); A.op("s_addc_u32 s21, s5, 0")
    A.op(f"s_mov_b32 s22, {HALF}"); A.op("s_mov_b32 s23, 0x20000")
    A.op(f"s_add_u32 s24, s20, {TAB}"); A.op("s_addc_u32 s25, s21, 0")
    A.op(f"s_mov_b32 s26, {HALF}"); A.op("s_mov_b32 s27, 0x20000")
    cbytes = nshard * 128 if bar == 'cnt' else 128 * 128
    A.op(f"s_mul_i32 s19, s7, {cbytes}"); A.op(f"s_add_u32 s19, s19, {OFF_CNT}")
    A.op("s_add_u32 s32, s4, s19"); A.op("s_addc_u32 s33, s5, 0")
    A.op(f"s_mov_b32 s34, {cbytes}"); A.op("s_mov_b32 s35, 0x20000")
    A.op(f"s_lshl_b32 s19, s7, 3"); A.op(f"s_add_u32 s19, s19, {OFF_ST + ST_TOK}")
    A.op("s_add_u32 s76, s4, s19"); A.op("s_addc_u32 s77, s5, 0")
    A.op(f"s_mov_b32 s78, {ST_TOK - 8}"); A.op("s_mov_b32 s79, 0x20000")
    if fn:
        srd(A, 80, 4, 1536, OFF_FV)
        A.op("v_lshlrev_b32 v2, 1, v8"); A.op("s_lshl_b32 s19, s7, 8")
        for v in range(3):
            for q in range(2):
                A.op(f"buffer_load_dwordx4 v[{KF+8*v+4*q}:{KF+8*v+4*q+3}], v2, s[80:83], s19 offen offset:{512*v + 16*q}")
        A.op(f"s_lshl_b32 s19, s7, 4"); A.op(f"s_add_u32 s19, s19, {OFF_FN}")
        A.op("s_add_u32 s84, s4, s19"); A.op("s_addc_u32 s85, s5, 0")
        A.op(f"s_mov_b32 s86, {FN_TOK - 16}"); A.op("s_mov_b32 s87, 0x20000")
        A.op("s_load_dwordx2 s[92:93], s[0:1], 0")
        A.op("s_waitcnt vmcnt(0) lgkmcnt(0)")
        srd(A, 88, 92, TAB)
    A.op("s_mov_b32 s36, 0")
    if prof:
        A.op("s_memrealtime s[74:75]")
        A.op("s_waitcnt lgkmcnt(0)")
        srd(A, 80, 4, 4 << 20, 96 << 20)
        A.op("s_lshl_b32 s84, s2, 4"); A.op("s_add_u32 s84, s84, s6"); A.op("s_lshl_b32 s84, s84, 10")
        A.op("s_mov_b64 exec, 1")
        for qi in range(6):
            A.op(f"v_mov_b32 v6, s{64+2*qi}"); A.op(f"v_mov_b32 v7, s{65+2*qi}"); A.op(f"v_mov_b32 v2, {8*qi}")
            A.op("buffer_store_dwordx2 v[6:7], v2, s[80:83], s84 offen"); A.op("s_nop 1")
        A.op("s_mov_b64 exec, -1")
    def stats():
        A.cmt("row statistics (sum, sum of squares over this half) for the transformer LayerNorm")
        for i in range(2):
            t = DATA + 8 + 2 * i
            A.op(f"v_add_f32 v{t}, v{ACC[i]}, v{ACC[i]+1}"); A.op(f"v_mul_f32 v{t+1}, v{ACC[i]}, v{ACC[i]}")
            A.op(f"v_fmac_f32 v{t+1}, v{ACC[i]+1}, v{ACC[i]+1}")
            for q in range(2, 8):
                A.op(f"v_add_f32 v{t}, v{t}, v{ACC[i]+q}"); A.op(f"v_fmac_f32 v{t+1}, v{ACC[i]+q}, v{ACC[i]+q}")
        for m in ("quad_perm:[1,0,3,2]", "quad_perm:[2,3,0,1]", "row_half_mirror"):
            for q in range(4):
                A.op(f"v_add_f32_dpp v{DATA+8+q}, v{DATA+8+q}, v{DATA+8+q} {m} row_mask:0xf bank_mask:0xf")
        A.op(f"v_lshrrev_b32 v2, 3, v{VN}"); A.op(f"v_lshrrev_b32 v3, 3, v{VN+1}")
        A.op("s_mov_b32 exec_lo, 0x01010101"); A.op("s_mov_b32 exec_hi, 0x01010101")
        A.op(f"buffer_store_dwordx2 v[{DATA+8}:{DATA+9}], v2, s[76:79], 0 offen{stst}")
        A.op(f"buffer_store_dwordx2 v[{DATA+10}:{DATA+11}], v3, s[76:79], 0 offen{stst}")
        A.op("s_mov_b64 exec, -1")
        A.op(f"s_add_u32 s76, s76, {ST_TOK}"); A.op("s_addc_u32 s77, s77, 0")
        if fn:
            A.op(f"s_add_u32 s84, s84, {FN_TOK}"); A.op("s_addc_u32 s85, s85, 0")
            funcs([[ACC[0] + q for q in range(8)], [ACC[1] + q for q in range(8)]])
    def funcs(vals):
        F = [DATA + 12, DATA + 16]
        for i in range(2):
            for v in range(3):
                A.op(f"v_mul_f32 v{F[i]+v}, v{vals[i][0]}, v{KF+8*v}")
                for q in range(1, 8):
                    A.op(f"v_fmac_f32 v{F[i]+v}, v{vals[i][q]}, v{KF+8*v+q}")
        for m in ("quad_perm:[1,0,3,2]", "quad_perm:[2,3,0,1]", "row_half_mirror"):
            for i in range(2):
                for v in range(3):
                    A.op(f"v_add_f32_dpp v{F[i]+v}, v{F[i]+v}, v{F[i]+v} {m} row_mask:0xf bank_mask:0xf")
        A.op(f"v_lshrrev_b32 v2, 2, v{VN}"); A.op(f"v_lshrrev_b32 v3, 2, v{VN+1}")
        A.op("s_mov_b32 exec_lo, 0x01010101"); A.op("s_mov_b32 exec_hi, 0x01010101")
        A.op(f"buffer_store_dwordx4 v[{F[0]}:{F[0]+3}], v2, s[84:87], 0 offen")
        A.op(f"buffer_store_dwordx4 v[{F[1]}:{F[1]+3}], v3, s[84:87], 0 offen")
        A.op("s_mov_b64 exec, -1")
    def xpre():
        if not fn: return
        l = A.new("xp")
        A.op("s_cmp_eq_u32 s36, 1"); A.op(f"s_cbranch_scc0 {l}")
        A.op("s_lshl_b32 s19, s7, 7")
        for i in range(2):
            A.op(f"v_lshlrev_b32 v2, 1, v{VN+i}"); A.op("v_sub_u32 v2, v2, v8")
            A.op(f"buffer_load_dwordx4 v[{DATA+20+4*i}:{DATA+23+4*i}], v2, s[88:91], s19 offen")
        A.label(l)
    def xpost():
        if not fn: return
        l = A.new("xq")
        A.op("s_cmp_eq_u32 s36, 1"); A.op(f"s_cbranch_scc0 {l}")
        A.op("s_waitcnt vmcnt(0)")
        A.op("s_mov_b32 s19, 0xffff0000")
        U = [ACC[0], ACC[1]]
        for i in range(2):
            for q in range(4):
                A.op(f"v_lshlrev_b32 v{U[i]+2*q}, 16, v{DATA+20+4*i+q}"); A.op(f"v_and_b32 v{U[i]+2*q+1}, s19, v{DATA+20+4*i+q}")
        A.op(f"s_sub_u32 s84, s84, {FN_TOK}"); A.op("s_subb_u32 s85, s85, 0")
        funcs([[U[0] + q for q in range(8)], [U[1] + q for q in range(8)]])
        A.op(f"s_add_u32 s84, s84, {FN_TOK}"); A.op("s_addc_u32 s85, s85, 0")
        A.label(l)
    A.label("hop_loop")
    if prof: A.op("s_memrealtime s[64:65]")
    for i in range(2):
        for q in range(8):
            A.op(f"v_mov_b32 v{ACC[i]+q}, 0")
    if pf:
        A.op("s_lshr_b32 s82, s2, 3"); A.op("s_and_b32 s82, s82, 31")
        A.op("s_lshl_b32 s83, s6, 5"); A.op("s_add_u32 s82, s82, s83"); A.op("s_lshl_b32 s82, s82, 7")
        A.op("s_add_u32 s84, s20, s82"); A.op("s_addc_u32 s85, s21, 0")
        for b in range(1, 4):
            A.op(f"s_add_u32 s{84+2*b}, s84, {19*b*53248}"); A.op(f"s_addc_u32 s{85+2*b}, s85, 0")
    def tree(lo, hi):
        if lo == hi:
            A.op(f"s_branch hop_w{lo}"); return
        mid = (lo + hi + 1) // 2
        l = A.new("bt")
        A.op(f"s_cmp_ge_u32 s40, {mid}"); A.op(f"s_cbranch_scc1 {l}")
        tree(lo, mid - 1)
        A.label(l)
        tree(mid, hi)
    tree(0, maxpairs)
    A.label("hop_w0")
    A.op("s_branch hop_fin")
    for n in range(1, maxpairs + 1):
        A.label(f"hop_w{n}")
        steps = 2 * n
        depth = max(1, min(maxdepth, depthfn(steps), steps))
        state = {"p": None}
        def prefetch(j):
            if not pf: return
            ns = max(1, int(steps * pffrac))
            lo = min(60, (60 * j + ns - 1) // ns); hi = min(60, (60 * (j + 1) + ns - 1) // ns)
            for n_ in range(lo, hi):
                b = 84 + 2 * (n_ // 19)
                for sub in range(pf):
                    A.op(f"s_load_dword s{92 + (n_ & 1)}, s[{b}:{b+1}], {(n_ % 19) * 53248 + 64 * sub}")
        def issue(j):
            if prio:
                p = 3 - min(3, (4 * j) // steps)
                if p != state["p"]:
                    A.op(f"s_setprio {p}"); state["p"] = p
            for i in range(2):
                A.op(f"v_mad_u32_u16 v{VA + i}, v{P[i] + j//2}, s30, v8 op_sel:[{j&1},0,0,0]")
                d = DATA + 8 * (j % depth) + 4 * i
                A.op(f"buffer_load_dwordx4 v[{d}:{d+3}], v{VA + i}, s[20:23], 0 offen{ld}")
        for j in range(min(depth, steps)):
            issue(j)
        for j in range(steps):
            prefetch(j)
            out_steps = min(steps, j + depth) - j - 1
            for i in range(2):
                A.op(f"s_waitcnt vmcnt({2*out_steps + (1 - i)})")
                d = DATA + 8 * (j % depth) + 4 * i
                for q in range(ndot):
                    A.op(f"v_dot2c_f32_bf16 v{ACC[i]+2*q}, s28, v{d+q}")
                    A.op(f"v_dot2c_f32_bf16 v{ACC[i]+2*q+1}, s29, v{d+q}")
            if j + depth < steps:
                issue(j + depth)
        if n != maxpairs:
            A.op(f"s_branch hop_fin")
    A.label("hop_fin")
    if pf: A.op("s_waitcnt lgkmcnt(0)")
    if prof: A.op("s_memrealtime s[66:67]")
    if prio: A.op("s_setprio 0")
    A.op("s_cmp_eq_u32 s41, 0"); A.op("s_cbranch_scc1 hop_noovf")
    T = DATA; DD = DATA + 8
    for i in range(2):
        A.op("s_mov_b32 s52, 0")
        lg = A.new("og"); ln = A.new("on"); ll = A.new("ol"); ld = A.new("od")
        A.label(lg)
        A.op(f"s_lshl_b32 s53, s56, 4"); A.op(f"s_add_u32 s53, s53, s52"); A.op(f"s_add_u32 s53, s53, {8*i}")
        A.op("s_lshl_b32 s53, s53, 2"); A.op("v_mov_b32 v2, s53")
        A.op(f"ds_read_b32 v3, v2 offset:{L_DEG}"); A.op(f"ds_read_b32 v4, v2 offset:{L_NODE}")
        A.op("s_waitcnt lgkmcnt(0)")
        A.op("v_readfirstlane_b32 s54, v3"); A.op("v_lshlrev_b32 v4, 2, v4"); A.op("s_nop 2")
        A.op(f"s_cmp_le_u32 s54, {CAP}"); A.op(f"s_cbranch_scc1 {ln}")
        A.op(f"ds_read_b32 v4, v4 offset:{L_OVFP}")
        A.op(f"s_sub_u32 s54, s54, {CAP}")
        for q in range(8):
            A.op(f"v_mov_b32 v{T+q}, 0")
        A.op("v_lshrrev_b32 v5, 3, v0")
        A.op("s_waitcnt lgkmcnt(0)")
        A.label(ll)
        A.op("v_add_u32 v6, v4, v5"); A.op("v_lshlrev_b32 v6, 1, v6")
        A.op("buffer_load_ushort v7, v6, s[48:51], 0 offen sc1")
        A.op("v_cmp_gt_u32 vcc, s54, v5")
        A.op("v_mov_b32 v6, 0xffff")
        A.op("s_waitcnt vmcnt(0)")
        A.op("v_cndmask_b32_e64 v7, v6, v7, vcc")
        A.op("v_mad_u32_u24 v7, v7, s30, v8")
        A.op(f"buffer_load_dwordx4 v[{DD}:{DD+3}], v7, s[20:23], 0 offen sc1")
        A.op("v_add_u32 v5, 8, v5")
        A.op("s_waitcnt vmcnt(0)")
        for q in range(4):
            A.op(f"v_dot2c_f32_bf16 v{T+2*q}, s28, v{DD+q}")
            A.op(f"v_dot2c_f32_bf16 v{T+2*q+1}, s29, v{DD+q}")
        A.op("v_min_u32 v6, v5, v5")
        A.op("v_readfirstlane_b32 s55, v5"); A.op("s_nop 3")
        A.op("s_cmp_lt_u32 s55, s54"); A.op(f"s_cbranch_scc1 {ll}")
        for q in range(8):
            A.op("s_nop 1")
            A.op(f"v_add_f32_dpp v{T+q}, v{T+q}, v{T+q} row_ror:8 row_mask:0xf bank_mask:0xf")
        for q in range(8):
            A.op(f"ds_swizzle_b32 v{DD+q}, v{T+q} offset:0x401f")
        A.op("s_waitcnt lgkmcnt(0)")
        for q in range(8):
            A.op(f"v_add_f32 v{T+q}, v{T+q}, v{DD+q}")
            A.op(f"v_mov_b32 v{DD+q}, v{T+q}")
        A.op("s_nop 1")
        for q in range(8):
            A.op(f"v_permlane32_swap_b32 v{T+q}, v{DD+q}")
        A.op("s_mov_b32 s58, 0xff"); A.op("s_mov_b32 s59, 0"); A.op("s_lshl_b32 s55, s52, 3"); A.op("s_lshl_b64 s[58:59], s[58:59], s55")
        for q in range(8):
            A.op(f"v_add_f32 v{T+q}, v{T+q}, v{DD+q}")
        A.op("s_mov_b64 exec, s[58:59]")
        for q in range(8):
            A.op(f"v_add_f32 v{ACC[i]+q}, v{ACC[i]+q}, v{T+q}")
        A.op("s_mov_b64 exec, -1")
        A.label(ln)
        A.op("s_add_u32 s52, s52, 1"); A.op("s_cmp_lt_u32 s52, 8"); A.op(f"s_cbranch_scc1 {lg}")
    A.label("hop_noovf")
    for i in range(2):
        for q in range(8):
            A.op(f"v_mul_f32 v{ACC[i]+q}, v{VS+i}, v{ACC[i]+q}")
        d = DATA + 4 * i
        for q in range(4):
            A.op(f"v_cvt_pk_bf16_f32 v{d+q}, v{ACC[i]+2*q}, v{ACC[i]+2*q+1}")
        A.op(f"buffer_store_dwordx4 v[{d}:{d+3}], v{VN+i}, s[24:27], 0 offen sc0 sc1")
    A.op("s_add_u32 s36, s36, 1")
    A.op(f"s_add_u32 s20, s20, {TAB}"); A.op("s_addc_u32 s21, s21, 0")
    A.op(f"s_add_u32 s24, s24, {TAB}"); A.op("s_addc_u32 s25, s25, 0")
    A.op(f"s_cmp_ge_u32 s36, {nh}"); A.op("s_cbranch_scc1 hop_last")
    A.op("s_waitcnt vmcnt(0)")
    if prof: A.op("s_memrealtime s[68:69]")
    A.op("s_barrier")
    if prof:
        A.op("s_memrealtime s[70:71]")
        A.op("s_waitcnt lgkmcnt(0)")
        A.op("s_lshl_b32 s85, s36, 6"); A.op("s_add_u32 s85, s85, s84")
        A.op("s_mov_b64 exec, 1")
        for qi in range(4):
            A.op(f"v_mov_b32 v6, s{64+2*qi}"); A.op(f"v_mov_b32 v7, s{65+2*qi}"); A.op(f"v_mov_b32 v2, {8*qi}")
            A.op("buffer_store_dwordx2 v[6:7], v2, s[80:83], s85 offen"); A.op("s_nop 1")
        A.op("s_mov_b64 exec, -1")
    if pw: A.op("s_branch hop_barother")
    A.op("s_cmp_lg_u32 s6, 0"); A.op("s_cbranch_scc1 hop_barother")
    if bar == 'cnt':
        A.op(f"s_and_b32 s9, s8, {nshard-1}"); A.op("s_lshl_b32 s9, s9, 7")
        A.op("v_mov_b32 v2, s9"); A.op("v_mov_b32 v3, 1")
        A.op("s_mov_b64 exec, 1")
        A.op("buffer_atomic_add v3, v2, s[32:35], 0 offen sc1")
        A.op("s_mov_b64 exec, -1")
        A.op(f"v_min_u32 v5, {nshard-1}, v0"); A.op("v_lshlrev_b32 v2, 7, v5")
        A.op(f"v_sub_u32 v5, {NR + nshard - 1}, v5"); A.op(f"v_lshrrev_b32 v5, {nshard.bit_length()-1}, v5")
        A.op("v_mul_lo_u32 v5, v5, s36")
    else:
        A.op("s_lshl_b32 s9, s8, 7")
        A.op("v_mov_b32 v2, s9"); A.op("v_mov_b32 v3, s36")
        A.op("s_mov_b64 exec, 1")
        A.op("buffer_store_dword v3, v2, s[32:35], 0 offen sc0 sc1")
        A.op("s_mov_b64 exec, -1")
        A.op("v_lshlrev_b32 v2, 7, v0")
        A.op("v_add_u32 v3, 64, v0"); A.op(f"v_min_u32 v3, {NR-1}, v3"); A.op("v_lshlrev_b32 v3, 7, v3")
    A.op("v_mov_b32 v4, v2"); A.op("v_mov_b32 v9, v3"); A.op("v_mov_b32 v6, v5")
    stats()
    xpre()
    A.op("v_mov_b32 v2, v4"); A.op("v_mov_b32 v3, v9"); A.op("v_mov_b32 v5, v6")
    A.op("s_mov_b32 s37, 0")
    A.label("hop_poll")
    A.op("buffer_load_dword v4, v2, s[32:35], 0 offen sc0 sc1")
    if bar != 'cnt':
        A.op("buffer_load_dword v5, v3, s[32:35], 0 offen sc0 sc1")
    A.op("s_add_u32 s37, s37, 1"); A.op("s_cmp_ge_u32 s37, 100000"); A.op("s_cbranch_scc1 hop_pollok")
    A.op("s_waitcnt vmcnt(0)")
    if bar == 'cnt':
        A.op("v_cmp_ge_u32 s[38:39], v4, v5")
    else:
        A.op("v_min_u32 v4, v4, v5"); A.op("v_cmp_le_u32 s[38:39], s36, v4")
    A.op("s_nop 3")
    A.op("s_cmp_eq_u64 s[38:39], -1"); A.op("s_cbranch_scc1 hop_pollok")
    if sleep: A.op(f"s_sleep {sleep}")
    A.op("s_branch hop_poll")
    A.label("hop_pollok")
    A.op("s_waitcnt vmcnt(0)")
    xpost()
    A.label("hop_barw")
    A.op("s_barrier")
    A.op("s_branch hop_loop")
    A.label("hop_barother")
    stats()
    xpre()
    xpost()
    A.op("s_branch hop_barw")
    A.label("hop_last")
    stats()
    A.op("s_endpgm")
    if pw:
        A.cmt("helper wave: L2 prefetch of this hop's source half table (own share), barrier flag and poll")
        A.label("hop_pw")
        A.op(f"s_setprio {pwprio}")
        A.op("v_and_b32 v0, 63, v0")
        A.op(f"s_mul_i32 s19, s7, {HALF}")
        A.op("s_add_u32 s20, s4, s19"); A.op("s_addc_u32 s21, s5, 0")
        A.op(f"s_mov_b32 s22, {HALF}"); A.op("s_mov_b32 s23, 0x20000")
        A.op(f"s_mul_i32 s19, s7, {128*128}"); A.op(f"s_add_u32 s19, s19, {OFF_CNT}")
        A.op("s_add_u32 s32, s4, s19"); A.op("s_addc_u32 s33, s5, 0")
        A.op(f"s_mov_b32 s34, {128*128}"); A.op("s_mov_b32 s35, 0x20000")
        A.op("s_lshr_b32 s9, s2, 3"); A.op("s_and_b32 s9, s9, 31"); A.op("s_lshl_b32 s9, s9, 7")
        A.op("v_lshlrev_b32 v2, 12, v0"); A.op("v_add_u32 v2, s9, v2")
        A.op("v_lshlrev_b32 v10, 7, v0")
        A.op("v_add_u32 v11, 64, v0"); A.op(f"v_min_u32 v11, {NR-1}, v11"); A.op("v_lshlrev_b32 v11, 7, v11")
        A.op("s_lshl_b32 s9, s8, 7"); A.op("v_mov_b32 v12, s9")
        A.op("s_mov_b32 s36, 0")
        A.label("pw_hop")
        for i in range(13 if pw == 1 else 0):
            A.op(f"v_add_u32 v3, {i*64*4096}, v2")
            A.op(f"buffer_load_dword v{20+i}, v3, s[20:23], 0 offen sc1")
            if pwsleep: A.op(f"s_sleep {pwsleep}")
        A.op("s_add_u32 s36, s36, 1")
        A.op(f"s_add_u32 s20, s20, {TAB}"); A.op("s_addc_u32 s21, s21, 0")
        A.op(f"s_cmp_ge_u32 s36, {nh}"); A.op("s_cbranch_scc1 hops_done")
        A.op("s_waitcnt vmcnt(0)")
        A.op("s_barrier")
        A.op("v_mov_b32 v13, s36")
        A.op("s_mov_b64 exec, 1")
        A.op("buffer_store_dword v13, v12, s[32:35], 0 offen sc0 sc1")
        A.op("s_mov_b64 exec, -1")
        A.op("s_mov_b32 s37, 0")
        A.label("pw_poll")
        A.op("buffer_load_dword v4, v10, s[32:35], 0 offen sc0 sc1")
        A.op("buffer_load_dword v5, v11, s[32:35], 0 offen sc0 sc1")
        A.op("s_add_u32 s37, s37, 1"); A.op("s_cmp_ge_u32 s37, 100000"); A.op("s_cbranch_scc1 pw_ok")
        A.op("s_waitcnt vmcnt(0)")
        A.op("v_min_u32 v4, v4, v5"); A.op("v_cmp_le_u32 s[38:39], s36, v4")
        A.op("s_nop 3")
        A.op("s_cmp_eq_u64 s[38:39], -1"); A.op("s_cbranch_scc1 pw_ok")
        if sleep: A.op(f"s_sleep {sleep}")
        A.op("s_branch pw_poll")
        A.label("pw_ok")
        A.op("s_waitcnt vmcnt(0)")
        A.op("s_barrier")
        A.op("s_branch pw_hop")
    if rtt:
        A.label("hop_rtt")
        A.op("s_setprio 3")
        srd(A, 80, 4, 4 << 20, 96 << 20)
        srd(A, 32, 4, CNT_BYTES, OFF_CNT)
        A.op("s_lshl_b32 s84, s2, 10")
        A.op("v_and_b32 v0, 63, v0"); A.op("v_lshlrev_b32 v2, 7, v0"); A.op("v_and_b32 v2, 0x3fff, v2")
        A.op("s_mov_b32 s36, 0")
        A.label("rtt_hop")
        for i in range(rtt):
            A.op("s_memrealtime s[64:65]"); A.op("s_waitcnt lgkmcnt(0)")
            A.op("buffer_load_dword v4, v2, s[32:35], 0 offen sc0 sc1")
            A.op("s_waitcnt vmcnt(0)")
            A.op("s_memrealtime s[66:67]"); A.op("s_waitcnt lgkmcnt(0)")
            A.op("s_sub_u32 s66, s66, s64")
            A.op("s_mov_b64 exec, 1")
            A.op("v_mov_b32 v6, s66"); A.op("v_mov_b32 v7, s64"); A.op("s_lshl_b32 s85, s36, 7"); A.op("s_add_u32 s85, s85, s84"); A.op(f"v_mov_b32 v5, {8*i}")
            A.op("buffer_store_dwordx2 v[6:7], v5, s[80:83], s85 offen")
            A.op("s_mov_b64 exec, -1")
            A.op("s_sleep 6")
        A.op("s_add_u32 s36, s36, 1")
        A.op(f"s_cmp_ge_u32 s36, {nh}"); A.op("s_cbranch_scc1 hops_done")
        A.op("s_barrier"); A.op("s_barrier")
        A.op("s_branch rtt_hop")
    A.label("hops_done")
    A.op("s_endpgm")
    A.label("hops_wprep")
    wl = prep.gen_wprep(A, 64 * NW, 250)
    return dict(name=name, grid=252, block=64 * NWB, lds=max(L_END, wl), vgpr=nv, sgpr=96 if (prof or pf or rtt or fn) else 80)
```

```python
from common import *
from sched import Op, schedule, finalize

L_WM = 0; L_WV = 32768; L_WC = 65536; L_X = 66560
NWV = 8
L_S = L_X + NWV * 8192
L_END = L_S + NWV * 256
NWG = 250; TPW = 25

V_WA = 2
V_XB = 3
V_TR = 4
V_DG = 8
V_DX = 9
V_RW = 10
V_RR = 11
V_AW = 12
V_AR = 13
V_SO = 14
V_WC = 15
V_OUT = 16
V_DO = 17
V_OT = 18
V_DN = 19
V_T0 = 20; V_T1 = 21
V_D = 22; V_C = 23; V_C2 = 24
V_TC = 25; V_TC2 = 26
V_L0 = 28; V_L1 = 29; V_L2 = 30; V_L3 = 31
V_A0 = 0; V_A1 = 1
X = 32
WB = 64; NWB = 5
RR = 84
DA = [100, 116]
S = 132
UOP = 148
VOP = 156
POP = 188
XT = 196
WCR = 228
V_RHO = 27
V_AW2 = 12; V_AR2 = 13
V_ST = 244
V_RL = 248
V_P = 252
V_S1 = 84 + 16 - 16

def gen_tf(A, reorder=True, prof=False, nwb=5, stagger=1, ro='dot', ost='', wreg=True, pace=0, pa=True, pk=False, cid=False, fn=False, nwg=256, coop=False):
    name = "tf_kernel"
    NWV = 4 if wreg else 8
    L_S = L_X + NWV * 8192
    SCR = 512 if fn else 256
    L_END = L_S + NWV * SCR
    if wreg: stagger = 0
    kernel_begin(A, name)
    A.op(f"s_cmp_ge_u32 s2, {nwg}"); A.op("s_cbranch_scc1 tf_done")
    A.op("s_load_dwordx2 s[4:5], s[0:1], 88")
    A.op("s_load_dwordx2 s[8:9], s[0:1], 0")
    A.op("s_load_dwordx2 s[10:11], s[0:1], 24")
    A.op("s_load_dwordx2 s[44:45], s[0:1], 72")
    if prof == 1: A.op("s_memrealtime s[70:71]")
    A.op("v_lshrrev_b32 v1, 6, v0"); A.op("s_nop 0")
    A.op("v_readfirstlane_b32 s6, v1")
    A.op("v_and_b32 v0, 63, v0")
    H, K, AA, T1, T2, T3 = 28, 29, 30, 31, 20, 21
    LANE = 0
    A.op(f"v_lshlrev_b32 v{V_WA}, 4, v0")
    A.op("s_waitcnt lgkmcnt(0)")
    srd(A, 12, 4, 8 * TAB, OFF_G)
    srd(A, 16, 8, TAB)
    srd(A, 20, 10, N * 2)
    srd(A, 24, 44, TAB)
    srd(A, 28, 4, 65536 + 512, OFF_WM)
    srd(A, 92, 4, 8 * ST_TOK, OFF_ST)
    if fn: srd(A, 72, 4, 8 * FN_TOK, OFF_FN)
    if prof == 1:
        srd(A, 80, 4, 4 << 20, 96 << 20)
        A.op("s_lshl_b32 s84, s2, 4"); A.op("s_add_u32 s84, s84, s6"); A.op("s_lshl_b32 s84, s84, 10")
        A.op("s_mov_b32 s85, 0")
    A.op(f"s_mul_i32 s3, s6, {65536 // NWV}")
    for i in range(64 // NWV):
        A.op(f"s_add_u32 s32, s3, {1024*i}"); A.op("s_mov_b32 m0, s32"); A.op("s_nop 0")
        A.op(f"buffer_load_dwordx4 v{V_WA}, s[28:31], s32 offen lds")
    A.op(f"v_lshrrev_b32 v{H}, 5, v0"); A.op(f"v_and_b32 v{K}, 7, v0"); A.op(f"v_bfe_u32 v{AA}, v0, 3, 2")
    A.op(f"s_mul_i32 s34, s6, 8192"); A.op(f"s_add_u32 s34, s34, {L_X}")
    A.op(f"v_and_b32 v{T1}, 15, v0"); A.op(f"v_xor_b32 v{T1}, v{T1}, v{H}"); A.op(f"v_lshlrev_b32 v{T1}, 4, v{T1}")
    A.op(f"v_lshl_add_u32 v{T1}, v{K}, 10, v{T1}"); A.op(f"v_lshl_add_u32 v{T1}, v{AA}, 8, v{T1}"); A.op(f"v_add_u32 v{V_XB}, s34, v{T1}")
    A.op(f"v_bfe_u32 v{T1}, v0, 2, 2"); A.op(f"v_lshl_add_u32 v{T1}, v{H}, 2, v{T1}")
    A.op(f"v_bfe_u32 v{T2}, v0, 4, 1"); A.op(f"v_lshlrev_b32 v{T2}, 1, v{T2}")
    A.op(f"v_and_b32 v{T3}, 1, v0"); A.op(f"v_or_b32 v{T2}, v{T2}, v{T3}"); A.op(f"v_xor_b32 v{T2}, v{T2}, v{T1}")
    A.op(f"v_lshlrev_b32 v{T2}, 4, v{T2}"); A.op(f"v_lshl_add_u32 v{T2}, v{T1}, 10, v{T2}")
    A.op(f"v_bfe_u32 v{T3}, v0, 1, 1"); A.op(f"v_lshl_add_u32 v{T2}, v{T3}, 3, v{T2}"); A.op(f"v_add_u32 v{T2}, s34, v{T2}")
    for q in range(4):
        A.op(f"v_xor_b32 v{V_TR+q}, {q << 6}, v{T2}")
    A.op(f"v_lshrrev_b32 v{T1}, 4, v0"); A.op(f"v_bfe_u32 v{T2}, v0, 3, 1"); A.op(f"v_and_b32 v{T3}, 1, v{T1}"); A.op(f"v_xor_b32 v{T2}, v{T2}, v{T3}")
    A.op(f"v_and_b32 v{T3}, 7, v0"); A.op(f"v_lshlrev_b32 v{T3}, 4, v{T3}")
    A.op(f"s_mov_b32 s35, {HALF}")
    A.op(f"v_lshl_add_u32 v{V_DG}, v{T1}, 7, v{T3}"); A.op(f"v_mad_u32_u24 v{V_DG}, v{T2}, s35, v{V_DG}")
    A.op(f"v_lshl_add_u32 v{V_DX}, v{T1}, 8, v{T3}"); A.op(f"v_lshl_add_u32 v{V_DX}, v{T2}, 7, v{V_DX}")
    A.op(f"s_mul_i32 s35, s6, {SCR}"); A.op(f"s_add_u32 s35, s35, {L_S}")
    A.op(f"v_and_b32 v{V_RW}, 31, v0"); A.op(f"v_lshlrev_b32 v{V_AW}, 1, v{V_RW}"); A.op(f"v_lshlrev_b32 v{V_RW}, 2, v{V_RW}")
    A.op(f"v_add_u32 v{V_RW}, s35, v{V_RW}"); A.op(f"v_add_u32 v{V_AW}, s35, v{V_AW}")
    A.op(f"v_lshlrev_b32 v{V_RR}, 3, v{AA}"); A.op(f"v_lshl_add_u32 v{V_RR}, v{H}, 2, v{V_RR}")
    A.op(f"v_lshlrev_b32 v{V_AR}, 1, v{V_RR}"); A.op(f"v_add_u32 v{V_AR}, s35, v{V_AR}")
    A.op(f"v_lshlrev_b32 v{V_RR}, 2, v{V_RR}"); A.op(f"v_add_u32 v{V_RR}, s35, v{V_RR}")
    if ro != 'mfma':
        A.op(f"v_lshrrev_b32 v{V_AW2}, 2, v{K}"); A.op(f"v_lshlrev_b32 v{V_AW2}, 4, v{V_AW2}"); A.op(f"v_lshl_add_u32 v{V_AW2}, v{AA}, 2, v{V_AW2}")
        A.op(f"v_and_b32 v{T1}, 3, v{K}"); A.op(f"v_add_u32 v{V_AW2}, v{V_AW2}, v{T1}"); A.op(f"v_lshlrev_b32 v{V_AW2}, 1, v{V_AW2}"); A.op(f"v_add_u32 v{V_AW2}, s35, v{V_AW2}")
        A.op(f"v_lshlrev_b32 v{V_AR2}, 5, v{H}"); A.op(f"v_add_u32 v{V_AR2}, s35, v{V_AR2}")
    A.op(f"s_mov_b32 s35, {ST_TOK}"); A.op(f"v_lshlrev_b32 v{V_SO}, 4, v{AA}"); A.op(f"v_mad_u32_u24 v{V_SO}, v{K}, s35, v{V_SO}")
    if fn:
        A.op(f"s_mov_b32 s35, {FN_TOK}"); A.op(f"v_lshlrev_b32 v71, 5, v{AA}"); A.op(f"v_mul_lo_u32 v{T1}, v{K}, s35"); A.op(f"v_add_u32 v71, v71, v{T1}")
    A.op(f"v_lshlrev_b32 v{V_WC}, 8, v{H}"); A.op(f"v_add_u32 v{V_WC}, {L_WC}, v{V_WC}")
    A.op(f"v_and_b32 v{T1}, 31, v0")
    A.op(f"v_and_b32 v{V_OUT}, 0x13, v{T1}"); A.op(f"v_and_b32 v{T2}, 4, v{T1}"); A.op(f"v_lshl_or_b32 v{V_OUT}, v{T2}, 1, v{V_OUT}")
    A.op(f"v_and_b32 v{T2}, 8, v{T1}"); A.op(f"v_lshrrev_b32 v{T2}, 1, v{T2}"); A.op(f"v_or_b32 v{V_OUT}, v{V_OUT}, v{T2}")
    A.op(f"v_lshlrev_b32 v{V_OUT}, 1, v{V_OUT}"); A.op(f"v_lshl_add_u32 v{V_OUT}, v{H}, 9, v{V_OUT}")
    A.op(f"v_lshlrev_b32 v{V_DO}, 1, v{AA}")
    A.op(f"v_mov_b32 v{V_OT}, 0x7fffffff")
    def m64(s, val):
        A.op(f"s_mov_b32 s{s}, {val & 0xffffffff:#x}"); A.op(f"s_mov_b32 s{s+1}, {val >> 32:#x}")
    m64(46, 0x0000FF000000FF00); m64(48, 0x00FF000000FF0000); m64(50, 0xFF000000FF000000); m64(52, 0x000000FF000000FF)
    m64(54, 0x0101010101010101)
    RM = [64, 66, 68, 90]
    for a, s in enumerate(RM):
        m = 8 * a + (0 if a < 2 else 4)
        m64(s, (1 << m) | (1 << (m + 32)))
    A.op("s_mov_b32 s57, 0x3727c5ac"); A.op("s_mov_b32 s58, 0x3c000000")
    A.op("s_mov_b32 s59, 0x3fb8aa3b"); A.op("s_mov_b32 s60, 0xffff0000")
    if nwg == 250:
        A.op(f"s_mul_i32 s37, s2, {TPW}")
        A.op(f"s_add_u32 s61, s37, {TPW-1}")
    else:
        assert nwg == 256
        A.op("s_mul_i32 s37, s2, 6250"); A.op("s_add_u32 s61, s37, 6250")
        A.op("s_lshr_b32 s37, s37, 8"); A.op("s_lshr_b32 s61, s61, 8"); A.op("s_sub_u32 s61, s61, 1")
    A.op("s_add_u32 s36, s37, s6")
    if coop: A.op("s_add_u32 s56, s37, 23")
    if pa:
        assert wreg
        for k in range(1, 8):
            A.op(f"v_xor_b32 v{63+k}, {k << 4}, v{V_DG}")
            A.op(f"v_add_u32 v{63+k}, {k*TAB - 1024*(k & 3)}, v{63+k}")
        if not cid:
            for kk in range(8):
                A.op(f"v_xor_b32 v{72+kk}, {(2*kk) << 4}, v{V_XB}")
        else:
            A.op(f"v_and_b32 v{T1}, 31, v{LANE}")
            A.op(f"v_and_b32 v{T2}, 3, v{T1}"); A.op(f"v_bfe_u32 v{T3}, v{T1}, 2, 1"); A.op(f"v_lshl_add_u32 v{T2}, v{T3}, 3, v{T2}")
            A.op(f"v_bfe_u32 v{T3}, v{T1}, 3, 1"); A.op(f"v_lshl_add_u32 v{T2}, v{T3}, 2, v{T2}")
            A.op(f"v_lshrrev_b32 v{T3}, 5, v{LANE}"); A.op(f"v_lshlrev_b32 v{T3}, 3, v{T3}"); A.op(f"v_sub_u32 v{T2}, v{T2}, v{T3}")
            A.op(f"v_lshrrev_b32 v{T1}, 4, v{T1}")
            for sidx in range(2):
                for q in range(4):
                    r = 72 + 4 * sidx + q
                    A.op(f"v_mov_b32 v{r}, 0")
                    A.op(f"v_cmp_eq_u32 vcc, {2*q}, v{T2}"); A.op("s_nop 1"); A.op(f"v_mov_b32 v80, 0x3f80"); A.op(f"v_cndmask_b32_e64 v{r}, v{r}, v80, vcc")
                    A.op(f"v_cmp_eq_u32 vcc, {2*q+1}, v{T2}"); A.op("s_nop 1"); A.op(f"v_mov_b32 v80, 0x3f800000"); A.op(f"v_cndmask_b32_e64 v{r}, v{r}, v80, vcc")
                    A.op(f"v_cmp_eq_u32 vcc, {sidx}, v{T1}"); A.op("s_nop 1"); A.op(f"v_cndmask_b32_e64 v{r}, 0, v{r}, vcc")
        A.op("s_add_u32 s98, s34, 4096")
    def dma_ops(emit, tile_sreg):
        if pa:
            emit(f"s_lshl_b32 s39, s{tile_sreg}, 9"); emit(f"s_lshl_b32 s40, s{tile_sreg}, 10"); emit(f"s_lshl_b32 s43, s{tile_sreg}, 3")
            emit(f"s_lshl_b32 s33, s{tile_sreg}, 6")
            emit(f"buffer_load_dwordx4 v[{V_ST}:{V_ST+3}], v{V_SO}, s[92:95], s33 offen", [], ["M_vm"])
            emit(f"buffer_load_ushort v{V_DN}, v{V_DO}, s[20:23], s43 offen", [], ["M_vm"])
            if fn:
                emit(f"s_lshl_b32 s32, s{tile_sreg}, 7")
                emit(f"buffer_load_dwordx4 v[{WCR}:{WCR+3}], v71, s[72:75], s32 offen", [], ["M_vm"])
                emit(f"buffer_load_dwordx4 v[{WCR+4}:{WCR+7}], v71, s[72:75], s32 offen offset:16", [], ["M_vm"])
            emit("s_mov_b32 m0, s34")
            emit(f"buffer_load_dwordx4 v{V_DX}, s[16:19], s40 offen lds", ["M_xrd"], ["M_vm"])
            for k in range(1, 8):
                if k == 4: emit("s_mov_b32 m0, s98")
                off = f" offset:{1024*(k & 3)}" if (k & 3) else ""
                emit(f"buffer_load_dwordx4 v{63+k}, s[12:15], s39 offen{off} lds", ["M_xrd"], ["M_vm"])
            return
        dma_ops0(emit, tile_sreg)
    def dma_ops0(emit, tile_sreg):
        emit(f"s_lshl_b32 s39, s{tile_sreg}, 9"); emit(f"s_lshl_b32 s40, s{tile_sreg}, 10"); emit(f"s_lshl_b32 s43, s{tile_sreg}, 3")
        emit(f"s_lshl_b32 s33, s{tile_sreg}, 6")
        emit(f"buffer_load_dwordx4 v[{V_ST}:{V_ST+3}], v{V_SO}, s[92:95], s33 offen", [], ["M_vm"])
        emit(f"buffer_load_ushort v{V_DN}, v{V_DO}, s[20:23], s43 offen", [], ["M_vm"])
        emit("s_mov_b32 m0, s34")
        emit(f"buffer_load_dwordx4 v{V_DX}, s[16:19], s40 offen lds", ["M_xrd"], ["M_vm"])
        for k in range(1, 8):
            t = V_T0 if k & 1 else V_T1
            emit(f"v_xor_b32 v{t}, {k << 4}, v{V_DG}")
            emit(f"s_add_u32 s41, s34, {1024*k}"); emit("s_mov_b32 m0, s41")
            emit(f"s_add_u32 s41, s39, {k*TAB}")
            emit(f"buffer_load_dwordx4 v{t}, s[12:15], s41 offen lds", ["M_xrd"], ["M_vm"])
    def emit_plain(t, memr=(), memw=()):
        if t.startswith("buffer_load") and "lds" in t: A.op("s_nop 0")
        A.op(t)
    A.op("s_cmp_eq_u32 s6, 0"); l = A.new("wc"); A.op(f"s_cbranch_scc0 {l}")
    A.op("s_mov_b32 s33, 65536")
    A.op(f"buffer_load_dwordx4 v[{X}:{X+3}], v{V_WA}, s[28:31], s33 offen")
    A.op("s_waitcnt vmcnt(0)")
    A.op(f"v_add_u32 v{T1}, {L_WC}, v{V_WA}"); A.op(f"ds_write_b128 v{T1}, v[{X}:{X+3}]")
    A.label(l)
    if stagger:
        A.op("s_cmp_ge_u32 s6, 4"); A.op("s_cbranch_scc1 tf_late")
    dma_ops(emit_plain, 36)
    A.op(f"s_waitcnt vmcnt({12 if fn else 10}) lgkmcnt(0)")
    A.op("s_barrier")
    if stagger:
        A.op("s_branch tf_go")
        A.label("tf_late")
        A.op("s_waitcnt vmcnt(0) lgkmcnt(0)")
        A.op("s_barrier")
        dma_ops(emit_plain, 36)
        A.label("tf_go")

    if wreg:
        A.cmt("weights LDS -> AGPRs (kept for the whole kernel)")
        for i in range(64):
            A.op(f"ds_read_b128 a[{4*i}:{4*i+3}], v{V_WA} offset:{1024*i}")
            if i % 8 == 7: A.op("s_waitcnt lgkmcnt(4)")
        A.op("s_waitcnt lgkmcnt(0)")
    S1, S2, S3 = V_L2, V_L3, V_L1

    def xhalf(o, r, t, op="add"):
        o(f"v_mov_b32 v{t}, v{r}"); o(f"v_permlane32_swap_b32 v{r}, v{t}"); o(f"v_{op}_f32 v{r}, v{r}, v{t}")

    def tail_ops(o, Ts=range(4)):
        a0, a1 = V_A0, V_A1
        for r in ((S2,) if fn else (S1, S2, S3)): xhalf(o, r, a0)
        if not fn: o(f"v_mul_f32 v{S1}, s58, v{S1}")
        o(f"v_mul_f32 v{S2}, s58, v{S2}")
        o(f"v_fma_f32 v{S2}, -v{S1}, v{S1}, v{S2}"); o(f"v_max_f32 v{S2}, 0, v{S2}")
        o(f"v_mov_b32 v{a0}, s57"); o(f"v_fma_f32 v{S2}, v{S2}, v{V_TC2}, v{a0}"); o(f"v_rsq_f32 v{S2}, v{S2}")
        o(f"v_mul_f32 v{S3}, v{S3}, v{S2}"); o(f"v_mul_f32 v{S3}, v{S3}, v{V_TC}"); o(f"v_mul_f32 v{S3}, s59, v{S3}")
        def red8(r, op):
            o(f"v_{op}_f32_dpp v{r}, v{r}, v{r} quad_perm:[1,0,3,2] row_mask:0xf bank_mask:0xf")
            o(f"v_{op}_f32_dpp v{r}, v{r}, v{r} quad_perm:[2,3,0,1] row_mask:0xf bank_mask:0xf")
            o(f"v_{op}_f32_dpp v{r}, v{r}, v{r} row_half_mirror row_mask:0xf bank_mask:0xf")
        o(f"v_mov_b32 v{a0}, v{S3}"); red8(a0, "max")
        o(f"v_sub_f32 v{S3}, v{S3}, v{a0}"); o(f"v_exp_f32 v{S3}, v{S3}")
        o(f"v_mov_b32 v{a0}, v{S3}"); red8(a0, "add")
        o(f"v_rcp_f32 v{a0}, v{a0}"); o(f"v_mul_f32 v{S3}, v{S3}, v{a0}"); o(f"v_mul_f32 v{S3}, v{S3}, v{V_TC}")
        if ro == 'mfma':
            o(f"v_cvt_pk_bf16_f32 v{a0}, v{S3}, v{S3}")
            o(f"ds_write_b16 v{V_AW}, v{a0} offset:128", memw=["M_a"])
            o(f"ds_read_b64 v[{a0}:{a1}], v{V_AR} offset:128", memr=["M_a"])
            for i in range(4):
                o(f"v_mul_f32 v{V_P+i}, v{V_P+i}, v{S3}"); red8(V_P + i, "add")
            o(f"v_cvt_pk_bf16_f32 v{S1}, v{V_P}, v{V_P+1}"); o(f"v_cvt_pk_bf16_f32 v{S2}, v{V_P+2}, v{V_P+3}")
            BO = WCR; AO = WCR + 8
            for a in range(4):
                m = RM[a]
                o(f"v_cndmask_b32_e64 v{BO+2*a}, 0, v{S1}, s[{m}:{m+1}]"); o(f"v_cndmask_b32_e64 v{BO+2*a+1}, 0, v{S2}, s[{m}:{m+1}]")
                o(f"v_cndmask_b32_e64 v{AO+2*a}, 0, v{a0}, s[{m}:{m+1}]"); o(f"v_cndmask_b32_e64 v{AO+2*a+1}, 0, v{a1}, s[{m}:{m+1}]")
            for T in range(4):
                D = RR
                for s in range(2):
                    c = "0" if s == 0 else f"v[{D}:{D+15}]"
                    o(f"v_mfma_f32_32x32x16_bf16 v[{D}:{D+15}], v[{AO+4*s}:{AO+4*s+3}], v[{XT+8*T+4*s}:{XT+8*T+4*s+3}], {c}")
                for s in range(2):
                    o(f"v_mfma_f32_32x32x16_bf16 v[{D}:{D+15}], v[{BO+4*s}:{BO+4*s+3}], v[{VOP+8*T+4*s}:{VOP+8*T+4*s+3}], v[{D}:{D+15}]")
                for a in range(2):
                    t = V_P + 2 * (T & 1) + a
                    o(f"v_add_f32 v{t}, v{D+4*a}, v{D+4*a+8}")
                    o(f"v_cvt_pk_bf16_f32 v{t}, v{t}, v{t}")
                    o(f"buffer_store_short v{t}, v{V_OT}, s[24:27], s42 offen offset:{a*256 + T*64}{ost}", memw=["M_vm"])
        else:
            o(f"v_cvt_pk_bf16_f32 v{a0}, v{S3}, v{S3}")
            o(f"ds_write_b16 v{V_AW2}, v{a0} offset:192", memw=["M_a"])
            for i in range(4):
                o(f"v_mul_f32 v{V_P+i}, v{V_P+i}, v{S3}"); red8(V_P + i, "add")
            o(f"v_cvt_pk_bf16_f32 v{a0}, v{V_P}, v{V_P+1}"); o(f"v_cvt_pk_bf16_f32 v{a1}, v{V_P+2}, v{V_P+3}")
            o(f"v_lshl_add_u32 v{S1}, v{V_DO}, 2, v{V_AR2}")
            o(f"ds_write_b64 v{S1}, v[{a0}:{a1}] offset:128", memw=["M_b"])
            BP = WCR; AP = WCR + 8
            o(f"ds_read_b128 v[{BP}:{BP+3}], v{V_AR2} offset:128", memr=["M_b"]); o(f"ds_read_b128 v[{BP+4}:{BP+7}], v{V_AR2} offset:144", memr=["M_b"])
            o(f"ds_read_b128 v[{AP}:{AP+3}], v{V_AR2} offset:192", memr=["M_a"]); o(f"ds_read_b128 v[{AP+4}:{AP+7}], v{V_AR2} offset:208", memr=["M_a"])
            for T in Ts:
                for a in range(4):
                    r = RR + 4 * T + a; xt = XT + (T * 4 + a) * 2
                    if pa:
                        o(f"v_dot2_f32_bf16 v{r}, v{xt}, v{AP+2*a}, 0")
                    else:
                        o(f"v_mov_b32 v{r}, 0")
                        o(f"v_dot2c_f32_bf16 v{r}, v{xt}, v{AP+2*a}")
                    o(f"v_dot2c_f32_bf16 v{r}, v{xt+1}, v{AP+2*a+1}")
                    o(f"v_dot2c_f32_bf16 v{r}, v{VOP+8*T+2*a}, v{BP+2*a}")
                    o(f"v_dot2c_f32_bf16 v{r}, v{VOP+8*T+2*a+1}, v{BP+2*a+1}")
            for T in Ts:
                for a in range(2):
                    r0 = RR + 4 * T + a; r1 = r0 + 2
                    o(f"v_permlane32_swap_b32 v{r0}, v{r1}")
                    o(f"v_add_f32 v{r0}, v{r0}, v{r1}")
                    o(f"v_cvt_pk_bf16_f32 v{r0}, v{r0}, v{r0}")
                    o(f"buffer_store_short v{r0}, v{V_OT}, s[24:27], s42 offen offset:{a*256 + T*64}{ost}", memw=["M_vm"])

    def pre_ops(o):
        if fn:
            o(f"v_add_f32 v80, v{WCR}, v{WCR+4}"); o(f"v_add_f32 v81, v{WCR+1}, v{WCR+5}"); o(f"v_add_f32 v82, v{WCR+2}, v{WCR+6}")
            o(f"ds_write_b32 v{V_RW}, v81 offset:256", memw=["M_f1"]); o(f"ds_write_b32 v{V_RW}, v82 offset:384", memw=["M_f2"])
    def head_ops(o):
        for kk in range(8):
            if pa and not cid:
                o(f"ds_read_b128 v[{X+4*kk}:{X+4*kk+3}], v{72+kk}")
                continue
            t = V_T0 if kk & 1 else V_T1
            o(f"v_xor_b32 v{t}, {(2*kk) << 4}, v{V_XB}")
            o(f"ds_read_b128 v[{X+4*kk}:{X+4*kk+3}], v{t}")
        l0, l1 = V_RHO, V_D
        o(f"v_add_f32 v{V_ST}, v{V_ST}, v{V_ST+2}"); o(f"v_add_f32 v{V_ST+1}, v{V_ST+1}, v{V_ST+3}")
        o(f"v_mul_f32 v{V_ST}, s58, v{V_ST}"); o(f"v_mul_f32 v{V_ST+1}, s58, v{V_ST+1}")
        if fn:
            o(f"v_mov_b32 v83, v{V_ST}")
        o(f"v_fma_f32 v{V_ST+1}, -v{V_ST}, v{V_ST}, v{V_ST+1}"); o(f"v_max_f32 v{V_ST+1}, 0, v{V_ST+1}")
        o(f"v_lshlrev_b32 v{V_D}, 16, v{V_DN}")
        o(f"v_cndmask_b32_e64 v{V_D}, v{V_D}, 1.0, s[54:55]")
        o(f"v_cmp_eq_f32_e64 s[62:63], 0, v{V_D}")
        o(f"v_cndmask_b32_e64 v{V_D}, v{V_D}, 1.0, s[62:63]")
        o(f"v_rcp_f32 v{V_C}, v{V_D}"); o(f"v_mul_f32 v{V_C2}, v{V_C}, v{V_C}")
        o(f"v_mov_b32 v{V_ST}, s57"); o(f"v_fma_f32 v{V_ST+1}, v{V_ST+1}, v{V_C2}, v{V_ST}")
        o(f"v_rsq_f32 v{V_ST+1}, v{V_ST+1}"); o(f"v_mul_f32 v{V_RHO}, v{V_ST+1}, v{V_C}")
        o(f"ds_write_b32 v{V_RW}, v{V_RHO}", memw=["M_rho"])
        o(f"ds_read_b128 v[{V_RL}:{V_RL+3}], v{V_RR}", memr=["M_rho"])
        wb = [0]
        def wload(off):
            if wreg:
                i = off // 1024
                return f"a[{4*i}:{4*i+3}]"
            b = WB + 4 * (wb[0] % nwb); wb[0] += 1
            o(f"ds_read_b128 v[{b}:{b+3}], v{V_WA} offset:{off}")
            return f"v[{b}:{b+3}]"
        for T in range(4):
            D = DA[T & 1]
            for kk in range(8):
                b = wload(L_WM + (T * 8 + kk) * 1024)
                c = "0" if kk == 0 else f"v[{D}:{D+15}]"
                o(f"v_mfma_f32_32x32x16_bf16 v[{D}:{D+15}], {b}, v[{X+4*kk}:{X+4*kk+3}], {c}")
            for j in range(8):
                o(f"v_cvt_pk_bf16_f32 v{UOP+j}, v{D+2*j}, v{D+2*j+1}")
            for half in range(2):
                c = "0" if (T == 0 and half == 0) else f"v[{S}:{S+15}]"
                xa = X + 4 * (2 * T + half)
                o(f"v_mfma_f32_32x32x16_bf16 v[{S}:{S+15}], v[{xa}:{xa+3}], v[{UOP+4*half}:{UOP+4*half+3}], {c}")
        for T in range(4):
            for a in range(4):
                r = XT + (T * 4 + a) * 2
                o(f"ds_read_b64_tr_b16 v[{r}:{r+1}], v{V_TR + (T ^ (2*(a&1)))} offset:{a*256}")
        rd = [f"v{X+4*kk}" for kk in range(8)] + [f"v{XT+2*q}" for q in range(16)]
        o(f"s_add_u32 s36, s36, {NWV}"); o("s_min_u32 s38, s36, s61")
        first = [True]
        def emit(t, memr=(), memw=()):
            if "lds" in t and t.startswith("buffer_load") and first[0]:
                first[0] = False
                o(t, memr=rd, memw=memw)
            else:
                o(t, memr=[], memw=memw)
        dma_ops(emit, 38)
        P = V_P
        for i in range(4):
            o(f"v_cndmask_b32_e64 v{P+i}, v{S+i}, v{S+4+i}, s[46:47]")
            o(f"v_cndmask_b32_e64 v{P+i}, v{P+i}, v{S+8+i}, s[48:49]")
            o(f"v_cndmask_b32_e64 v{P+i}, v{P+i}, v{S+12+i}, s[50:51]")
            o(f"v_mul_f32 v{P+i}, v{P+i}, v{V_RL+i}"); o(f"v_mul_f32 v{P+i}, v{P+i}, v{V_RHO}")
        m0, m1 = V_L0, V_T0
        o(f"v_max_f32 v{m0}, v{P}, v{P+1}"); o(f"v_max3_f32 v{m0}, v{m0}, v{P+2}, v{P+3}")
        xhalf(o, m0, m1, "max")
        for i in range(4):
            o(f"v_sub_f32 v{P+i}, v{P+i}, v{m0}"); o(f"v_exp_f32 v{P+i}, v{P+i}")
        o(f"v_add_f32 v{m0}, v{P}, v{P+1}"); o(f"v_add_f32 v{m1}, v{P+2}, v{P+3}"); o(f"v_add_f32 v{m0}, v{m0}, v{m1}")
        xhalf(o, m0, m1)
        o(f"v_rcp_f32 v{m0}, v{m0}"); o(f"v_mul_f32 v{m0}, v{m0}, v{V_D}")
        for i in range(4):
            o(f"v_mul_f32 v{P+i}, v{P+i}, v{V_RL+i}"); o(f"v_mul_f32 v{P+i}, v{P+i}, v{m0}")
        o(f"v_cvt_pk_bf16_f32 v{m0}, v{P}, v{P+1}"); o(f"v_cvt_pk_bf16_f32 v{m1}, v{P+2}, v{P+3}")
        for a, m in enumerate((52, 46, 48, 50)):
            o(f"v_cndmask_b32_e64 v{POP+2*a}, 0, v{m0}, s[{m}:{m+1}]")
            o(f"v_cndmask_b32_e64 v{POP+2*a+1}, 0, v{m1}, s[{m}:{m+1}]")
        if fn:
            o(f"ds_read_b128 v[{UOP}:{UOP+3}], v{V_RR} offset:256", memr=["M_f1"]); o(f"ds_read_b128 v[{UOP+4}:{UOP+7}], v{V_RR} offset:384", memr=["M_f2"])
            o(f"v_mul_f32 v81, v{P}, v{UOP}"); o(f"v_mul_f32 v82, v{P}, v{UOP+4}")
            for i in range(1, 4):
                o(f"v_fmac_f32 v81, v{P+i}, v{UOP+i}"); o(f"v_fmac_f32 v82, v{P+i}, v{UOP+4+i}")
            xhalf(o, 81, V_T0); xhalf(o, 82, V_T1)
            o(f"v_fma_f32 v{S1}, v81, s58, v83"); o(f"v_add_f32 v{S3}, v80, v82")
        PK3 = 20
        if pk:
            assert pa
            for r in (80, 81, 82, 83, PK3, PK3 + 1): o(f"v_mov_b32 v{r}, 0")
        elif fn:
            o(f"v_mov_b32 v{S2}, 0")
        else:
            o(f"v_mov_b32 v{S1}, 0"); o(f"v_mov_b32 v{S2}, 0"); o(f"v_mov_b32 v{S3}, 0")
        def gemm2(T):
            D = DA[T & 1]
            for kk in range(8):
                b = wload(L_WV + (T * 8 + kk) * 1024)
                c = "0" if kk == 0 else f"v[{D}:{D+15}]"
                dep = [f"M_o{T-1}"] if (pace and kk == 0 and T >= 1) else []
                o(f"v_mfma_f32_32x32x16_bf16 v[{D}:{D+15}], v[{X+4*kk}:{X+4*kk+3}], {b}, {c}", memr=dep)
            for j in range(8):
                o(f"v_cvt_pk_bf16_f32 v{VOP+8*T+j}, v{D+2*j}, v{D+2*j+1}")
        def otile(T):
            D = RR if (T & 1) else S
            if cid:
                for half in range(2):
                    xa = X + 4 * (2 * T + half)
                    c = "0" if half == 0 else f"v[{D}:{D+15}]"
                    o(f"v_mfma_f32_32x32x16_bf16 v[{D}:{D+15}], v[{72+4*half}:{72+4*half+3}], v[{xa}:{xa+3}], {c}")
            else:
              for half in range(2):
                for j in range(4):
                    x = X + 4 * (2 * T + half) + j
                    o(f"v_lshlrev_b32 v{D+8*half+2*j}, 16, v{x}")
                    o(f"v_and_b32 v{D+8*half+2*j+1}, s60, v{x}")
            for half in range(2):
                o(f"v_mfma_f32_32x32x16_bf16 v[{D}:{D+15}], v[{VOP+8*T+4*half}:{VOP+8*T+4*half+3}], v[{POP+4*half}:{POP+4*half+3}], v[{D}:{D+15}]", memw=([f"M_o{T}"] if half == 1 else []))
            if fn:
                for r in range(16):
                    o(f"v_fmac_f32 v{S2}, v{D+r}, v{D+r}")
                return
            for q in range(4):
                o(f"ds_read_b128 v[{WCR+4*q}:{WCR+4*q+3}], v{V_WC} offset:{T*64 + q*16}")
            if pk:
                for r in range(0, 16, 2):
                    o(f"v_pk_add_f32 v[80:81], v[80:81], v[{D+r}:{D+r+1}]")
                    o(f"v_pk_fma_f32 v[82:83], v[{D+r}:{D+r+1}], v[{D+r}:{D+r+1}], v[82:83]")
                    o(f"v_pk_fma_f32 v[64+16:64+17], v[{D+r}:{D+r+1}], v[{WCR+r}:{WCR+r+1}], v[64+16:64+17]".replace("v[64+16:64+17]", "v[0:1]") if False else f"v_pk_fma_f32 v[{PK3}:{PK3+1}], v[{D+r}:{D+r+1}], v[{WCR+r}:{WCR+r+1}], v[{PK3}:{PK3+1}]")
            else:
              for r in range(16):
                o(f"v_add_f32 v{S1}, v{S1}, v{D+r}")
                o(f"v_fmac_f32 v{S2}, v{D+r}, v{D+r}")
                o(f"v_fmac_f32 v{S3}, v{D+r}, v{WCR+r}")
        if pace:
            gemm2(0); otile(0); gemm2(1); otile(1); gemm2(2); otile(2); gemm2(3); otile(3)
        else:
            gemm2(0); gemm2(1); otile(0); gemm2(2); otile(1); gemm2(3); otile(2); otile(3)
        if pk:
            o(f"v_add_f32 v{S1}, v80, v81"); o(f"v_add_f32 v{S2}, v82, v83"); o(f"v_add_f32 v{S3}, v{PK3}, v{PK3+1}")
        o(f"v_mov_b32 v{V_TC}, v{V_C}"); o(f"v_mov_b32 v{V_TC2}, v{V_C2}")
        o(f"v_mov_b32 v{V_OT}, v{V_OUT}")
        o(f"s_sub_u32 s42, s36, {NWV}"); o("s_lshl_b32 s42, s42, 10")

    def region(fns):
        ops = []
        def o(t, memr=(), memw=()): ops.append(Op(t, memr, memw))
        for f in fns: f(o)
        seq = schedule(ops, reorder)
        lines, pd, pv = finalize(seq)
        idx = [i for i, q in enumerate(seq) if q.kind == "vmem"]
        loads = [i for i in idx if seq[i].name.startswith("buffer_load")]
        after = len([i for i in idx if loads and i > loads[-1]])
        return lines, after

    body, after = region([pre_ops, tail_ops, head_ops])
    A.op("s_mov_b32 s42, 0")
    A.label("tf_loop")
    if prof == 1: A.op("s_memrealtime s[72:73]")
    A.op(f"s_waitcnt vmcnt({after + (5 if prof == 1 else (10 if prof == 2 else 0))})")
    if prof == 1: A.op("s_memrealtime s[74:75]")
    if prof == 2:
        step = len(body) // 9
        for i, l in enumerate(body):
            if i % step == 0 and i // step < 10: A.op(f"s_memtime s[{70+2*(i//step)}:{71+2*(i//step)}]")
            A(l)
        A.op("s_waitcnt lgkmcnt(0)")
        A.op("s_add_u32 s86, s84, s85") if False else None
        A.op("s_lshl_b32 s32, s2, 4"); A.op("s_add_u32 s32, s32, s6"); A.op("s_lshl_b32 s32, s32, 10")
        A.op("s_sub_u32 s33, s36, s37"); A.op(f"s_lshr_b32 s33, s33, {2 if wreg else 3}"); A.op("s_lshl_b32 s33, s33, 7"); A.op("s_add_u32 s32, s32, s33")
        srd(A, 96, 4, 4 << 20, 96 << 20)
        A.op("s_mov_b64 exec, 1")
        for qi in range(10):
            A.op(f"v_mov_b32 v{V_T0}, s{70+2*qi}"); A.op(f"v_mov_b32 v{V_T1}, s{71+2*qi}"); A.op(f"v_mov_b32 v{V_L0}, {8*qi}")
            A.op(f"buffer_store_dwordx2 v[{V_T0}:{V_T1}], v{V_L0}, s[96:99], s32 offen"); A.op("s_nop 1")
        A.op("s_mov_b64 exec, -1")
    else:
        for l in body: A(l)
    if prof == 1:
        A.op("s_memrealtime s[78:79]")
        A.op("s_waitcnt lgkmcnt(0)")
        A.op("s_add_u32 s86, s84, s85"); A.op("s_add_u32 s85, s85, 64")
        A.op("s_mov_b64 exec, 1")
        for qi, sr in enumerate((70, 72, 74, 74, 78)):
            A.op(f"v_mov_b32 v{V_T0}, s{sr}"); A.op(f"v_mov_b32 v{V_T1}, s{sr+1}"); A.op(f"v_mov_b32 v{V_L0}, {8*qi}")
            A.op(f"buffer_store_dwordx2 v[{V_T0}:{V_T1}], v{V_L0}, s[80:83], s86 offen"); A.op("s_nop 1")
        A.op("s_mov_b64 exec, -1")
    A.op("s_waitcnt lgkmcnt(0)")
    A.op(f"s_cmp_le_u32 s36, s{56 if coop else 61}"); A.op("s_cbranch_scc1 tf_loop")
    if coop:
        EX1, EX2 = 0, 4096
        def coop1(o, w):
            for kk in range(8):
                o(f"ds_read_b128 v[{X+4*kk}:{X+4*kk+3}], v{72+kk}")
            o(f"v_add_f32 v{V_ST}, v{V_ST}, v{V_ST+2}"); o(f"v_add_f32 v{V_ST+1}, v{V_ST+1}, v{V_ST+3}")
            o(f"v_mul_f32 v{V_ST}, s58, v{V_ST}"); o(f"v_mul_f32 v{V_ST+1}, s58, v{V_ST+1}")
            o(f"v_fma_f32 v{V_ST+1}, -v{V_ST}, v{V_ST}, v{V_ST+1}"); o(f"v_max_f32 v{V_ST+1}, 0, v{V_ST+1}")
            o(f"v_lshlrev_b32 v{V_D}, 16, v{V_DN}")
            o(f"v_cndmask_b32_e64 v{V_D}, v{V_D}, 1.0, s[54:55]")
            o(f"v_cmp_eq_f32_e64 s[62:63], 0, v{V_D}")
            o(f"v_cndmask_b32_e64 v{V_D}, v{V_D}, 1.0, s[62:63]")
            o(f"v_rcp_f32 v{V_C}, v{V_D}"); o(f"v_mul_f32 v{V_C2}, v{V_C}, v{V_C}")
            o(f"v_mov_b32 v{V_ST}, s57"); o(f"v_fma_f32 v{V_ST+1}, v{V_ST+1}, v{V_C2}, v{V_ST}")
            o(f"v_rsq_f32 v{V_ST+1}, v{V_ST+1}"); o(f"v_mul_f32 v{V_RHO}, v{V_ST+1}, v{V_C}")
            o(f"ds_write_b32 v{V_RW}, v{V_RHO}", memw=["M_rho"])
            o(f"ds_read_b128 v[{V_RL}:{V_RL+3}], v{V_RR}", memr=["M_rho"])
            D = DA[0]
            for kk in range(8):
                i = w * 8 + kk
                o(f"v_mfma_f32_32x32x16_bf16 v[{D}:{D+15}], a[{4*i}:{4*i+3}], v[{X+4*kk}:{X+4*kk+3}], " + ("0" if kk == 0 else f"v[{D}:{D+15}]"))
            for j in range(8):
                o(f"v_cvt_pk_bf16_f32 v{UOP+j}, v{D+2*j}, v{D+2*j+1}")
            for half in range(2):
                xa = X + 4 * (2 * w + half)
                o(f"v_mfma_f32_32x32x16_bf16 v[{S}:{S+15}], v[{xa}:{xa+3}], v[{UOP+4*half}:{UOP+4*half+3}], " + ("0" if half == 0 else f"v[{S}:{S+15}]"))
            Q = UOP
            for i in range(4):
                o(f"v_cndmask_b32_e64 v{Q+4+i}, v{S+i}, v{S+4+i}, s[46:47]")
                o(f"v_cndmask_b32_e64 v{Q+4+i}, v{Q+4+i}, v{S+8+i}, s[48:49]")
                o(f"v_cndmask_b32_e64 v{Q+4+i}, v{Q+4+i}, v{S+12+i}, s[50:51]")
            o(f"ds_write_b128 v{V_WA}, v[{Q+4}:{Q+7}] offset:{EX1 + 1024*w}")
            D = DA[1]
            for kk in range(8):
                i = 32 + w * 8 + kk
                o(f"v_mfma_f32_32x32x16_bf16 v[{D}:{D+15}], v[{X+4*kk}:{X+4*kk+3}], a[{4*i}:{4*i+3}], " + ("0" if kk == 0 else f"v[{D}:{D+15}]"))
            for j in range(8):
                o(f"v_cvt_pk_bf16_f32 v{VOP+8*w+j}, v{D+2*j}, v{D+2*j+1}")
            for a in range(4):
                r = XT + (w * 4 + a) * 2
                o(f"ds_read_b64_tr_b16 v[{r}:{r+1}], v{V_TR + (w ^ (2*(a&1)))} offset:{a*256}")
            o(f"v_mov_b32 v{V_TC}, v{V_C}"); o(f"v_mov_b32 v{V_TC2}, v{V_C2}")
            o(f"v_mov_b32 v{V_OT}, v{V_OUT}")
            o("s_lshl_b32 s42, s61, 10")
        def coop2(o, w):
            P = V_P
            for q in range(4):
                o(f"ds_read_b128 v[{S+4*q}:{S+4*q+3}], v{V_WA} offset:{EX1 + 1024*q}")
            for i in range(4):
                o(f"v_add_f32 v{P+i}, v{S+i}, v{S+4+i}"); o(f"v_add_f32 v{S+8+i}, v{S+8+i}, v{S+12+i}"); o(f"v_add_f32 v{P+i}, v{P+i}, v{S+8+i}")
                o(f"v_mul_f32 v{P+i}, v{P+i}, v{V_RL+i}"); o(f"v_mul_f32 v{P+i}, v{P+i}, v{V_RHO}")
            m0, m1 = V_L0, V_T0
            o(f"v_max_f32 v{m0}, v{P}, v{P+1}"); o(f"v_max3_f32 v{m0}, v{m0}, v{P+2}, v{P+3}")
            xhalf(o, m0, m1, "max")
            for i in range(4):
                o(f"v_sub_f32 v{P+i}, v{P+i}, v{m0}"); o(f"v_exp_f32 v{P+i}, v{P+i}")
            o(f"v_add_f32 v{m0}, v{P}, v{P+1}"); o(f"v_add_f32 v{m1}, v{P+2}, v{P+3}"); o(f"v_add_f32 v{m0}, v{m0}, v{m1}")
            xhalf(o, m0, m1)
            o(f"v_rcp_f32 v{m0}, v{m0}"); o(f"v_mul_f32 v{m0}, v{m0}, v{V_D}")
            for i in range(4):
                o(f"v_mul_f32 v{P+i}, v{P+i}, v{V_RL+i}"); o(f"v_mul_f32 v{P+i}, v{P+i}, v{m0}")
            o(f"v_cvt_pk_bf16_f32 v{m0}, v{P}, v{P+1}"); o(f"v_cvt_pk_bf16_f32 v{m1}, v{P+2}, v{P+3}")
            for a, m in enumerate((52, 46, 48, 50)):
                o(f"v_cndmask_b32_e64 v{POP+2*a}, 0, v{m0}, s[{m}:{m+1}]")
                o(f"v_cndmask_b32_e64 v{POP+2*a+1}, 0, v{m1}, s[{m}:{m+1}]")
            D = DA[0]; T = w; Q = UOP
            for half in range(2):
                for j in range(4):
                    x = X + 4 * (2 * T + half) + j
                    o(f"v_lshlrev_b32 v{D+8*half+2*j}, 16, v{x}")
                    o(f"v_and_b32 v{D+8*half+2*j+1}, s60, v{x}")
            for half in range(2):
                o(f"v_mfma_f32_32x32x16_bf16 v[{D}:{D+15}], v[{VOP+8*T+4*half}:{VOP+8*T+4*half+3}], v[{POP+4*half}:{POP+4*half+3}], v[{D}:{D+15}]")
            for q in range(4):
                o(f"ds_read_b128 v[{WCR+4*q}:{WCR+4*q+3}], v{V_WC} offset:{T*64 + q*16}")
            for k3 in range(4): o(f"v_mov_b32 v{Q+k3}, 0")
            for r in range(16):
                o(f"v_add_f32 v{Q}, v{Q}, v{D+r}")
                o(f"v_fmac_f32 v{Q+1}, v{D+r}, v{D+r}")
                o(f"v_fmac_f32 v{Q+2}, v{D+r}, v{WCR+r}")
            o(f"ds_write_b128 v{V_WA}, v[{Q}:{Q+3}] offset:{EX2 + 1024*w}")
        def coop3(o, w):
            for q in range(4):
                o(f"ds_read_b128 v[{S+4*q}:{S+4*q+3}], v{V_WA} offset:{EX2 + 1024*q}")
            for (dst, k3) in ((S1, 0), (S2, 1), (S3, 2)):
                o(f"v_add_f32 v{dst}, v{S+k3}, v{S+4+k3}"); o(f"v_add_f32 v{S+8+k3}, v{S+8+k3}, v{S+12+k3}"); o(f"v_add_f32 v{dst}, v{dst}, v{S+8+k3}")
            tail_ops(o, [w])
        A.op("s_cmp_eq_u32 s61, s56"); A.op("s_cbranch_scc1 tf_epi")
        A.op("s_waitcnt vmcnt(0)")
        for w in range(4):
            if w < 3:
                A.op(f"s_cmp_lg_u32 s6, {w}"); A.op(f"s_cbranch_scc1 tf_c{w+1}")
            A.op("s_nop 7"); A.op("s_nop 7")
            for l in region([tail_ops, lambda o, w=w: coop1(o, w)])[0]: A(l)
            A.op("s_waitcnt lgkmcnt(0)"); A.op("s_barrier")
            for l in region([lambda o, w=w: coop2(o, w)])[0]: A(l)
            A.op("s_waitcnt lgkmcnt(0)"); A.op("s_barrier")
            A.op("s_nop 7")
            for l in region([lambda o, w=w: coop3(o, w)])[0]: A(l)
            A.op("s_endpgm")
            if w < 3: A.label(f"tf_c{w+1}")
        A.label("tf_epi")
    if fn: A.op("s_waitcnt vmcnt(0)")
    A.op("s_nop 7"); A.op("s_nop 7")
    ep, _ = region([tail_ops])
    for l in ep: A(l)
    A.label("tf_done")
    A.op("s_endpgm")
    return dict(name=name, grid=nwg, block=64 * NWV, lds=L_END, vgpr=512 if wreg else 256, accum=256, sgpr=100)
```

```python
N = 25000
E = 400000
D = 128
NR = 125
RN = 200
TAB = N * 256
HALF = N * 128
OFF_G = 0
OFF_ENT = 8 * TAB
NCH = 250
CHE = E // NCH
OFF_OFFS = OFF_ENT + E * 4
OFF_CNT = OFF_OFFS + NCH * 512
CNT_BYTES = 32768
OFF_WM = OFF_CNT + CNT_BYTES
OFF_WV = OFF_WM + 32768
OFF_WC = OFF_WV + 32768
OFF_OVF = OFF_WC + 512
OFF_ST = OFF_OVF + 2 * E * 2
ST_TOK = N * 16
OFF_CELL = OFF_ST + 8 * ST_TOK
CELL_BYTES = NR * NR * 256
OFF_FV = OFF_CELL + CELL_BYTES
OFF_FN = OFF_FV + 2048
FN_TOK = N * 32
OFF_END = OFF_FN + 8 * FN_TOK
WS_BYTES = 268435456
assert OFF_CNT % 128 == 0 and OFF_WM % 128 == 0 and OFF_OVF % 16 == 0
CAP = 40
NSHARD = 4

class Asm:
    def __init__(self):
        self.lines = []
        self.uid = 0
    def __call__(self, s=""):
        for l in s.split("\n"):
            self.lines.append(l)
    def op(self, s):
        self.lines.append("    " + s)
    def ops(self, *ss):
        for s in ss:
            self.op(s)
    def label(self, s):
        self.lines.append(s + ":")
    def new(self, p="L"):
        self.uid += 1
        return f"{p}_{self.uid}"
    def cmt(self, s):
        self.lines.append("    ; " + s)
    def text(self):
        return "\n".join(self.lines) + "\n"

def kernel_begin(A, name):
    A(f".globl {name}")
    A(".p2align 8")
    A(f".type {name},@function")
    A(f"{name}:")

def kernel_desc(A, name, vgpr, sgpr, accum=None):
    if accum is None:
        accum = (vgpr + 3) // 4 * 4
    A(".p2align 6")
    A(f".amdhsa_kernel {name}")
    A(f"  .amdhsa_next_free_vgpr {vgpr}")
    A(f"  .amdhsa_next_free_sgpr {sgpr}")
    A(f"  .amdhsa_accum_offset {accum}")
    A("  .amdhsa_group_segment_fixed_size 0")
    A("  .amdhsa_kernarg_size 96")
    A("  .amdhsa_user_sgpr_count 2")
    A("  .amdhsa_user_sgpr_kernarg_segment_ptr 1")
    A("  .amdhsa_system_sgpr_workgroup_id_x 1")
    A("  .amdhsa_float_denorm_mode_32 3")
    A("  .amdhsa_float_denorm_mode_16_64 3")
    A(".end_amdhsa_kernel")

def srd(A, s, base, size, off=None):
    if off:
        A.op(f"s_add_u32 s{s}, s{base}, {off}")
        A.op(f"s_addc_u32 s{s+1}, s{base+1}, 0")
    else:
        A.op(f"s_mov_b32 s{s}, s{base}")
        A.op(f"s_mov_b32 s{s+1}, s{base+1}")
    A.op(f"s_mov_b32 s{s+2}, {size}")
    A.op(f"s_mov_b32 s{s+3}, 0x20000")

def wave_scan_incl(A, v, tmp=None):
    for sh in (1, 2, 4, 8):
        A.op("s_nop 1")
        A.op(f"v_add_u32_dpp v{v}, v{v}, v{v} row_shr:{sh} row_mask:0xf bank_mask:0xf")
    A.op("s_nop 1")
    A.op(f"v_add_u32_dpp v{v}, v{v}, v{v} row_bcast:15 row_mask:0xa bank_mask:0xf")
    A.op("s_nop 1")
    A.op(f"v_add_u32_dpp v{v}, v{v}, v{v} row_bcast:31 row_mask:0xc bank_mask:0xf")
    A.op("s_nop 1")


def code_prefetch(A, start, end_, nbytes, wave_sreg, nwaves, vtmp, vdst, spair):
    l = A.new("pc")
    A.op(f"s_getpc_b64 s[{spair}:{spair+1}]")
    A.label(l)
    A.op(f"s_add_u32 s{spair}, s{spair}, {start}-{l}"); A.op(f"s_addc_u32 s{spair+1}, s{spair+1}, 0")
    per = -(-nbytes // (nwaves * 1024))
    A.op(f"s_mul_i32 s{spair+2}, s{wave_sreg}, {per*1024}")
    A.op(f"s_add_u32 s{spair}, s{spair}, s{spair+2}"); A.op(f"s_addc_u32 s{spair+1}, s{spair+1}, 0")
    for i in range(per):
        A.op(f"global_load_dwordx4 v[{vdst}:{vdst+3}], v{vtmp}, s[{spair}:{spair+1}] offset:0" if i == 0 else f"global_load_dwordx4 v[{vdst}:{vdst+3}], v{vtmp}, s[{spair}:{spair+1}]")
        if i != per - 1:
            A.op(f"s_add_u32 s{spair}, s{spair}, 1024"); A.op(f"s_addc_u32 s{spair+1}, s{spair+1}, 0")
    return per
```

```python
from common import *
import prep

L_CNT = 0
L_HIST = 6400
L_BINS = L_HIST + 256
L_SLOT = L_BINS + 256
L_NODE = L_SLOT + 832
L_DEG = L_NODE + 832
L_NDEG = L_DEG + 832
L_OVFP = L_NDEG + 832
L_DSQ = L_OVFP + 832
L_MISC = L_DSQ + 832
L_IMG = L_MISC + 64
IMG_STRIDE = CAP * 2
L_END = L_IMG + 208 * IMG_STRIDE
assert L_IMG % 16 == 0

def gen_hops(A, nh=7, depthfn=lambda W: 4, maxdepth=7, prio=1, sleep=1, prof=0, ld=' sc1', bar='flag', nshard=NSHARD, perm=(5,0,1,2,9,6,4,3,10,11,8,7,12), ndot=4, pf=0, pffrac=0.8, rtt=0, pw=0, pwprio=3, pwsleep=0, cells=False, stst='', fn=False, lps=4, cpf=0):
    name = "hops_kernel"
    kernel_begin(A, name)
    NW = 13
    NWB = NW + (1 if (rtt or pw) else 0)
    maxpairs = CAP // 2
    if fn: maxdepth = 4
    A.op("s_cmp_ge_u32 s2, 252"); A.op("s_cbranch_scc1 hops_done")
    A.op("s_load_dwordx2 s[4:5], s[0:1], 88")
    A.op("s_cmp_ge_u32 s2, 250"); A.op("s_cbranch_scc1 hops_wprep")
    A.op("s_load_dwordx2 s[44:45], s[0:1], 24")
    if prof: A.op("s_memrealtime s[64:65]")
    A.op("s_and_b32 s7, s2, 1"); A.op("s_lshr_b32 s8, s2, 1")
    if lps == 4:
        A.op("v_lshrrev_b32 v4, 2, v0")
        A.op("v_and_b32 v5, 3, v0")
    else:
        assert lps == 6
        A.op("v_mul_u32_u24 v4, 10923, v0"); A.op("v_lshrrev_b32 v4, 16, v4")
        A.op("v_mul_u32_u24 v5, 6, v4"); A.op("v_sub_u32 v5, v0, v5")
    A.op("v_lshlrev_b32 v6, 9, v4")
    A.op("s_lshl_b32 s9, s8, 2")
    A.op(f"s_mul_i32 s10, s8, {RN*2}")
    A.op("v_lshlrev_b32 v7, 1, v0")
    A.op("s_waitcnt lgkmcnt(0)")
    srd(A, 12, 4, NR * 512, OFF_OFFS)
    A.op("buffer_load_dwordx2 v[8:9], v6, s[12:15], s9 offen")
    srd(A, 60, 44, N * 2)
    A.op("buffer_load_ushort v43, v7, s[60:63], s10 offen")
    if cells:
        srd(A, 68, 4, CELL_BYTES, OFF_CELL)
        A.op(f"s_mul_i32 s10, s8, {NR*256}")
        A.op("v_lshlrev_b32 v7, 8, v4"); A.op("v_lshl_add_u32 v7, v5, 4, v7")
        for r in range(4):
            A.op(f"buffer_load_dwordx4 v[{44+4*r}:{44+4*r+3}], v7, s[68:71], s10 offen offset:{64*r}")
    srd(A, 16, 4, E * 4, OFF_ENT)
    A.op("v_lshrrev_b32 v1, 6, v0"); A.op("s_nop 0")
    A.op("v_readfirstlane_b32 s6, v1")
    npf = 0
    if cpf:
        A.op("s_nop 3"); A.op("v_and_b32 v2, 63, v0"); A.op("v_lshlrev_b32 v2, 4, v2")
        npf = code_prefetch(A, "hop_loop", "hops_done", cpf, 6, NW, 2, 100, 64)
    A.op("v_lshlrev_b32 v1, 2, v0")
    A.op("v_mov_b32 v2, 0"); A.op("v_mov_b32 v3, -1")
    for i in range(2):
        A.op(f"ds_write_b32 v1, v2 offset:{i*3328}")
    assert 2 * 3328 >= L_BINS and 2 * 3328 <= L_SLOT + 0 or True
    nimg = 208 * IMG_STRIDE // 4
    for i in range(nimg // 832):
        A.op(f"ds_write_b32 v1, v3 offset:{L_IMG + i*3328}")
    assert nimg % 832 == 0
    A.op("v_cmp_gt_u32 vcc, 208, v0"); A.op("s_and_saveexec_b64 s[20:21], vcc")
    A.op(f"ds_write_b32 v1, v3 offset:{L_NODE}")
    A.op(f"ds_write_b32 v1, v2 offset:{L_DEG}")
    A.op("s_mov_b64 exec, s[20:21]")
    A.op("v_cmp_gt_u32 vcc, 16, v0"); A.op("s_and_saveexec_b64 s[20:21], vcc")
    A.op(f"ds_write_b32 v1, v2 offset:{L_MISC}")
    A.op("s_mov_b64 exec, s[20:21]")
    A.op("s_waitcnt lgkmcnt(0)")
    A.op("s_waitcnt vmcnt(%d)" % ((5 if cells else 1) + npf))
    A.op("v_sub_u32 v10, v9, v8")
    A.op("v_mul_u32_u24 v11, 3200, v4"); A.op("v_add_u32 v11, v11, v8")
    A.op("v_lshl_add_u32 v11, v5, 2, v11"); A.op("v_lshlrev_b32 v11, 2, v11")
    A.op("v_lshlrev_b32 v12, 2, v5")
    NRND = 4 if lps == 4 else 3
    RS = 4 * lps
    for r in range(0 if cells else NRND):
        A.op(f"buffer_load_dwordx4 v[{44+4*r}:{44+4*r+3}], v11, s[16:19], 0 offen offset:{4*RS*r}")
    A.op("s_barrier")
    A.op("v_cmp_eq_u32 vcc, 0, v5"); A.op("s_and_saveexec_b64 s[20:21], vcc")
    A.op(f"v_mov_b32 v13, {L_MISC}"); A.op("ds_add_u32 v13, v8")
    A.op("s_mov_b64 exec, s[20:21]")
    ER = 44
    def keys(e, k):
        A.op(f"v_bfe_u32 v24, v{e}, 16, 8"); A.op(f"v_bfe_u32 v{k}, v{e}, 12, 4")
        A.op(f"v_lshl_add_u32 v{k}, v24, 3, v{k}"); A.op(f"v_lshlrev_b32 v{k}, 2, v{k}")
    def count4(e0, pos):
        for i in range(4):
            keys(e0 + i, 25 + i)
        for i in range(4):
            A.op(f"v_add_u32 v24, {i}, v{pos}"); A.op("v_cmp_lt_u32 vcc, v24, v10"); A.op("s_and_b64 exec, s[22:23], vcc")
            A.op(f"ds_add_u32 v{25+i}, v30 offset:{L_CNT}")
        A.op("s_mov_b64 exec, s[22:23]")
    def fill4(e0, pos):
        for i in range(4):
            keys(e0 + i, 25 + i)
            A.op(f"v_bfe_u32 v{20+i}, v{e0+i}, 16, 8")
        for i in range(4):
            A.op(f"v_add_u32 v24, {i}, v{pos}"); A.op(f"v_cmp_lt_u32 s[{24+2*i}:{25+2*i}], v24, v10")
        for i in range(4):
            A.op(f"s_and_b64 exec, s[22:23], s[{24+2*i}:{25+2*i}]")
            A.op(f"ds_add_rtn_u32 v{32+i}, v{25+i}, v30 offset:{L_CNT}")
            A.op(f"v_lshlrev_b32 v24, 2, v{20+i}")
            A.op(f"ds_read_b32 v{36+i}, v24 offset:{L_SLOT}")
        A.op("s_mov_b64 exec, s[22:23]")
        A.op("s_waitcnt lgkmcnt(0)")
        for i in range(4):
            A.op("s_mov_b64 exec, s[22:23]")
            A.op(f"v_cmp_gt_u32 vcc, {CAP}, v{32+i}")
            A.op(f"s_and_b64 s[32:33], s[{24+2*i}:{25+2*i}], vcc")
            A.op(f"s_and_b64 exec, s[22:23], s[32:33]")
            A.op(f"v_mul_u32_u24 v24, {IMG_STRIDE}, v{36+i}")
            A.op(f"v_lshl_add_u32 v24, v{32+i}, 1, v24")
            A.op(f"ds_write_b16 v24, v{e0+i} offset:{L_IMG}")
            A.op(f"s_andn2_b64 s[32:33], s[{24+2*i}:{25+2*i}], vcc")
            A.op(f"s_and_b64 exec, s[22:23], s[32:33]")
            lo = A.new("no")
            A.op(f"s_cbranch_execz {lo}")
            A.op(f"v_lshlrev_b32 v24, 2, v{20+i}")
            A.op(f"ds_read_b32 v24, v24 offset:{L_OVFP}")
            A.op("s_waitcnt lgkmcnt(0)")
            A.op(f"v_add_u32 v24, v24, v{32+i}")
            A.op(f"v_subrev_u32 v24, {CAP}, v24")
            A.op(f"v_lshlrev_b32 v24, 1, v24")
            A.op(f"buffer_store_short v{e0+i}, v24, s[48:51], 0 offen")
            A.label(lo)
        A.op("s_mov_b64 exec, s[22:23]")
    def fillA(e0, pos, pr, sr):
        for i in range(4):
            keys(e0 + i, 25 + i)
            A.op(f"v_bfe_u32 v{20+i}, v{e0+i}, 16, 8"); A.op(f"v_lshlrev_b32 v{20+i}, 2, v{20+i}")
        for i in range(4):
            A.op(f"v_add_u32 v24, {i}, v{pos}"); A.op("v_cmp_lt_u32 vcc, v24, v10"); A.op("s_and_b64 exec, s[22:23], vcc")
            A.op(f"ds_add_rtn_u32 v{pr+i}, v{25+i}, v30 offset:{L_CNT}")
            A.op(f"ds_read_b32 v{sr+i}, v{20+i} offset:{L_SLOT}")
        A.op("s_mov_b64 exec, s[22:23]")
    def fillB(e0, pos, pr, sr):
        for i in range(4):
            A.op("s_mov_b64 exec, s[22:23]")
            A.op(f"v_add_u32 v24, {i}, v{pos}"); A.op(f"v_cmp_lt_u32 s[24:25], v24, v10")
            A.op(f"v_cmp_gt_u32 vcc, {CAP}, v{pr+i}")
            A.op(f"v_mul_u32_u24 v24, {IMG_STRIDE}, v{sr+i}")
            A.op(f"v_lshl_add_u32 v24, v{pr+i}, 1, v24")
            A.op(f"s_and_b64 exec, s[24:25], vcc")
            A.op(f"ds_write_b16 v24, v{e0+i} offset:{L_IMG}")
            A.op(f"s_andn2_b64 exec, s[24:25], vcc")
            lo = A.new("no")
            A.op(f"s_cbranch_execz {lo}")
            A.op(f"v_bfe_u32 v24, v{e0+i}, 16, 8"); A.op(f"v_lshlrev_b32 v24, 2, v24")
            A.op(f"ds_read_b32 v24, v24 offset:{L_OVFP}")
            A.op("s_waitcnt lgkmcnt(0)")
            A.op(f"v_add_u32 v24, v24, v{pr+i}")
            A.op(f"v_subrev_u32 v24, {CAP}, v24")
            A.op(f"v_lshlrev_b32 v24, 1, v24")
            A.op(f"buffer_store_short v{e0+i}, v24, s[48:51], 0 offen")
            A.label(lo)
        A.op("s_mov_b64 exec, s[22:23]")
    def entry_pass(fill):
        f4 = fill4 if fill else count4
        A.op("v_mov_b32 v30, 1"); A.op("s_mov_b64 s[22:23], exec")
        done = A.new("epd")
        if not fill:
            for r in range(NRND):
                A.op(f"v_add_u32 v15, {RS*r}, v12")
                A.op("v_cmp_lt_u32 vcc, v15, v10"); A.op(f"s_cbranch_vccz {done}")
                f4(ER + 4 * r, 15)
        else:
            la = A.new("fa"); lb = A.new("fb")
            for r in range(NRND):
                A.op(f"v_add_u32 v15, {RS*r}, v12")
                A.op("v_cmp_lt_u32 vcc, v15, v10"); A.op(f"s_cbranch_vccz {la}")
                fillA(ER + 4 * r, 15, 60 + 4 * r, 76 + 4 * r)
                A.op("s_waitcnt lgkmcnt(6)")
            A.label(la)
            A.op("s_waitcnt lgkmcnt(0)")
            for r in range(NRND):
                A.op(f"v_add_u32 v15, {RS*r}, v12")
                A.op("v_cmp_lt_u32 vcc, v15, v10"); A.op(f"s_cbranch_vccz {done}")
                fillB(ER + 4 * r, 15, 60 + 4 * r, 76 + 4 * r)
        lp = A.new("ep")
        A.op(f"v_add_u32 v14, {4*RS*NRND}, v11"); A.op(f"v_add_u32 v15, {RS*NRND}, v12")
        A.label(lp)
        A.op("v_cmp_lt_u32 vcc, v15, v10"); A.op(f"s_cbranch_vccz {done}")
        A.op("buffer_load_dwordx4 v[16:19], v14, s[16:19], 0 offen")
        A.op("s_waitcnt vmcnt(0)")
        f4(16, 15)
        A.op(f"v_add_u32 v14, {4*RS}, v14"); A.op(f"v_add_u32 v15, {RS}, v15")
        A.op(f"s_branch {lp}")
        A.label(done)
    A.op("s_waitcnt vmcnt(0)")
    if prof: A.op("s_memrealtime s[66:67]")
    entry_pass(False)
    A.op("s_waitcnt lgkmcnt(0)")
    A.op("s_barrier")
    if prof: A.op("s_memrealtime s[68:69]")
    A.op("v_cmp_gt_u32 vcc, 200, v0"); A.op("s_and_saveexec_b64 s[20:21], vcc")
    l1 = A.new("np"); A.op(f"s_cbranch_execz {l1}")
    A.op("v_lshlrev_b32 v1, 5, v0")
    A.op(f"ds_read_b128 v[16:19], v1 offset:{L_CNT}"); A.op(f"ds_read_b128 v[20:23], v1 offset:{L_CNT+16}")
    A.op("s_waitcnt lgkmcnt(0)")
    A.op("v_mov_b32 v24, 0")
    for i in range(8):
        A.op(f"v_mov_b32 v25, v{16+i}"); A.op(f"v_mov_b32 v{16+i}, v24"); A.op("v_add_u32 v24, v24, v25")
    A.op(f"ds_write_b128 v1, v[16:19] offset:{L_CNT}"); A.op(f"ds_write_b128 v1, v[20:23] offset:{L_CNT+16}")
    A.op("v_mov_b32 v40, v24")
    A.op(f"v_min_u32 v41, {CAP}, v24"); A.op("v_lshlrev_b32 v41, 2, v41")
    A.op("v_mov_b32 v30, 1")
    A.op(f"ds_add_rtn_u32 v42, v41, v30 offset:{L_HIST}")
    A.op("v_lshlrev_b32 v1, 2, v0")
    A.op(f"ds_write_b32 v1, v40 offset:{L_NDEG}")
    A.op("v_lshlrev_b32 v43, 16, v43"); A.op("v_mul_f32 v43, v43, v43")
    A.op(f"ds_write_b32 v1, v43 offset:{L_DSQ}")
    A.op(f"v_cmp_lt_u32 vcc, {CAP}, v40"); A.op("s_and_b64 exec, exec, vcc")
    A.op(f"v_mov_b32 v13, {L_MISC+4}"); A.op("ds_write_b32 v13, v30")
    A.label(l1)
    A.op("s_mov_b64 exec, s[20:21]")
    A.op("s_waitcnt lgkmcnt(0)")
    A.op("s_barrier")
    A.op("s_cmp_eq_u32 s6, 0"); l2 = A.new("w0"); A.op(f"s_cbranch_scc0 {l2}")
    A.op("v_lshlrev_b32 v1, 2, v0")
    A.op(f"ds_read_b32 v16, v1 offset:{L_HIST}")
    A.op(f"v_mov_b32 v13, {L_MISC}"); A.op("ds_read_b64 v[18:19], v13")
    A.op("s_waitcnt lgkmcnt(0)")
    wave_scan_incl(A, 16)
    A.op("v_sub_u32 v16, 200, v16")
    A.op(f"ds_write_b32 v1, v16 offset:{L_BINS}")
    A.op("v_readfirstlane_b32 s9, v18"); A.op("v_readfirstlane_b32 s10, v19")
    A.op("s_nop 3")
    A.op("s_cmp_eq_u32 s10, 0"); A.op(f"s_cbranch_scc1 {l2}")
    A.op("s_mov_b32 s11, 0")
    lo = A.new("ov"); A.label(lo)
    A.op("s_lshl_b32 s20, s11, 2"); A.op("v_mov_b32 v1, s20")
    A.op(f"ds_read_b32 v16, v1 offset:{L_NDEG}")
    A.op("v_mov_b32 v17, s9"); A.op(f"ds_write_b32 v1, v17 offset:{L_OVFP}")
    A.op("s_waitcnt lgkmcnt(0)")
    A.op("v_readfirstlane_b32 s20, v16"); A.op("s_nop 3")
    A.op(f"s_max_u32 s20, s20, {CAP}"); A.op(f"s_sub_u32 s20, s20, {CAP}"); A.op("s_add_u32 s9, s9, s20")
    A.op("s_add_u32 s11, s11, 1"); A.op("s_cmp_lt_u32 s11, 200"); A.op(f"s_cbranch_scc1 {lo}")
    A.label(l2)
    A.op("s_waitcnt lgkmcnt(0)")
    A.op("s_barrier")
    A.op("v_cmp_gt_u32 vcc, 200, v0"); A.op("s_and_saveexec_b64 s[20:21], vcc")
    l3 = A.new("np"); A.op(f"s_cbranch_execz {l3}")
    A.op(f"ds_read_b32 v16, v41 offset:{L_BINS}")
    A.op("s_waitcnt lgkmcnt(0)")
    A.op("v_add_u32 v16, v16, v42")
    A.op("v_lshlrev_b32 v1, 2, v0"); A.op(f"ds_write_b32 v1, v16 offset:{L_SLOT}")
    A.op("v_lshlrev_b32 v16, 2, v16")
    A.op(f"ds_write_b32 v16, v0 offset:{L_NODE}"); A.op(f"ds_write_b32 v16, v40 offset:{L_DEG}")
    A.label(l3)
    A.op("s_mov_b64 exec, s[20:21]")
    A.op(f"s_mul_i32 s9, s7, {E*2}"); A.op(f"s_add_u32 s9, s9, {OFF_OVF}")
    A.op("s_add_u32 s48, s4, s9"); A.op("s_addc_u32 s49, s5, 0"); A.op(f"s_mov_b32 s50, {E*2}"); A.op("s_mov_b32 s51, 0x20000")
    A.op("s_waitcnt lgkmcnt(0)")
    A.op("s_barrier")
    if prof: A.op("s_memrealtime s[70:71]")
    entry_pass(True)
    A.op("s_waitcnt vmcnt(0) lgkmcnt(0)")
    A.op("s_barrier")
    if prof: A.op("s_memrealtime s[72:73]")
    if rtt:
        A.op(f"s_cmp_eq_u32 s6, {NW}"); A.op("s_cbranch_scc1 hop_rtt")
    if pw:
        A.op(f"s_cmp_eq_u32 s6, {NW}"); A.op("s_cbranch_scc1 hop_pw")
    P = [26, 26 + maxpairs]
    VA = 26 + 2 * maxpairs; VN = VA + 2; VS = VN + 2
    DATA = (VS + 2 + 3) // 4 * 4
    ACC = [10, 18]
    nv = DATA + 8 * maxdepth
    KF = DATA + 32
    if fn: nv = KF + 24
    assert nv <= 128
    A.op("v_and_b32 v0, 63, v0")
    A.op("v_and_b32 v8, 7, v0"); A.op("v_lshlrev_b32 v8, 4, v8")
    A.op("v_lshrrev_b32 v5, 3, v0")
    pc = sum(p << (4 * w) for w, p in enumerate(perm))
    A.op(f"s_mov_b32 s58, {pc & 0xffffffff:#x}"); A.op(f"s_mov_b32 s59, {pc >> 32:#x}")
    A.op("s_lshl_b32 s9, s6, 2"); A.op("s_lshr_b64 s[58:59], s[58:59], s9"); A.op("s_and_b32 s56, s58, 15")
    A.op("s_lshl_b32 s9, s56, 4")
    A.op("v_add_u32 v5, s9, v5")
    A.op(f"s_mul_i32 s10, s8, {RN}")
    for i in range(2):
        A.op(f"v_add_u32 v6, {8*i}, v5")
        A.op(f"v_mul_u32_u24 v7, {IMG_STRIDE}, v6")
        A.op("v_lshlrev_b32 v6, 2, v6")
        A.op(f"ds_read_b32 v2, v6 offset:{L_NODE}"); A.op(f"ds_read_b32 v{3+i}, v6 offset:{L_DEG}")
        for p in range(maxpairs):
            A.op(f"ds_read_b32 v{P[i]+p}, v7 offset:{L_IMG + 4*p}")
            if p % 8 == 7: A.op("s_waitcnt lgkmcnt(4)")
        A.op("s_waitcnt lgkmcnt(4)")
        A.op("v_cmp_gt_u32 vcc, 200, v2")
        A.op("v_min_u32 v6, 199, v2"); A.op("v_lshlrev_b32 v6, 2, v6")
        A.op(f"ds_read_b32 v{VS+i}, v6 offset:{L_DSQ}")
        A.op("v_add_u32 v2, s10, v2")
        A.op("v_lshl_add_u32 v2, v2, 7, v8")
        A.op(f"v_cndmask_b32_e64 v{VN+i}, -1, v2, vcc")
    A.op("v_max_u32 v3, v3, v4")
    A.op("s_nop 0")
    A.op("v_readfirstlane_b32 s40, v3")
    A.op("s_nop 3")
    A.op(f"s_cmp_gt_u32 s40, {CAP}"); A.op("s_cselect_b32 s41, 1, 0")
    A.op(f"s_min_u32 s40, s40, {CAP}"); A.op("s_add_u32 s40, s40, 1"); A.op("s_lshr_b32 s40, s40, 1")
    A.op("s_waitcnt lgkmcnt(0)")
    A.op("s_mov_b32 s28, 0x3f80"); A.op("s_mov_b32 s29, 0x3f800000"); A.op("s_mov_b32 s30, 128")
    A.op(f"s_mul_i32 s19, s7, {HALF}")
    A.op("s_add_u32 s20, s4, s19"); A.op("s_addc_u32 s21, s5, 0")
    A.op(f"s_mov_b32 s22, {HALF}"); A.op("s_mov_b32 s23, 0x20000")
    A.op(f"s_add_u32 s24, s20, {TAB}"); A.op("s_addc_u32 s25, s21, 0")
    A.op(f"s_mov_b32 s26, {HALF}"); A.op("s_mov_b32 s27, 0x20000")
    cbytes = nshard * 128 if bar == 'cnt' else 128 * 128
    A.op(f"s_mul_i32 s19, s7, {cbytes}"); A.op(f"s_add_u32 s19, s19, {OFF_CNT}")
    A.op("s_add_u32 s32, s4, s19"); A.op("s_addc_u32 s33, s5, 0")
    A.op(f"s_mov_b32 s34, {cbytes}"); A.op("s_mov_b32 s35, 0x20000")
    A.op(f"s_lshl_b32 s19, s7, 3"); A.op(f"s_add_u32 s19, s19, {OFF_ST + ST_TOK}")
    A.op("s_add_u32 s76, s4, s19"); A.op("s_addc_u32 s77, s5, 0")
    A.op(f"s_mov_b32 s78, {ST_TOK - 8}"); A.op("s_mov_b32 s79, 0x20000")
    if fn:
        srd(A, 80, 4, 1536, OFF_FV)
        A.op("v_lshlrev_b32 v2, 1, v8"); A.op("s_lshl_b32 s19, s7, 8")
        for v in range(3):
            for q in range(2):
                A.op(f"buffer_load_dwordx4 v[{KF+8*v+4*q}:{KF+8*v+4*q+3}], v2, s[80:83], s19 offen offset:{512*v + 16*q}")
        A.op(f"s_lshl_b32 s19, s7, 4"); A.op(f"s_add_u32 s19, s19, {OFF_FN}")
        A.op("s_add_u32 s84, s4, s19"); A.op("s_addc_u32 s85, s5, 0")
        A.op(f"s_mov_b32 s86, {FN_TOK - 16}"); A.op("s_mov_b32 s87, 0x20000")
        A.op("s_load_dwordx2 s[92:93], s[0:1], 0")
        A.op("s_waitcnt vmcnt(0) lgkmcnt(0)")
        srd(A, 88, 92, TAB)
    A.op("s_mov_b32 s36, 0")
    if prof:
        A.op("s_memrealtime s[74:75]")
        A.op("s_waitcnt lgkmcnt(0)")
        srd(A, 80, 4, 4 << 20, 96 << 20)
        A.op("s_lshl_b32 s84, s2, 4"); A.op("s_add_u32 s84, s84, s6"); A.op("s_lshl_b32 s84, s84, 10")
        A.op("s_mov_b64 exec, 1")
        for qi in range(6):
            A.op(f"v_mov_b32 v6, s{64+2*qi}"); A.op(f"v_mov_b32 v7, s{65+2*qi}"); A.op(f"v_mov_b32 v2, {8*qi}")
            A.op("buffer_store_dwordx2 v[6:7], v2, s[80:83], s84 offen"); A.op("s_nop 1")
        A.op("s_mov_b64 exec, -1")
    def stats():
        A.cmt("row statistics (sum, sum of squares over this half) for the transformer LayerNorm")
        for i in range(2):
            t = DATA + 8 + 2 * i
            A.op(f"v_add_f32 v{t}, v{ACC[i]}, v{ACC[i]+1}"); A.op(f"v_mul_f32 v{t+1}, v{ACC[i]}, v{ACC[i]}")
            A.op(f"v_fmac_f32 v{t+1}, v{ACC[i]+1}, v{ACC[i]+1}")
            for q in range(2, 8):
                A.op(f"v_add_f32 v{t}, v{t}, v{ACC[i]+q}"); A.op(f"v_fmac_f32 v{t+1}, v{ACC[i]+q}, v{ACC[i]+q}")
        for m in ("quad_perm:[1,0,3,2]", "quad_perm:[2,3,0,1]", "row_half_mirror"):
            for q in range(4):
                A.op(f"v_add_f32_dpp v{DATA+8+q}, v{DATA+8+q}, v{DATA+8+q} {m} row_mask:0xf bank_mask:0xf")
        A.op(f"v_lshrrev_b32 v2, 3, v{VN}"); A.op(f"v_lshrrev_b32 v3, 3, v{VN+1}")
        A.op("s_mov_b32 exec_lo, 0x01010101"); A.op("s_mov_b32 exec_hi, 0x01010101")
        A.op(f"buffer_store_dwordx2 v[{DATA+8}:{DATA+9}], v2, s[76:79], 0 offen{stst}")
        A.op(f"buffer_store_dwordx2 v[{DATA+10}:{DATA+11}], v3, s[76:79], 0 offen{stst}")
        A.op("s_mov_b64 exec, -1")
        A.op(f"s_add_u32 s76, s76, {ST_TOK}"); A.op("s_addc_u32 s77, s77, 0")
        if fn:
            A.op(f"s_add_u32 s84, s84, {FN_TOK}"); A.op("s_addc_u32 s85, s85, 0")
            funcs([[ACC[0] + q for q in range(8)], [ACC[1] + q for q in range(8)]])
    def funcs(vals):
        F = [DATA + 12, DATA + 16]
        for i in range(2):
            for v in range(3):
                A.op(f"v_mul_f32 v{F[i]+v}, v{vals[i][0]}, v{KF+8*v}")
                for q in range(1, 8):
                    A.op(f"v_fmac_f32 v{F[i]+v}, v{vals[i][q]}, v{KF+8*v+q}")
        for m in ("quad_perm:[1,0,3,2]", "quad_perm:[2,3,0,1]", "row_half_mirror"):
            for i in range(2):
                for v in range(3):
                    A.op(f"v_add_f32_dpp v{F[i]+v}, v{F[i]+v}, v{F[i]+v} {m} row_mask:0xf bank_mask:0xf")
        A.op(f"v_lshrrev_b32 v2, 2, v{VN}"); A.op(f"v_lshrrev_b32 v3, 2, v{VN+1}")
        A.op("s_mov_b32 exec_lo, 0x01010101"); A.op("s_mov_b32 exec_hi, 0x01010101")
        A.op(f"buffer_store_dwordx4 v[{F[0]}:{F[0]+3}], v2, s[84:87], 0 offen")
        A.op(f"buffer_store_dwordx4 v[{F[1]}:{F[1]+3}], v3, s[84:87], 0 offen")
        A.op("s_mov_b64 exec, -1")
    def xpre():
        if not fn: return
        l = A.new("xp")
        A.op("s_cmp_eq_u32 s36, 1"); A.op(f"s_cbranch_scc0 {l}")
        A.op("s_lshl_b32 s19, s7, 7")
        for i in range(2):
            A.op(f"v_lshlrev_b32 v2, 1, v{VN+i}"); A.op("v_sub_u32 v2, v2, v8")
            A.op(f"buffer_load_dwordx4 v[{DATA+20+4*i}:{DATA+23+4*i}], v2, s[88:91], s19 offen")
        A.label(l)
    def xpost():
        if not fn: return
        l = A.new("xq")
        A.op("s_cmp_eq_u32 s36, 1"); A.op(f"s_cbranch_scc0 {l}")
        A.op("s_waitcnt vmcnt(0)")
        A.op("s_mov_b32 s19, 0xffff0000")
        U = [ACC[0], ACC[1]]
        for i in range(2):
            for q in range(4):
                A.op(f"v_lshlrev_b32 v{U[i]+2*q}, 16, v{DATA+20+4*i+q}"); A.op(f"v_and_b32 v{U[i]+2*q+1}, s19, v{DATA+20+4*i+q}")
        A.op(f"s_sub_u32 s84, s84, {FN_TOK}"); A.op("s_subb_u32 s85, s85, 0")
        funcs([[U[0] + q for q in range(8)], [U[1] + q for q in range(8)]])
        A.op(f"s_add_u32 s84, s84, {FN_TOK}"); A.op("s_addc_u32 s85, s85, 0")
        A.label(l)
    A.label("hop_loop")
    if prof: A.op("s_memrealtime s[64:65]")
    for i in range(2):
        for q in range(8):
            A.op(f"v_mov_b32 v{ACC[i]+q}, 0")
    if pf:
        A.op("s_lshr_b32 s82, s2, 3"); A.op("s_and_b32 s82, s82, 31")
        A.op("s_lshl_b32 s83, s6, 5"); A.op("s_add_u32 s82, s82, s83"); A.op("s_lshl_b32 s82, s82, 7")
        A.op("s_add_u32 s84, s20, s82"); A.op("s_addc_u32 s85, s21, 0")
        for b in range(1, 4):
            A.op(f"s_add_u32 s{84+2*b}, s84, {19*b*53248}"); A.op(f"s_addc_u32 s{85+2*b}, s85, 0")
    def tree(lo, hi):
        if lo == hi:
            A.op(f"s_branch hop_w{lo}"); return
        mid = (lo + hi + 1) // 2
        l = A.new("bt")
        A.op(f"s_cmp_ge_u32 s40, {mid}"); A.op(f"s_cbranch_scc1 {l}")
        tree(lo, mid - 1)
        A.label(l)
        tree(mid, hi)
    tree(0, maxpairs)
    A.label("hop_w0")
    A.op("s_branch hop_fin")
    for n in range(1, maxpairs + 1):
        A.label(f"hop_w{n}")
        steps = 2 * n
        depth = max(1, min(maxdepth, depthfn(steps), steps))
        state = {"p": None}
        def prefetch(j):
            if not pf: return
            ns = max(1, int(steps * pffrac))
            lo = min(60, (60 * j + ns - 1) // ns); hi = min(60, (60 * (j + 1) + ns - 1) // ns)
            for n_ in range(lo, hi):
                b = 84 + 2 * (n_ // 19)
                for sub in range(pf):
                    A.op(f"s_load_dword s{92 + (n_ & 1)}, s[{b}:{b+1}], {(n_ % 19) * 53248 + 64 * sub}")
        def issue(j):
            if prio:
                p = 3 - min(3, (4 * j) // steps)
                if p != state["p"]:
                    A.op(f"s_setprio {p}"); state["p"] = p
            for i in range(2):
                A.op(f"v_mad_u32_u16 v{VA + i}, v{P[i] + j//2}, s30, v8 op_sel:[{j&1},0,0,0]")
                d = DATA + 8 * (j % depth) + 4 * i
                A.op(f"buffer_load_dwordx4 v[{d}:{d+3}], v{VA + i}, s[20:23], 0 offen{ld}")
        for j in range(min(depth, steps)):
            issue(j)
        for j in range(steps):
            prefetch(j)
            out_steps = min(steps, j + depth) - j - 1
            for i in range(2):
                A.op(f"s_waitcnt vmcnt({2*out_steps + (1 - i)})")
                d = DATA + 8 * (j % depth) + 4 * i
                for q in range(ndot):
                    A.op(f"v_dot2c_f32_bf16 v{ACC[i]+2*q}, s28, v{d+q}")
                    A.op(f"v_dot2c_f32_bf16 v{ACC[i]+2*q+1}, s29, v{d+q}")
            if j + depth < steps:
                issue(j + depth)
        if n != maxpairs:
            A.op(f"s_branch hop_fin")
    A.label("hop_fin")
    if pf: A.op("s_waitcnt lgkmcnt(0)")
    if prof: A.op("s_memrealtime s[66:67]")
    if prio: A.op("s_setprio 0")
    A.op("s_cmp_eq_u32 s41, 0"); A.op("s_cbranch_scc1 hop_noovf")
    T = DATA; DD = DATA + 8
    for i in range(2):
        A.op("s_mov_b32 s52, 0")
        lg = A.new("og"); ln = A.new("on"); ll = A.new("ol"); ld = A.new("od")
        A.label(lg)
        A.op(f"s_lshl_b32 s53, s56, 4"); A.op(f"s_add_u32 s53, s53, s52"); A.op(f"s_add_u32 s53, s53, {8*i}")
        A.op("s_lshl_b32 s53, s53, 2"); A.op("v_mov_b32 v2, s53")
        A.op(f"ds_read_b32 v3, v2 offset:{L_DEG}"); A.op(f"ds_read_b32 v4, v2 offset:{L_NODE}")
        A.op("s_waitcnt lgkmcnt(0)")
        A.op("v_readfirstlane_b32 s54, v3"); A.op("v_lshlrev_b32 v4, 2, v4"); A.op("s_nop 2")
        A.op(f"s_cmp_le_u32 s54, {CAP}"); A.op(f"s_cbranch_scc1 {ln}")
        A.op(f"ds_read_b32 v4, v4 offset:{L_OVFP}")
        A.op(f"s_sub_u32 s54, s54, {CAP}")
        for q in range(8):
            A.op(f"v_mov_b32 v{T+q}, 0")
        A.op("v_lshrrev_b32 v5, 3, v0")
        A.op("s_waitcnt lgkmcnt(0)")
        A.label(ll)
        A.op("v_add_u32 v6, v4, v5"); A.op("v_lshlrev_b32 v6, 1, v6")
        A.op("buffer_load_ushort v7, v6, s[48:51], 0 offen sc1")
        A.op("v_cmp_gt_u32 vcc, s54, v5")
        A.op("v_mov_b32 v6, 0xffff")
        A.op("s_waitcnt vmcnt(0)")
        A.op("v_cndmask_b32_e64 v7, v6, v7, vcc")
        A.op("v_mad_u32_u24 v7, v7, s30, v8")
        A.op(f"buffer_load_dwordx4 v[{DD}:{DD+3}], v7, s[20:23], 0 offen sc1")
        A.op("v_add_u32 v5, 8, v5")
        A.op("s_waitcnt vmcnt(0)")
        for q in range(4):
            A.op(f"v_dot2c_f32_bf16 v{T+2*q}, s28, v{DD+q}")
            A.op(f"v_dot2c_f32_bf16 v{T+2*q+1}, s29, v{DD+q}")
        A.op("v_min_u32 v6, v5, v5")
        A.op("v_readfirstlane_b32 s55, v5"); A.op("s_nop 3")
        A.op("s_cmp_lt_u32 s55, s54"); A.op(f"s_cbranch_scc1 {ll}")
        for q in range(8):
            A.op("s_nop 1")
            A.op(f"v_add_f32_dpp v{T+q}, v{T+q}, v{T+q} row_ror:8 row_mask:0xf bank_mask:0xf")
        for q in range(8):
            A.op(f"ds_swizzle_b32 v{DD+q}, v{T+q} offset:0x401f")
        A.op("s_waitcnt lgkmcnt(0)")
        for q in range(8):
            A.op(f"v_add_f32 v{T+q}, v{T+q}, v{DD+q}")
            A.op(f"v_mov_b32 v{DD+q}, v{T+q}")
        A.op("s_nop 1")
        for q in range(8):
            A.op(f"v_permlane32_swap_b32 v{T+q}, v{DD+q}")
        A.op("s_mov_b32 s58, 0xff"); A.op("s_mov_b32 s59, 0"); A.op("s_lshl_b32 s55, s52, 3"); A.op("s_lshl_b64 s[58:59], s[58:59], s55")
        for q in range(8):
            A.op(f"v_add_f32 v{T+q}, v{T+q}, v{DD+q}")
        A.op("s_mov_b64 exec, s[58:59]")
        for q in range(8):
            A.op(f"v_add_f32 v{ACC[i]+q}, v{ACC[i]+q}, v{T+q}")
        A.op("s_mov_b64 exec, -1")
        A.label(ln)
        A.op("s_add_u32 s52, s52, 1"); A.op("s_cmp_lt_u32 s52, 8"); A.op(f"s_cbranch_scc1 {lg}")
    A.label("hop_noovf")
    for i in range(2):
        for q in range(8):
            A.op(f"v_mul_f32 v{ACC[i]+q}, v{VS+i}, v{ACC[i]+q}")
        d = DATA + 4 * i
        for q in range(4):
            A.op(f"v_cvt_pk_bf16_f32 v{d+q}, v{ACC[i]+2*q}, v{ACC[i]+2*q+1}")
        A.op(f"buffer_store_dwordx4 v[{d}:{d+3}], v{VN+i}, s[24:27], 0 offen sc0 sc1")
    A.op("s_add_u32 s36, s36, 1")
    A.op(f"s_add_u32 s20, s20, {TAB}"); A.op("s_addc_u32 s21, s21, 0")
    A.op(f"s_add_u32 s24, s24, {TAB}"); A.op("s_addc_u32 s25, s25, 0")
    A.op(f"s_cmp_ge_u32 s36, {nh}"); A.op("s_cbranch_scc1 hop_last")
    A.op("s_waitcnt vmcnt(0)")
    if prof: A.op("s_memrealtime s[68:69]")
    A.op("s_barrier")
    if prof:
        A.op("s_memrealtime s[70:71]")
        A.op("s_waitcnt lgkmcnt(0)")
        A.op("s_lshl_b32 s85, s36, 6"); A.op("s_add_u32 s85, s85, s84")
        A.op("s_mov_b64 exec, 1")
        for qi in range(4):
            A.op(f"v_mov_b32 v6, s{64+2*qi}"); A.op(f"v_mov_b32 v7, s{65+2*qi}"); A.op(f"v_mov_b32 v2, {8*qi}")
            A.op("buffer_store_dwordx2 v[6:7], v2, s[80:83], s85 offen"); A.op("s_nop 1")
        A.op("s_mov_b64 exec, -1")
    if pw: A.op("s_branch hop_barother")
    A.op("s_cmp_lg_u32 s6, 0"); A.op("s_cbranch_scc1 hop_barother")
    if bar == 'cnt':
        A.op(f"s_and_b32 s9, s8, {nshard-1}"); A.op("s_lshl_b32 s9, s9, 7")
        A.op("v_mov_b32 v2, s9"); A.op("v_mov_b32 v3, 1")
        A.op("s_mov_b64 exec, 1")
        A.op("buffer_atomic_add v3, v2, s[32:35], 0 offen sc1")
        A.op("s_mov_b64 exec, -1")
        A.op(f"v_min_u32 v5, {nshard-1}, v0"); A.op("v_lshlrev_b32 v2, 7, v5")
        A.op(f"v_sub_u32 v5, {NR + nshard - 1}, v5"); A.op(f"v_lshrrev_b32 v5, {nshard.bit_length()-1}, v5")
        A.op("v_mul_lo_u32 v5, v5, s36")
    else:
        A.op("s_lshl_b32 s9, s8, 7")
        A.op("v_mov_b32 v2, s9"); A.op("v_mov_b32 v3, s36")
        A.op("s_mov_b64 exec, 1")
        A.op("buffer_store_dword v3, v2, s[32:35], 0 offen sc0 sc1")
        A.op("s_mov_b64 exec, -1")
        A.op("v_lshlrev_b32 v2, 7, v0")
        A.op("v_add_u32 v3, 64, v0"); A.op(f"v_min_u32 v3, {NR-1}, v3"); A.op("v_lshlrev_b32 v3, 7, v3")
    A.op("v_mov_b32 v4, v2"); A.op("v_mov_b32 v9, v3"); A.op("v_mov_b32 v6, v5")
    stats()
    xpre()
    A.op("v_mov_b32 v2, v4"); A.op("v_mov_b32 v3, v9"); A.op("v_mov_b32 v5, v6")
    A.op("s_mov_b32 s37, 0")
    A.label("hop_poll")
    A.op("buffer_load_dword v4, v2, s[32:35], 0 offen sc0 sc1")
    if bar != 'cnt':
        A.op("buffer_load_dword v5, v3, s[32:35], 0 offen sc0 sc1")
    A.op("s_add_u32 s37, s37, 1"); A.op("s_cmp_ge_u32 s37, 100000"); A.op("s_cbranch_scc1 hop_pollok")
    A.op("s_waitcnt vmcnt(0)")
    if bar == 'cnt':
        A.op("v_cmp_ge_u32 s[38:39], v4, v5")
    else:
        A.op("v_min_u32 v4, v4, v5"); A.op("v_cmp_le_u32 s[38:39], s36, v4")
    A.op("s_nop 3")
    A.op("s_cmp_eq_u64 s[38:39], -1"); A.op("s_cbranch_scc1 hop_pollok")
    if sleep: A.op(f"s_sleep {sleep}")
    A.op("s_branch hop_poll")
    A.label("hop_pollok")
    A.op("s_waitcnt vmcnt(0)")
    xpost()
    A.label("hop_barw")
    A.op("s_barrier")
    A.op("s_branch hop_loop")
    A.label("hop_barother")
    stats()
    xpre()
    xpost()
    A.op("s_branch hop_barw")
    A.label("hop_last")
    stats()
    A.op("s_endpgm")
    if pw:
        A.cmt("helper wave: L2 prefetch of this hop's source half table (own share), barrier flag and poll")
        A.label("hop_pw")
        A.op(f"s_setprio {pwprio}")
        A.op("v_and_b32 v0, 63, v0")
        A.op(f"s_mul_i32 s19, s7, {HALF}")
        A.op("s_add_u32 s20, s4, s19"); A.op("s_addc_u32 s21, s5, 0")
        A.op(f"s_mov_b32 s22, {HALF}"); A.op("s_mov_b32 s23, 0x20000")
        A.op(f"s_mul_i32 s19, s7, {128*128}"); A.op(f"s_add_u32 s19, s19, {OFF_CNT}")
        A.op("s_add_u32 s32, s4, s19"); A.op("s_addc_u32 s33, s5, 0")
        A.op(f"s_mov_b32 s34, {128*128}"); A.op("s_mov_b32 s35, 0x20000")
        A.op("s_lshr_b32 s9, s2, 3"); A.op("s_and_b32 s9, s9, 31"); A.op("s_lshl_b32 s9, s9, 7")
        A.op("v_lshlrev_b32 v2, 12, v0"); A.op("v_add_u32 v2, s9, v2")
        A.op("v_lshlrev_b32 v10, 7, v0")
        A.op("v_add_u32 v11, 64, v0"); A.op(f"v_min_u32 v11, {NR-1}, v11"); A.op("v_lshlrev_b32 v11, 7, v11")
        A.op("s_lshl_b32 s9, s8, 7"); A.op("v_mov_b32 v12, s9")
        A.op("s_mov_b32 s36, 0")
        A.label("pw_hop")
        for i in range(13 if pw == 1 else 0):
            A.op(f"v_add_u32 v3, {i*64*4096}, v2")
            A.op(f"buffer_load_dword v{20+i}, v3, s[20:23], 0 offen sc1")
            if pwsleep: A.op(f"s_sleep {pwsleep}")
        A.op("s_add_u32 s36, s36, 1")
        A.op(f"s_add_u32 s20, s20, {TAB}"); A.op("s_addc_u32 s21, s21, 0")
        A.op(f"s_cmp_ge_u32 s36, {nh}"); A.op("s_cbranch_scc1 hops_done")
        A.op("s_waitcnt vmcnt(0)")
        A.op("s_barrier")
        A.op("v_mov_b32 v13, s36")
        A.op("s_mov_b64 exec, 1")
        A.op("buffer_store_dword v13, v12, s[32:35], 0 offen sc0 sc1")
        A.op("s_mov_b64 exec, -1")
        A.op("s_mov_b32 s37, 0")
        A.label("pw_poll")
        A.op("buffer_load_dword v4, v10, s[32:35], 0 offen sc0 sc1")
        A.op("buffer_load_dword v5, v11, s[32:35], 0 offen sc0 sc1")
        A.op("s_add_u32 s37, s37, 1"); A.op("s_cmp_ge_u32 s37, 100000"); A.op("s_cbranch_scc1 pw_ok")
        A.op("s_waitcnt vmcnt(0)")
        A.op("v_min_u32 v4, v4, v5"); A.op("v_cmp_le_u32 s[38:39], s36, v4")
        A.op("s_nop 3")
        A.op("s_cmp_eq_u64 s[38:39], -1"); A.op("s_cbranch_scc1 pw_ok")
        if sleep: A.op(f"s_sleep {sleep}")
        A.op("s_branch pw_poll")
        A.label("pw_ok")
        A.op("s_waitcnt vmcnt(0)")
        A.op("s_barrier")
        A.op("s_branch pw_hop")
    if rtt:
        A.label("hop_rtt")
        A.op("s_setprio 3")
        srd(A, 80, 4, 4 << 20, 96 << 20)
        srd(A, 32, 4, CNT_BYTES, OFF_CNT)
        A.op("s_lshl_b32 s84, s2, 10")
        A.op("v_and_b32 v0, 63, v0"); A.op("v_lshlrev_b32 v2, 7, v0"); A.op("v_and_b32 v2, 0x3fff, v2")
        A.op("s_mov_b32 s36, 0")
        A.label("rtt_hop")
        for i in range(rtt):
            A.op("s_memrealtime s[64:65]"); A.op("s_waitcnt lgkmcnt(0)")
            A.op("buffer_load_dword v4, v2, s[32:35], 0 offen sc0 sc1")
            A.op("s_waitcnt vmcnt(0)")
            A.op("s_memrealtime s[66:67]"); A.op("s_waitcnt lgkmcnt(0)")
            A.op("s_sub_u32 s66, s66, s64")
            A.op("s_mov_b64 exec, 1")
            A.op("v_mov_b32 v6, s66"); A.op("v_mov_b32 v7, s64"); A.op("s_lshl_b32 s85, s36, 7"); A.op("s_add_u32 s85, s85, s84"); A.op(f"v_mov_b32 v5, {8*i}")
            A.op("buffer_store_dwordx2 v[6:7], v5, s[80:83], s85 offen")
            A.op("s_mov_b64 exec, -1")
            A.op("s_sleep 6")
        A.op("s_add_u32 s36, s36, 1")
        A.op(f"s_cmp_ge_u32 s36, {nh}"); A.op("s_cbranch_scc1 hops_done")
        A.op("s_barrier"); A.op("s_barrier")
        A.op("s_branch rtt_hop")
    A.label("hops_done")
    A.op("s_endpgm")
    A.label("hops_wprep")
    wl = prep.gen_wprep(A, 64 * NW, 250)
    return dict(name=name, grid=252, block=64 * NWB, lds=max(L_END, wl), vgpr=nv, sgpr=96 if (prof or pf or rtt or fn) else 80)
```

```python
from common import *
from sched import Op, schedule, finalize

L_WM = 0; L_WV = 32768; L_WC = 65536; L_X = 66560
NWV = 8
L_S = L_X + NWV * 8192
L_END = L_S + NWV * 256
NWG = 250; TPW = 25

V_WA = 2
V_XB = 3
V_TR = 4
V_DG = 8
V_DX = 9
V_RW = 10
V_RR = 11
V_AW = 12
V_AR = 13
V_SO = 14
V_WC = 15
V_OUT = 16
V_DO = 17
V_OT = 18
V_DN = 19
V_T0 = 20; V_T1 = 21
V_D = 22; V_C = 23; V_C2 = 24
V_TC = 25; V_TC2 = 26
V_L0 = 28; V_L1 = 29; V_L2 = 30; V_L3 = 31
V_A0 = 0; V_A1 = 1
X = 32
WB = 64; NWB = 5
RR = 84
DA = [100, 116]
S = 132
UOP = 148
VOP = 156
POP = 188
XT = 196
WCR = 228
V_RHO = 27
V_AW2 = 12; V_AR2 = 13
V_ST = 244
V_RL = 248
V_P = 252
V_S1 = 84 + 16 - 16

def gen_tf(A, reorder=True, prof=False, nwb=5, stagger=1, ro='dot', ost='', wreg=True, pace=0, pa=True, pk=False, cid=False, fn=False, nwg=256, coop=True, cpf=0):
    name = "tf_kernel"
    NWV = 4 if wreg else 8
    L_S = L_X + NWV * 8192
    SCR = 512 if fn else 256
    L_END = L_S + NWV * SCR
    if wreg: stagger = 0
    kernel_begin(A, name)
    A.op(f"s_cmp_ge_u32 s2, {nwg}"); A.op("s_cbranch_scc1 tf_done")
    A.op("s_load_dwordx2 s[4:5], s[0:1], 88")
    A.op("s_load_dwordx2 s[8:9], s[0:1], 0")
    A.op("s_load_dwordx2 s[10:11], s[0:1], 24")
    A.op("s_load_dwordx2 s[44:45], s[0:1], 72")
    if prof == 1: A.op("s_memrealtime s[70:71]")
    A.op("v_lshrrev_b32 v1, 6, v0"); A.op("s_nop 0")
    A.op("v_readfirstlane_b32 s6, v1")
    A.op("v_and_b32 v0, 63, v0")
    H, K, AA, T1, T2, T3 = 28, 29, 30, 31, 20, 21
    LANE = 0
    A.op(f"v_lshlrev_b32 v{V_WA}, 4, v0")
    if cpf:
        A.op("s_nop 2")
        code_prefetch(A, "tf_loop", "tf_done", cpf, 6, NWV, V_WA, DA[0], 76)
    A.op("s_waitcnt lgkmcnt(0)")
    srd(A, 12, 4, 8 * TAB, OFF_G)
    srd(A, 16, 8, TAB)
    srd(A, 20, 10, N * 2)
    srd(A, 24, 44, TAB)
    srd(A, 28, 4, 65536 + 512, OFF_WM)
    srd(A, 92, 4, 8 * ST_TOK, OFF_ST)
    if fn: srd(A, 72, 4, 8 * FN_TOK, OFF_FN)
    if prof == 1:
        srd(A, 80, 4, 4 << 20, 96 << 20)
        A.op("s_lshl_b32 s84, s2, 4"); A.op("s_add_u32 s84, s84, s6"); A.op("s_lshl_b32 s84, s84, 10")
        A.op("s_mov_b32 s85, 0")
    A.op(f"s_mul_i32 s3, s6, {65536 // NWV}")
    for i in range(64 // NWV):
        A.op(f"s_add_u32 s32, s3, {1024*i}"); A.op("s_mov_b32 m0, s32"); A.op("s_nop 0")
        A.op(f"buffer_load_dwordx4 v{V_WA}, s[28:31], s32 offen lds")
    A.op(f"v_lshrrev_b32 v{H}, 5, v0"); A.op(f"v_and_b32 v{K}, 7, v0"); A.op(f"v_bfe_u32 v{AA}, v0, 3, 2")
    A.op(f"s_mul_i32 s34, s6, 8192"); A.op(f"s_add_u32 s34, s34, {L_X}")
    A.op(f"v_and_b32 v{T1}, 15, v0"); A.op(f"v_xor_b32 v{T1}, v{T1}, v{H}"); A.op(f"v_lshlrev_b32 v{T1}, 4, v{T1}")
    A.op(f"v_lshl_add_u32 v{T1}, v{K}, 10, v{T1}"); A.op(f"v_lshl_add_u32 v{T1}, v{AA}, 8, v{T1}"); A.op(f"v_add_u32 v{V_XB}, s34, v{T1}")
    A.op(f"v_bfe_u32 v{T1}, v0, 2, 2"); A.op(f"v_lshl_add_u32 v{T1}, v{H}, 2, v{T1}")
    A.op(f"v_bfe_u32 v{T2}, v0, 4, 1"); A.op(f"v_lshlrev_b32 v{T2}, 1, v{T2}")
    A.op(f"v_and_b32 v{T3}, 1, v0"); A.op(f"v_or_b32 v{T2}, v{T2}, v{T3}"); A.op(f"v_xor_b32 v{T2}, v{T2}, v{T1}")
    A.op(f"v_lshlrev_b32 v{T2}, 4, v{T2}"); A.op(f"v_lshl_add_u32 v{T2}, v{T1}, 10, v{T2}")
    A.op(f"v_bfe_u32 v{T3}, v0, 1, 1"); A.op(f"v_lshl_add_u32 v{T2}, v{T3}, 3, v{T2}"); A.op(f"v_add_u32 v{T2}, s34, v{T2}")
    for q in range(4):
        A.op(f"v_xor_b32 v{V_TR+q}, {q << 6}, v{T2}")
    A.op(f"v_lshrrev_b32 v{T1}, 4, v0"); A.op(f"v_bfe_u32 v{T2}, v0, 3, 1"); A.op(f"v_and_b32 v{T3}, 1, v{T1}"); A.op(f"v_xor_b32 v{T2}, v{T2}, v{T3}")
    A.op(f"v_and_b32 v{T3}, 7, v0"); A.op(f"v_lshlrev_b32 v{T3}, 4, v{T3}")
    A.op(f"s_mov_b32 s35, {HALF}")
    A.op(f"v_lshl_add_u32 v{V_DG}, v{T1}, 7, v{T3}"); A.op(f"v_mad_u32_u24 v{V_DG}, v{T2}, s35, v{V_DG}")
    A.op(f"v_lshl_add_u32 v{V_DX}, v{T1}, 8, v{T3}"); A.op(f"v_lshl_add_u32 v{V_DX}, v{T2}, 7, v{V_DX}")
    A.op(f"s_mul_i32 s35, s6, {SCR}"); A.op(f"s_add_u32 s35, s35, {L_S}")
    A.op(f"v_and_b32 v{V_RW}, 31, v0"); A.op(f"v_lshlrev_b32 v{V_AW}, 1, v{V_RW}"); A.op(f"v_lshlrev_b32 v{V_RW}, 2, v{V_RW}")
    A.op(f"v_add_u32 v{V_RW}, s35, v{V_RW}"); A.op(f"v_add_u32 v{V_AW}, s35, v{V_AW}")
    A.op(f"v_lshlrev_b32 v{V_RR}, 3, v{AA}"); A.op(f"v_lshl_add_u32 v{V_RR}, v{H}, 2, v{V_RR}")
    A.op(f"v_lshlrev_b32 v{V_AR}, 1, v{V_RR}"); A.op(f"v_add_u32 v{V_AR}, s35, v{V_AR}")
    A.op(f"v_lshlrev_b32 v{V_RR}, 2, v{V_RR}"); A.op(f"v_add_u32 v{V_RR}, s35, v{V_RR}")
    if ro != 'mfma':
        A.op(f"v_lshrrev_b32 v{V_AW2}, 2, v{K}"); A.op(f"v_lshlrev_b32 v{V_AW2}, 4, v{V_AW2}"); A.op(f"v_lshl_add_u32 v{V_AW2}, v{AA}, 2, v{V_AW2}")
        A.op(f"v_and_b32 v{T1}, 3, v{K}"); A.op(f"v_add_u32 v{V_AW2}, v{V_AW2}, v{T1}"); A.op(f"v_lshlrev_b32 v{V_AW2}, 1, v{V_AW2}"); A.op(f"v_add_u32 v{V_AW2}, s35, v{V_AW2}")
        A.op(f"v_lshlrev_b32 v{V_AR2}, 5, v{H}"); A.op(f"v_add_u32 v{V_AR2}, s35, v{V_AR2}")
    A.op(f"s_mov_b32 s35, {ST_TOK}"); A.op(f"v_lshlrev_b32 v{V_SO}, 4, v{AA}"); A.op(f"v_mad_u32_u24 v{V_SO}, v{K}, s35, v{V_SO}")
    if fn:
        A.op(f"s_mov_b32 s35, {FN_TOK}"); A.op(f"v_lshlrev_b32 v71, 5, v{AA}"); A.op(f"v_mul_lo_u32 v{T1}, v{K}, s35"); A.op(f"v_add_u32 v71, v71, v{T1}")
    A.op(f"v_lshlrev_b32 v{V_WC}, 8, v{H}"); A.op(f"v_add_u32 v{V_WC}, {L_WC}, v{V_WC}")
    A.op(f"v_and_b32 v{T1}, 31, v0")
    A.op(f"v_and_b32 v{V_OUT}, 0x13, v{T1}"); A.op(f"v_and_b32 v{T2}, 4, v{T1}"); A.op(f"v_lshl_or_b32 v{V_OUT}, v{T2}, 1, v{V_OUT}")
    A.op(f"v_and_b32 v{T2}, 8, v{T1}"); A.op(f"v_lshrrev_b32 v{T2}, 1, v{T2}"); A.op(f"v_or_b32 v{V_OUT}, v{V_OUT}, v{T2}")
    A.op(f"v_lshlrev_b32 v{V_OUT}, 1, v{V_OUT}"); A.op(f"v_lshl_add_u32 v{V_OUT}, v{H}, 9, v{V_OUT}")
    A.op(f"v_lshlrev_b32 v{V_DO}, 1, v{AA}")
    A.op(f"v_mov_b32 v{V_OT}, 0x7fffffff")
    def m64(s, val):
        A.op(f"s_mov_b32 s{s}, {val & 0xffffffff:#x}"); A.op(f"s_mov_b32 s{s+1}, {val >> 32:#x}")
    m64(46, 0x0000FF000000FF00); m64(48, 0x00FF000000FF0000); m64(50, 0xFF000000FF000000); m64(52, 0x000000FF000000FF)
    m64(54, 0x0101010101010101)
    RM = [64, 66, 68, 90]
    for a, s in enumerate(RM):
        m = 8 * a + (0 if a < 2 else 4)
        m64(s, (1 << m) | (1 << (m + 32)))
    A.op("s_mov_b32 s57, 0x3727c5ac"); A.op("s_mov_b32 s58, 0x3c000000")
    A.op("s_mov_b32 s59, 0x3fb8aa3b"); A.op("s_mov_b32 s60, 0xffff0000")
    if nwg == 250:
        A.op(f"s_mul_i32 s37, s2, {TPW}")
        A.op(f"s_add_u32 s61, s37, {TPW-1}")
    else:
        assert nwg == 256
        A.op("s_mul_i32 s37, s2, 6250"); A.op("s_add_u32 s61, s37, 6250")
        A.op("s_lshr_b32 s37, s37, 8"); A.op("s_lshr_b32 s61, s61, 8"); A.op("s_sub_u32 s61, s61, 1")
    A.op("s_add_u32 s36, s37, s6")
    if coop: A.op("s_add_u32 s56, s37, 23")
    if pa:
        assert wreg
        for k in range(1, 8):
            A.op(f"v_xor_b32 v{63+k}, {k << 4}, v{V_DG}")
            A.op(f"v_add_u32 v{63+k}, {k*TAB - 1024*(k & 3)}, v{63+k}")
        if not cid:
            for kk in range(8):
                A.op(f"v_xor_b32 v{72+kk}, {(2*kk) << 4}, v{V_XB}")
        else:
            A.op(f"v_and_b32 v{T1}, 31, v{LANE}")
            A.op(f"v_and_b32 v{T2}, 3, v{T1}"); A.op(f"v_bfe_u32 v{T3}, v{T1}, 2, 1"); A.op(f"v_lshl_add_u32 v{T2}, v{T3}, 3, v{T2}")
            A.op(f"v_bfe_u32 v{T3}, v{T1}, 3, 1"); A.op(f"v_lshl_add_u32 v{T2}, v{T3}, 2, v{T2}")
            A.op(f"v_lshrrev_b32 v{T3}, 5, v{LANE}"); A.op(f"v_lshlrev_b32 v{T3}, 3, v{T3}"); A.op(f"v_sub_u32 v{T2}, v{T2}, v{T3}")
            A.op(f"v_lshrrev_b32 v{T1}, 4, v{T1}")
            for sidx in range(2):
                for q in range(4):
                    r = 72 + 4 * sidx + q
                    A.op(f"v_mov_b32 v{r}, 0")
                    A.op(f"v_cmp_eq_u32 vcc, {2*q}, v{T2}"); A.op("s_nop 1"); A.op(f"v_mov_b32 v80, 0x3f80"); A.op(f"v_cndmask_b32_e64 v{r}, v{r}, v80, vcc")
                    A.op(f"v_cmp_eq_u32 vcc, {2*q+1}, v{T2}"); A.op("s_nop 1"); A.op(f"v_mov_b32 v80, 0x3f800000"); A.op(f"v_cndmask_b32_e64 v{r}, v{r}, v80, vcc")
                    A.op(f"v_cmp_eq_u32 vcc, {sidx}, v{T1}"); A.op("s_nop 1"); A.op(f"v_cndmask_b32_e64 v{r}, 0, v{r}, vcc")
        A.op("s_add_u32 s98, s34, 4096")
    def dma_ops(emit, tile_sreg):
        if pa:
            emit(f"s_lshl_b32 s39, s{tile_sreg}, 9"); emit(f"s_lshl_b32 s40, s{tile_sreg}, 10"); emit(f"s_lshl_b32 s43, s{tile_sreg}, 3")
            emit(f"s_lshl_b32 s33, s{tile_sreg}, 6")
            emit(f"buffer_load_dwordx4 v[{V_ST}:{V_ST+3}], v{V_SO}, s[92:95], s33 offen", [], ["M_vm"])
            emit(f"buffer_load_ushort v{V_DN}, v{V_DO}, s[20:23], s43 offen", [], ["M_vm"])
            if fn:
                emit(f"s_lshl_b32 s32, s{tile_sreg}, 7")
                emit(f"buffer_load_dwordx4 v[{WCR}:{WCR+3}], v71, s[72:75], s32 offen", [], ["M_vm"])
                emit(f"buffer_load_dwordx4 v[{WCR+4}:{WCR+7}], v71, s[72:75], s32 offen offset:16", [], ["M_vm"])
            emit("s_mov_b32 m0, s34")
            emit(f"buffer_load_dwordx4 v{V_DX}, s[16:19], s40 offen lds", ["M_xrd"], ["M_vm"])
            for k in range(1, 8):
                if k == 4: emit("s_mov_b32 m0, s98")
                off = f" offset:{1024*(k & 3)}" if (k & 3) else ""
                emit(f"buffer_load_dwordx4 v{63+k}, s[12:15], s39 offen{off} lds", ["M_xrd"], ["M_vm"])
            return
        dma_ops0(emit, tile_sreg)
    def dma_ops0(emit, tile_sreg):
        emit(f"s_lshl_b32 s39, s{tile_sreg}, 9"); emit(f"s_lshl_b32 s40, s{tile_sreg}, 10"); emit(f"s_lshl_b32 s43, s{tile_sreg}, 3")
        emit(f"s_lshl_b32 s33, s{tile_sreg}, 6")
        emit(f"buffer_load_dwordx4 v[{V_ST}:{V_ST+3}], v{V_SO}, s[92:95], s33 offen", [], ["M_vm"])
        emit(f"buffer_load_ushort v{V_DN}, v{V_DO}, s[20:23], s43 offen", [], ["M_vm"])
        emit("s_mov_b32 m0, s34")
        emit(f"buffer_load_dwordx4 v{V_DX}, s[16:19], s40 offen lds", ["M_xrd"], ["M_vm"])
        for k in range(1, 8):
            t = V_T0 if k & 1 else V_T1
            emit(f"v_xor_b32 v{t}, {k << 4}, v{V_DG}")
            emit(f"s_add_u32 s41, s34, {1024*k}"); emit("s_mov_b32 m0, s41")
            emit(f"s_add_u32 s41, s39, {k*TAB}")
            emit(f"buffer_load_dwordx4 v{t}, s[12:15], s41 offen lds", ["M_xrd"], ["M_vm"])
    def emit_plain(t, memr=(), memw=()):
        if t.startswith("buffer_load") and "lds" in t: A.op("s_nop 0")
        A.op(t)
    A.op("s_cmp_eq_u32 s6, 0"); l = A.new("wc"); A.op(f"s_cbranch_scc0 {l}")
    A.op("s_mov_b32 s33, 65536")
    A.op(f"buffer_load_dwordx4 v[{X}:{X+3}], v{V_WA}, s[28:31], s33 offen")
    A.op("s_waitcnt vmcnt(0)")
    A.op(f"v_add_u32 v{T1}, {L_WC}, v{V_WA}"); A.op(f"ds_write_b128 v{T1}, v[{X}:{X+3}]")
    A.label(l)
    if stagger:
        A.op("s_cmp_ge_u32 s6, 4"); A.op("s_cbranch_scc1 tf_late")
    dma_ops(emit_plain, 36)
    A.op(f"s_waitcnt vmcnt({12 if fn else 10}) lgkmcnt(0)")
    A.op("s_barrier")
    if stagger:
        A.op("s_branch tf_go")
        A.label("tf_late")
        A.op("s_waitcnt vmcnt(0) lgkmcnt(0)")
        A.op("s_barrier")
        dma_ops(emit_plain, 36)
        A.label("tf_go")

    if wreg:
        A.cmt("weights LDS -> AGPRs (kept for the whole kernel)")
        for i in range(64):
            A.op(f"ds_read_b128 a[{4*i}:{4*i+3}], v{V_WA} offset:{1024*i}")
            if i % 8 == 7: A.op("s_waitcnt lgkmcnt(4)")
        A.op("s_waitcnt lgkmcnt(0)")
    S1, S2, S3 = V_L2, V_L3, V_L1

    def xhalf(o, r, t, op="add"):
        o(f"v_mov_b32 v{t}, v{r}"); o(f"v_permlane32_swap_b32 v{r}, v{t}"); o(f"v_{op}_f32 v{r}, v{r}, v{t}")

    def tail_ops(o, Ts=range(4)):
        a0, a1 = V_A0, V_A1
        for r in ((S2,) if fn else (S1, S2, S3)): xhalf(o, r, a0)
        if not fn: o(f"v_mul_f32 v{S1}, s58, v{S1}")
        o(f"v_mul_f32 v{S2}, s58, v{S2}")
        o(f"v_fma_f32 v{S2}, -v{S1}, v{S1}, v{S2}"); o(f"v_max_f32 v{S2}, 0, v{S2}")
        o(f"v_mov_b32 v{a0}, s57"); o(f"v_fma_f32 v{S2}, v{S2}, v{V_TC2}, v{a0}"); o(f"v_rsq_f32 v{S2}, v{S2}")
        o(f"v_mul_f32 v{S3}, v{S3}, v{S2}"); o(f"v_mul_f32 v{S3}, v{S3}, v{V_TC}"); o(f"v_mul_f32 v{S3}, s59, v{S3}")
        def red8(r, op):
            o(f"v_{op}_f32_dpp v{r}, v{r}, v{r} quad_perm:[1,0,3,2] row_mask:0xf bank_mask:0xf")
            o(f"v_{op}_f32_dpp v{r}, v{r}, v{r} quad_perm:[2,3,0,1] row_mask:0xf bank_mask:0xf")
            o(f"v_{op}_f32_dpp v{r}, v{r}, v{r} row_half_mirror row_mask:0xf bank_mask:0xf")
        o(f"v_mov_b32 v{a0}, v{S3}"); red8(a0, "max")
        o(f"v_sub_f32 v{S3}, v{S3}, v{a0}"); o(f"v_exp_f32 v{S3}, v{S3}")
        o(f"v_mov_b32 v{a0}, v{S3}"); red8(a0, "add")
        o(f"v_rcp_f32 v{a0}, v{a0}"); o(f"v_mul_f32 v{S3}, v{S3}, v{a0}"); o(f"v_mul_f32 v{S3}, v{S3}, v{V_TC}")
        if ro == 'mfma':
            o(f"v_cvt_pk_bf16_f32 v{a0}, v{S3}, v{S3}")
            o(f"ds_write_b16 v{V_AW}, v{a0} offset:128", memw=["M_a"])
            o(f"ds_read_b64 v[{a0}:{a1}], v{V_AR} offset:128", memr=["M_a"])
            for i in range(4):
                o(f"v_mul_f32 v{V_P+i}, v{V_P+i}, v{S3}"); red8(V_P + i, "add")
            o(f"v_cvt_pk_bf16_f32 v{S1}, v{V_P}, v{V_P+1}"); o(f"v_cvt_pk_bf16_f32 v{S2}, v{V_P+2}, v{V_P+3}")
            BO = WCR; AO = WCR + 8
            for a in range(4):
                m = RM[a]
                o(f"v_cndmask_b32_e64 v{BO+2*a}, 0, v{S1}, s[{m}:{m+1}]"); o(f"v_cndmask_b32_e64 v{BO+2*a+1}, 0, v{S2}, s[{m}:{m+1}]")
                o(f"v_cndmask_b32_e64 v{AO+2*a}, 0, v{a0}, s[{m}:{m+1}]"); o(f"v_cndmask_b32_e64 v{AO+2*a+1}, 0, v{a1}, s[{m}:{m+1}]")
            for T in range(4):
                D = RR
                for s in range(2):
                    c = "0" if s == 0 else f"v[{D}:{D+15}]"
                    o(f"v_mfma_f32_32x32x16_bf16 v[{D}:{D+15}], v[{AO+4*s}:{AO+4*s+3}], v[{XT+8*T+4*s}:{XT+8*T+4*s+3}], {c}")
                for s in range(2):
                    o(f"v_mfma_f32_32x32x16_bf16 v[{D}:{D+15}], v[{BO+4*s}:{BO+4*s+3}], v[{VOP+8*T+4*s}:{VOP+8*T+4*s+3}], v[{D}:{D+15}]")
                for a in range(2):
                    t = V_P + 2 * (T & 1) + a
                    o(f"v_add_f32 v{t}, v{D+4*a}, v{D+4*a+8}")
                    o(f"v_cvt_pk_bf16_f32 v{t}, v{t}, v{t}")
                    o(f"buffer_store_short v{t}, v{V_OT}, s[24:27], s42 offen offset:{a*256 + T*64}{ost}", memw=["M_vm"])
        else:
            o(f"v_cvt_pk_bf16_f32 v{a0}, v{S3}, v{S3}")
            o(f"ds_write_b16 v{V_AW2}, v{a0} offset:192", memw=["M_a"])
            for i in range(4):
                o(f"v_mul_f32 v{V_P+i}, v{V_P+i}, v{S3}"); red8(V_P + i, "add")
            o(f"v_cvt_pk_bf16_f32 v{a0}, v{V_P}, v{V_P+1}"); o(f"v_cvt_pk_bf16_f32 v{a1}, v{V_P+2}, v{V_P+3}")
            o(f"v_lshl_add_u32 v{S1}, v{V_DO}, 2, v{V_AR2}")
            o(f"ds_write_b64 v{S1}, v[{a0}:{a1}] offset:128", memw=["M_b"])
            BP = WCR; AP = WCR + 8
            o(f"ds_read_b128 v[{BP}:{BP+3}], v{V_AR2} offset:128", memr=["M_b"]); o(f"ds_read_b128 v[{BP+4}:{BP+7}], v{V_AR2} offset:144", memr=["M_b"])
            o(f"ds_read_b128 v[{AP}:{AP+3}], v{V_AR2} offset:192", memr=["M_a"]); o(f"ds_read_b128 v[{AP+4}:{AP+7}], v{V_AR2} offset:208", memr=["M_a"])
            for T in Ts:
                for a in range(4):
                    r = RR + 4 * T + a; xt = XT + (T * 4 + a) * 2
                    if pa:
                        o(f"v_dot2_f32_bf16 v{r}, v{xt}, v{AP+2*a}, 0")
                    else:
                        o(f"v_mov_b32 v{r}, 0")
                        o(f"v_dot2c_f32_bf16 v{r}, v{xt}, v{AP+2*a}")
                    o(f"v_dot2c_f32_bf16 v{r}, v{xt+1}, v{AP+2*a+1}")
                    o(f"v_dot2c_f32_bf16 v{r}, v{VOP+8*T+2*a}, v{BP+2*a}")
                    o(f"v_dot2c_f32_bf16 v{r}, v{VOP+8*T+2*a+1}, v{BP+2*a+1}")
            for T in Ts:
                for a in range(2):
                    r0 = RR + 4 * T + a; r1 = r0 + 2
                    o(f"v_permlane32_swap_b32 v{r0}, v{r1}")
                    o(f"v_add_f32 v{r0}, v{r0}, v{r1}")
                    o(f"v_cvt_pk_bf16_f32 v{r0}, v{r0}, v{r0}")
                    o(f"buffer_store_short v{r0}, v{V_OT}, s[24:27], s42 offen offset:{a*256 + T*64}{ost}", memw=["M_vm"])

    def pre_ops(o):
        if fn:
            o(f"v_add_f32 v80, v{WCR}, v{WCR+4}"); o(f"v_add_f32 v81, v{WCR+1}, v{WCR+5}"); o(f"v_add_f32 v82, v{WCR+2}, v{WCR+6}")
            o(f"ds_write_b32 v{V_RW}, v81 offset:256", memw=["M_f1"]); o(f"ds_write_b32 v{V_RW}, v82 offset:384", memw=["M_f2"])
    def head_ops(o):
        for kk in range(8):
            if pa and not cid:
                o(f"ds_read_b128 v[{X+4*kk}:{X+4*kk+3}], v{72+kk}")
                continue
            t = V_T0 if kk & 1 else V_T1
            o(f"v_xor_b32 v{t}, {(2*kk) << 4}, v{V_XB}")
            o(f"ds_read_b128 v[{X+4*kk}:{X+4*kk+3}], v{t}")
        l0, l1 = V_RHO, V_D
        o(f"v_add_f32 v{V_ST}, v{V_ST}, v{V_ST+2}"); o(f"v_add_f32 v{V_ST+1}, v{V_ST+1}, v{V_ST+3}")
        o(f"v_mul_f32 v{V_ST}, s58, v{V_ST}"); o(f"v_mul_f32 v{V_ST+1}, s58, v{V_ST+1}")
        if fn:
            o(f"v_mov_b32 v83, v{V_ST}")
        o(f"v_fma_f32 v{V_ST+1}, -v{V_ST}, v{V_ST}, v{V_ST+1}"); o(f"v_max_f32 v{V_ST+1}, 0, v{V_ST+1}")
        o(f"v_lshlrev_b32 v{V_D}, 16, v{V_DN}")
        o(f"v_cndmask_b32_e64 v{V_D}, v{V_D}, 1.0, s[54:55]")
        o(f"v_cmp_eq_f32_e64 s[62:63], 0, v{V_D}")
        o(f"v_cndmask_b32_e64 v{V_D}, v{V_D}, 1.0, s[62:63]")
        o(f"v_rcp_f32 v{V_C}, v{V_D}"); o(f"v_mul_f32 v{V_C2}, v{V_C}, v{V_C}")
        o(f"v_mov_b32 v{V_ST}, s57"); o(f"v_fma_f32 v{V_ST+1}, v{V_ST+1}, v{V_C2}, v{V_ST}")
        o(f"v_rsq_f32 v{V_ST+1}, v{V_ST+1}"); o(f"v_mul_f32 v{V_RHO}, v{V_ST+1}, v{V_C}")
        o(f"ds_write_b32 v{V_RW}, v{V_RHO}", memw=["M_rho"])
        o(f"ds_read_b128 v[{V_RL}:{V_RL+3}], v{V_RR}", memr=["M_rho"])
        wb = [0]
        def wload(off):
            if wreg:
                i = off // 1024
                return f"a[{4*i}:{4*i+3}]"
            b = WB + 4 * (wb[0] % nwb); wb[0] += 1
            o(f"ds_read_b128 v[{b}:{b+3}], v{V_WA} offset:{off}")
            return f"v[{b}:{b+3}]"
        for T in range(4):
            D = DA[T & 1]
            for kk in range(8):
                b = wload(L_WM + (T * 8 + kk) * 1024)
                c = "0" if kk == 0 else f"v[{D}:{D+15}]"
                o(f"v_mfma_f32_32x32x16_bf16 v[{D}:{D+15}], {b}, v[{X+4*kk}:{X+4*kk+3}], {c}")
            for j in range(8):
                o(f"v_cvt_pk_bf16_f32 v{UOP+j}, v{D+2*j}, v{D+2*j+1}")
            for half in range(2):
                c = "0" if (T == 0 and half == 0) else f"v[{S}:{S+15}]"
                xa = X + 4 * (2 * T + half)
                o(f"v_mfma_f32_32x32x16_bf16 v[{S}:{S+15}], v[{xa}:{xa+3}], v[{UOP+4*half}:{UOP+4*half+3}], {c}")
        for T in range(4):
            for a in range(4):
                r = XT + (T * 4 + a) * 2
                o(f"ds_read_b64_tr_b16 v[{r}:{r+1}], v{V_TR + (T ^ (2*(a&1)))} offset:{a*256}")
        rd = [f"v{X+4*kk}" for kk in range(8)] + [f"v{XT+2*q}" for q in range(16)]
        o(f"s_add_u32 s36, s36, {NWV}"); o("s_min_u32 s38, s36, s61")
        first = [True]
        def emit(t, memr=(), memw=()):
            if "lds" in t and t.startswith("buffer_load") and first[0]:
                first[0] = False
                o(t, memr=rd, memw=memw)
            else:
                o(t, memr=[], memw=memw)
        dma_ops(emit, 38)
        P = V_P
        for i in range(4):
            o(f"v_cndmask_b32_e64 v{P+i}, v{S+i}, v{S+4+i}, s[46:47]")
            o(f"v_cndmask_b32_e64 v{P+i}, v{P+i}, v{S+8+i}, s[48:49]")
            o(f"v_cndmask_b32_e64 v{P+i}, v{P+i}, v{S+12+i}, s[50:51]")
            o(f"v_mul_f32 v{P+i}, v{P+i}, v{V_RL+i}"); o(f"v_mul_f32 v{P+i}, v{P+i}, v{V_RHO}")
        m0, m1 = V_L0, V_T0
        o(f"v_max_f32 v{m0}, v{P}, v{P+1}"); o(f"v_max3_f32 v{m0}, v{m0}, v{P+2}, v{P+3}")
        xhalf(o, m0, m1, "max")
        for i in range(4):
            o(f"v_sub_f32 v{P+i}, v{P+i}, v{m0}"); o(f"v_exp_f32 v{P+i}, v{P+i}")
        o(f"v_add_f32 v{m0}, v{P}, v{P+1}"); o(f"v_add_f32 v{m1}, v{P+2}, v{P+3}"); o(f"v_add_f32 v{m0}, v{m0}, v{m1}")
        xhalf(o, m0, m1)
        o(f"v_rcp_f32 v{m0}, v{m0}"); o(f"v_mul_f32 v{m0}, v{m0}, v{V_D}")
        for i in range(4):
            o(f"v_mul_f32 v{P+i}, v{P+i}, v{V_RL+i}"); o(f"v_mul_f32 v{P+i}, v{P+i}, v{m0}")
        o(f"v_cvt_pk_bf16_f32 v{m0}, v{P}, v{P+1}"); o(f"v_cvt_pk_bf16_f32 v{m1}, v{P+2}, v{P+3}")
        for a, m in enumerate((52, 46, 48, 50)):
            o(f"v_cndmask_b32_e64 v{POP+2*a}, 0, v{m0}, s[{m}:{m+1}]")
            o(f"v_cndmask_b32_e64 v{POP+2*a+1}, 0, v{m1}, s[{m}:{m+1}]")
        if fn:
            o(f"ds_read_b128 v[{UOP}:{UOP+3}], v{V_RR} offset:256", memr=["M_f1"]); o(f"ds_read_b128 v[{UOP+4}:{UOP+7}], v{V_RR} offset:384", memr=["M_f2"])
            o(f"v_mul_f32 v81, v{P}, v{UOP}"); o(f"v_mul_f32 v82, v{P}, v{UOP+4}")
            for i in range(1, 4):
                o(f"v_fmac_f32 v81, v{P+i}, v{UOP+i}"); o(f"v_fmac_f32 v82, v{P+i}, v{UOP+4+i}")
            xhalf(o, 81, V_T0); xhalf(o, 82, V_T1)
            o(f"v_fma_f32 v{S1}, v81, s58, v83"); o(f"v_add_f32 v{S3}, v80, v82")
        PK3 = 20
        if pk:
            assert pa
            for r in (80, 81, 82, 83, PK3, PK3 + 1): o(f"v_mov_b32 v{r}, 0")
        elif fn:
            o(f"v_mov_b32 v{S2}, 0")
        else:
            o(f"v_mov_b32 v{S1}, 0"); o(f"v_mov_b32 v{S2}, 0"); o(f"v_mov_b32 v{S3}, 0")
        def gemm2(T):
            D = DA[T & 1]
            for kk in range(8):
                b = wload(L_WV + (T * 8 + kk) * 1024)
                c = "0" if kk == 0 else f"v[{D}:{D+15}]"
                dep = [f"M_o{T-1}"] if (pace and kk == 0 and T >= 1) else []
                o(f"v_mfma_f32_32x32x16_bf16 v[{D}:{D+15}], v[{X+4*kk}:{X+4*kk+3}], {b}, {c}", memr=dep)
            for j in range(8):
                o(f"v_cvt_pk_bf16_f32 v{VOP+8*T+j}, v{D+2*j}, v{D+2*j+1}")
        def otile(T):
            D = RR if (T & 1) else S
            if cid:
                for half in range(2):
                    xa = X + 4 * (2 * T + half)
                    c = "0" if half == 0 else f"v[{D}:{D+15}]"
                    o(f"v_mfma_f32_32x32x16_bf16 v[{D}:{D+15}], v[{72+4*half}:{72+4*half+3}], v[{xa}:{xa+3}], {c}")
            else:
              for half in range(2):
                for j in range(4):
                    x = X + 4 * (2 * T + half) + j
                    o(f"v_lshlrev_b32 v{D+8*half+2*j}, 16, v{x}")
                    o(f"v_and_b32 v{D+8*half+2*j+1}, s60, v{x}")
            for half in range(2):
                o(f"v_mfma_f32_32x32x16_bf16 v[{D}:{D+15}], v[{VOP+8*T+4*half}:{VOP+8*T+4*half+3}], v[{POP+4*half}:{POP+4*half+3}], v[{D}:{D+15}]", memw=([f"M_o{T}"] if half == 1 else []))
            if fn:
                for r in range(16):
                    o(f"v_fmac_f32 v{S2}, v{D+r}, v{D+r}")
                return
            for q in range(4):
                o(f"ds_read_b128 v[{WCR+4*q}:{WCR+4*q+3}], v{V_WC} offset:{T*64 + q*16}")
            if pk:
                for r in range(0, 16, 2):
                    o(f"v_pk_add_f32 v[80:81], v[80:81], v[{D+r}:{D+r+1}]")
                    o(f"v_pk_fma_f32 v[82:83], v[{D+r}:{D+r+1}], v[{D+r}:{D+r+1}], v[82:83]")
                    o(f"v_pk_fma_f32 v[64+16:64+17], v[{D+r}:{D+r+1}], v[{WCR+r}:{WCR+r+1}], v[64+16:64+17]".replace("v[64+16:64+17]", "v[0:1]") if False else f"v_pk_fma_f32 v[{PK3}:{PK3+1}], v[{D+r}:{D+r+1}], v[{WCR+r}:{WCR+r+1}], v[{PK3}:{PK3+1}]")
            else:
              for r in range(16):
                o(f"v_add_f32 v{S1}, v{S1}, v{D+r}")
                o(f"v_fmac_f32 v{S2}, v{D+r}, v{D+r}")
                o(f"v_fmac_f32 v{S3}, v{D+r}, v{WCR+r}")
        if pace:
            gemm2(0); otile(0); gemm2(1); otile(1); gemm2(2); otile(2); gemm2(3); otile(3)
        else:
            gemm2(0); gemm2(1); otile(0); gemm2(2); otile(1); gemm2(3); otile(2); otile(3)
        if pk:
            o(f"v_add_f32 v{S1}, v80, v81"); o(f"v_add_f32 v{S2}, v82, v83"); o(f"v_add_f32 v{S3}, v{PK3}, v{PK3+1}")
        o(f"v_mov_b32 v{V_TC}, v{V_C}"); o(f"v_mov_b32 v{V_TC2}, v{V_C2}")
        o(f"v_mov_b32 v{V_OT}, v{V_OUT}")
        o(f"s_sub_u32 s42, s36, {NWV}"); o("s_lshl_b32 s42, s42, 10")

    def region(fns):
        ops = []
        def o(t, memr=(), memw=()): ops.append(Op(t, memr, memw))
        for f in fns: f(o)
        seq = schedule(ops, reorder)
        lines, pd, pv = finalize(seq)
        idx = [i for i, q in enumerate(seq) if q.kind == "vmem"]
        loads = [i for i in idx if seq[i].name.startswith("buffer_load")]
        after = len([i for i in idx if loads and i > loads[-1]])
        return lines, after

    body, after = region([pre_ops, tail_ops, head_ops])
    A.op("s_mov_b32 s42, 0")
    A.label("tf_loop")
    if prof == 1: A.op("s_memrealtime s[72:73]")
    A.op(f"s_waitcnt vmcnt({after + (5 if prof == 1 else (10 if prof == 2 else 0))})")
    if prof == 1: A.op("s_memrealtime s[74:75]")
    if prof == 2:
        step = len(body) // 9
        for i, l in enumerate(body):
            if i % step == 0 and i // step < 10: A.op(f"s_memtime s[{70+2*(i//step)}:{71+2*(i//step)}]")
            A(l)
        A.op("s_waitcnt lgkmcnt(0)")
        A.op("s_add_u32 s86, s84, s85") if False else None
        A.op("s_lshl_b32 s32, s2, 4"); A.op("s_add_u32 s32, s32, s6"); A.op("s_lshl_b32 s32, s32, 10")
        A.op("s_sub_u32 s33, s36, s37"); A.op(f"s_lshr_b32 s33, s33, {2 if wreg else 3}"); A.op("s_lshl_b32 s33, s33, 7"); A.op("s_add_u32 s32, s32, s33")
        srd(A, 96, 4, 4 << 20, 96 << 20)
        A.op("s_mov_b64 exec, 1")
        for qi in range(10):
            A.op(f"v_mov_b32 v{V_T0}, s{70+2*qi}"); A.op(f"v_mov_b32 v{V_T1}, s{71+2*qi}"); A.op(f"v_mov_b32 v{V_L0}, {8*qi}")
            A.op(f"buffer_store_dwordx2 v[{V_T0}:{V_T1}], v{V_L0}, s[96:99], s32 offen"); A.op("s_nop 1")
        A.op("s_mov_b64 exec, -1")
    else:
        for l in body: A(l)
    if prof == 1:
        A.op("s_memrealtime s[78:79]")
        A.op("s_waitcnt lgkmcnt(0)")
        A.op("s_add_u32 s86, s84, s85"); A.op("s_add_u32 s85, s85, 64")
        A.op("s_mov_b64 exec, 1")
        for qi, sr in enumerate((70, 72, 74, 74, 78)):
            A.op(f"v_mov_b32 v{V_T0}, s{sr}"); A.op(f"v_mov_b32 v{V_T1}, s{sr+1}"); A.op(f"v_mov_b32 v{V_L0}, {8*qi}")
            A.op(f"buffer_store_dwordx2 v[{V_T0}:{V_T1}], v{V_L0}, s[80:83], s86 offen"); A.op("s_nop 1")
        A.op("s_mov_b64 exec, -1")
    A.op("s_waitcnt lgkmcnt(0)")
    A.op(f"s_cmp_le_u32 s36, s{56 if coop else 61}"); A.op("s_cbranch_scc1 tf_loop")
    if coop:
        EX1, EX2 = 0, 4096
        def coop1(o, w):
            for kk in range(8):
                o(f"ds_read_b128 v[{X+4*kk}:{X+4*kk+3}], v{72+kk}")
            o(f"v_add_f32 v{V_ST}, v{V_ST}, v{V_ST+2}"); o(f"v_add_f32 v{V_ST+1}, v{V_ST+1}, v{V_ST+3}")
            o(f"v_mul_f32 v{V_ST}, s58, v{V_ST}"); o(f"v_mul_f32 v{V_ST+1}, s58, v{V_ST+1}")
            o(f"v_fma_f32 v{V_ST+1}, -v{V_ST}, v{V_ST}, v{V_ST+1}"); o(f"v_max_f32 v{V_ST+1}, 0, v{V_ST+1}")
            o(f"v_lshlrev_b32 v{V_D}, 16, v{V_DN}")
            o(f"v_cndmask_b32_e64 v{V_D}, v{V_D}, 1.0, s[54:55]")
            o(f"v_cmp_eq_f32_e64 s[62:63], 0, v{V_D}")
            o(f"v_cndmask_b32_e64 v{V_D}, v{V_D}, 1.0, s[62:63]")
            o(f"v_rcp_f32 v{V_C}, v{V_D}"); o(f"v_mul_f32 v{V_C2}, v{V_C}, v{V_C}")
            o(f"v_mov_b32 v{V_ST}, s57"); o(f"v_fma_f32 v{V_ST+1}, v{V_ST+1}, v{V_C2}, v{V_ST}")
            o(f"v_rsq_f32 v{V_ST+1}, v{V_ST+1}"); o(f"v_mul_f32 v{V_RHO}, v{V_ST+1}, v{V_C}")
            o(f"ds_write_b32 v{V_RW}, v{V_RHO}", memw=["M_rho"])
            o(f"ds_read_b128 v[{V_RL}:{V_RL+3}], v{V_RR}", memr=["M_rho"])
            D = DA[0]
            for kk in range(8):
                i = w * 8 + kk
                o(f"v_mfma_f32_32x32x16_bf16 v[{D}:{D+15}], a[{4*i}:{4*i+3}], v[{X+4*kk}:{X+4*kk+3}], " + ("0" if kk == 0 else f"v[{D}:{D+15}]"))
            for j in range(8):
                o(f"v_cvt_pk_bf16_f32 v{UOP+j}, v{D+2*j}, v{D+2*j+1}")
            for half in range(2):
                xa = X + 4 * (2 * w + half)
                o(f"v_mfma_f32_32x32x16_bf16 v[{S}:{S+15}], v[{xa}:{xa+3}], v[{UOP+4*half}:{UOP+4*half+3}], " + ("0" if half == 0 else f"v[{S}:{S+15}]"))
            Q = UOP
            for i in range(4):
                o(f"v_cndmask_b32_e64 v{Q+4+i}, v{S+i}, v{S+4+i}, s[46:47]")
                o(f"v_cndmask_b32_e64 v{Q+4+i}, v{Q+4+i}, v{S+8+i}, s[48:49]")
                o(f"v_cndmask_b32_e64 v{Q+4+i}, v{Q+4+i}, v{S+12+i}, s[50:51]")
            o(f"ds_write_b128 v{V_WA}, v[{Q+4}:{Q+7}] offset:{EX1 + 1024*w}")
            D = DA[1]
            for kk in range(8):
                i = 32 + w * 8 + kk
                o(f"v_mfma_f32_32x32x16_bf16 v[{D}:{D+15}], v[{X+4*kk}:{X+4*kk+3}], a[{4*i}:{4*i+3}], " + ("0" if kk == 0 else f"v[{D}:{D+15}]"))
            for j in range(8):
                o(f"v_cvt_pk_bf16_f32 v{VOP+8*w+j}, v{D+2*j}, v{D+2*j+1}")
            for a in range(4):
                r = XT + (w * 4 + a) * 2
                o(f"ds_read_b64_tr_b16 v[{r}:{r+1}], v{V_TR + (w ^ (2*(a&1)))} offset:{a*256}")
            o(f"v_mov_b32 v{V_TC}, v{V_C}"); o(f"v_mov_b32 v{V_TC2}, v{V_C2}")
            o(f"v_mov_b32 v{V_OT}, v{V_OUT}")
            o("s_lshl_b32 s42, s61, 10")
        def coop2(o, w):
            P = V_P
            for q in range(4):
                o(f"ds_read_b128 v[{S+4*q}:{S+4*q+3}], v{V_WA} offset:{EX1 + 1024*q}")
            for i in range(4):
                o(f"v_add_f32 v{P+i}, v{S+i}, v{S+4+i}"); o(f"v_add_f32 v{S+8+i}, v{S+8+i}, v{S+12+i}"); o(f"v_add_f32 v{P+i}, v{P+i}, v{S+8+i}")
                o(f"v_mul_f32 v{P+i}, v{P+i}, v{V_RL+i}"); o(f"v_mul_f32 v{P+i}, v{P+i}, v{V_RHO}")
            m0, m1 = V_L0, V_T0
            o(f"v_max_f32 v{m0}, v{P}, v{P+1}"); o(f"v_max3_f32 v{m0}, v{m0}, v{P+2}, v{P+3}")
            xhalf(o, m0, m1, "max")
            for i in range(4):
                o(f"v_sub_f32 v{P+i}, v{P+i}, v{m0}"); o(f"v_exp_f32 v{P+i}, v{P+i}")
            o(f"v_add_f32 v{m0}, v{P}, v{P+1}"); o(f"v_add_f32 v{m1}, v{P+2}, v{P+3}"); o(f"v_add_f32 v{m0}, v{m0}, v{m1}")
            xhalf(o, m0, m1)
            o(f"v_rcp_f32 v{m0}, v{m0}"); o(f"v_mul_f32 v{m0}, v{m0}, v{V_D}")
            for i in range(4):
                o(f"v_mul_f32 v{P+i}, v{P+i}, v{V_RL+i}"); o(f"v_mul_f32 v{P+i}, v{P+i}, v{m0}")
            o(f"v_cvt_pk_bf16_f32 v{m0}, v{P}, v{P+1}"); o(f"v_cvt_pk_bf16_f32 v{m1}, v{P+2}, v{P+3}")
            for a, m in enumerate((52, 46, 48, 50)):
                o(f"v_cndmask_b32_e64 v{POP+2*a}, 0, v{m0}, s[{m}:{m+1}]")
                o(f"v_cndmask_b32_e64 v{POP+2*a+1}, 0, v{m1}, s[{m}:{m+1}]")
            D = DA[0]; T = w; Q = UOP
            for half in range(2):
                for j in range(4):
                    x = X + 4 * (2 * T + half) + j
                    o(f"v_lshlrev_b32 v{D+8*half+2*j}, 16, v{x}")
                    o(f"v_and_b32 v{D+8*half+2*j+1}, s60, v{x}")
            for half in range(2):
                o(f"v_mfma_f32_32x32x16_bf16 v[{D}:{D+15}], v[{VOP+8*T+4*half}:{VOP+8*T+4*half+3}], v[{POP+4*half}:{POP+4*half+3}], v[{D}:{D+15}]")
            for q in range(4):
                o(f"ds_read_b128 v[{WCR+4*q}:{WCR+4*q+3}], v{V_WC} offset:{T*64 + q*16}")
            for k3 in range(4): o(f"v_mov_b32 v{Q+k3}, 0")
            for r in range(16):
                o(f"v_add_f32 v{Q}, v{Q}, v{D+r}")
                o(f"v_fmac_f32 v{Q+1}, v{D+r}, v{D+r}")
                o(f"v_fmac_f32 v{Q+2}, v{D+r}, v{WCR+r}")
            o(f"ds_write_b128 v{V_WA}, v[{Q}:{Q+3}] offset:{EX2 + 1024*w}")
        def coop3(o, w):
            for q in range(4):
                o(f"ds_read_b128 v[{S+4*q}:{S+4*q+3}], v{V_WA} offset:{EX2 + 1024*q}")
            for (dst, k3) in ((S1, 0), (S2, 1), (S3, 2)):
                o(f"v_add_f32 v{dst}, v{S+k3}, v{S+4+k3}"); o(f"v_add_f32 v{S+8+k3}, v{S+8+k3}, v{S+12+k3}"); o(f"v_add_f32 v{dst}, v{dst}, v{S+8+k3}")
            tail_ops(o, [w])
        A.op("s_cmp_eq_u32 s61, s56"); A.op("s_cbranch_scc1 tf_epi")
        A.op("s_waitcnt vmcnt(0)")
        for w in range(4):
            if w < 3:
                A.op(f"s_cmp_lg_u32 s6, {w}"); A.op(f"s_cbranch_scc1 tf_c{w+1}")
            A.op("s_nop 7"); A.op("s_nop 7")
            for l in region([tail_ops, lambda o, w=w: coop1(o, w)])[0]: A(l)
            A.op("s_waitcnt lgkmcnt(0)"); A.op("s_barrier")
            for l in region([lambda o, w=w: coop2(o, w)])[0]: A(l)
            A.op("s_waitcnt lgkmcnt(0)"); A.op("s_barrier")
            A.op("s_nop 7")
            for l in region([lambda o, w=w: coop3(o, w)])[0]: A(l)
            A.op("s_endpgm")
            if w < 3: A.label(f"tf_c{w+1}")
        A.label("tf_epi")
    if fn: A.op("s_waitcnt vmcnt(0)")
    A.op("s_nop 7"); A.op("s_nop 7")
    ep, _ = region([tail_ops])
    for l in ep: A(l)
    A.label("tf_done")
    A.op("s_endpgm")
    return dict(name=name, grid=nwg, block=64 * NWV, lds=L_END, vgpr=512 if wreg else 256, accum=256, sgpr=100)
```

```python
import sys
from common import *
import prep

HEADER = open("gather_scatter__hybrid_graph_tf_nagphormer__graph.s.ref").read().split("; Override launch")[0]

DOC = """;
;   prep_kernel : workgroups 0..124 sort a chunk of 3200 edges by destination range (200 nodes), 125..249 write
;   hops_kernel : persistent, workgroup = (range, feature half). Builds a degree-sorted, register-resident edge list for its range in
;                 LDS / VGPRs, then runs the 7 propagation hops g_k = bf16(dis^2 * sum g_{k-1}[src]) with a flag barrier among the
;                 Workgroups 250/251 prepare M' = C Wq Wk^T C * log2(e)/sqrt(D), W2' = C Wv Wo (C = centering) and centered w_r.
;   tf_kernel   : per tile of 4 nodes x 8 tokens: U = X M', S = U X^T, softmax, V = X W2', O = X + P V, LayerNorm-2 statistics,
"""

def build(stages=("prep", "hops", "tf"), **kw):
    B = Asm()
    B('.amdgcn_target "amdgcn-amd-amdhsa--gfx950"')
    B(".text")
    ks = []
    if "prep" in stages:
        if 'prep2' in kw:
            import prep2
            ks.append(prep2.gen_prep(B, **kw['prep2']))
        else:
            ks.append(prep.gen_prep(B, **kw.get('prep', {})))
    if "hops" in stages:
        import hops
        ks.append(hops.gen_hops(B, **kw.get("hops", {})))
    if "tf" in stages:
        import tf3 as tf
        ks.append(tf.gen_tf(B, **kw.get("tf", {})))
    B('.section .rodata,"a"')
    for k in ks:
        kernel_desc(B, k["name"], k["vgpr"], k["sgpr"], k.get("accum"))
    head = HEADER
    for k in ks:
        head += f"; @launch kernel={k['name']} grid=({k['grid']},1,1) block=({k['block']},1,1) lds={k['lds']}\n"
    head += DOC
    return head + B.text()

if __name__ == "__main__":
    st = sys.argv[2].split(",") if len(sys.argv) > 2 else ("prep", "hops", "tf")
    kw = eval(sys.argv[3]) if len(sys.argv) > 3 else {}
    open(sys.argv[1], "w").write(build(st, **kw))
```

```python
from common import *
import prep

L_CNT = 0
L_HIST = 6400
L_BINS = L_HIST + 256
L_SLOT = L_BINS + 256
L_NODE = L_SLOT + 832
L_DEG = L_NODE + 832
L_NDEG = L_DEG + 832
L_OVFP = L_NDEG + 832
L_DSQ = L_OVFP + 832
L_MISC = L_DSQ + 832
L_IMG = L_MISC + 64
IMG_STRIDE = CAP * 2
L_END = L_IMG + 208 * IMG_STRIDE
assert L_IMG % 16 == 0

def gen_hops(A, nh=7, depthfn=lambda W: 4, maxdepth=7, prio=1, sleep=1, prof=0, ld=' sc1', bar='flag', nshard=NSHARD, perm=(5,0,1,2,9,6,4,3,10,11,8,7,12), ndot=4, pf=0, pffrac=0.8, rtt=0, pw=0, pwprio=3, pwsleep=0, cells=False, stst='', fn=False, lps=4, cpf=0, xin=False):
    name = "hops_kernel"
    kernel_begin(A, name)
    NW = 13
    NWB = NW + (1 if (rtt or pw) else 0)
    maxpairs = CAP // 2
    if fn: maxdepth = 4
    A.op("s_cmp_ge_u32 s2, 252"); A.op("s_cbranch_scc1 hops_done")
    A.op("s_load_dwordx2 s[4:5], s[0:1], 88")
    A.op("s_cmp_ge_u32 s2, 250"); A.op("s_cbranch_scc1 hops_wprep")
    A.op("s_load_dwordx2 s[44:45], s[0:1], 24")
    if prof: A.op("s_memrealtime s[64:65]")
    A.op("s_and_b32 s7, s2, 1"); A.op("s_lshr_b32 s8, s2, 1")
    if lps == 4:
        A.op("v_lshrrev_b32 v4, 2, v0")
        A.op("v_and_b32 v5, 3, v0")
    else:
        assert lps == 6
        A.op("v_mul_u32_u24 v4, 10923, v0"); A.op("v_lshrrev_b32 v4, 16, v4")
        A.op("v_mul_u32_u24 v5, 6, v4"); A.op("v_sub_u32 v5, v0, v5")
    A.op("v_lshlrev_b32 v6, 9, v4")
    A.op("s_lshl_b32 s9, s8, 2")
    A.op(f"s_mul_i32 s10, s8, {RN*2}")
    A.op("v_lshlrev_b32 v7, 1, v0")
    A.op("s_waitcnt lgkmcnt(0)")
    srd(A, 12, 4, NR * 512, OFF_OFFS)
    A.op("buffer_load_dwordx2 v[8:9], v6, s[12:15], s9 offen")
    srd(A, 60, 44, N * 2)
    A.op("buffer_load_ushort v43, v7, s[60:63], s10 offen")
    if xin:
        A.cmt("x -> g0 for this range and half: 200 rows * 8 chunks = 1600 items, two per thread")
        A.op("s_load_dwordx2 s[92:93], s[0:1], 0")
        A.op(f"s_mul_i32 s46, s8, {RN*256}"); A.op("s_lshl_b32 s47, s7, 7"); A.op("s_add_u32 s46, s46, s47")
        A.op("s_waitcnt lgkmcnt(0)")
        srd(A, 88, 92, TAB)
        for i in range(2):
            A.op(f"v_add_u32 v60, {832*i}, v0")
            A.op("v_lshrrev_b32 v61, 3, v60"); A.op("v_and_b32 v62, 7, v60")
            A.op("v_lshlrev_b32 v62, 4, v62"); A.op("v_lshl_add_u32 v62, v61, 8, v62")
            if i == 1:
                A.op("v_cmp_gt_u32 vcc, 1600, v60"); A.op("s_nop 1"); A.op("v_cndmask_b32_e64 v62, -1, v62, vcc")
            A.op(f"buffer_load_dwordx4 v[{64+4*i}:{67+4*i}], v62, s[88:91], s46 offen")
            A.op("v_lshlrev_b32 v61, 1, v61")
            A.op(f"buffer_load_ushort v{72+i}, v61, s[60:63], s10 offen")
    if cells:
        srd(A, 68, 4, CELL_BYTES, OFF_CELL)
        A.op(f"s_mul_i32 s10, s8, {NR*256}")
        A.op("v_lshlrev_b32 v7, 8, v4"); A.op("v_lshl_add_u32 v7, v5, 4, v7")
        for r in range(4):
            A.op(f"buffer_load_dwordx4 v[{44+4*r}:{44+4*r+3}], v7, s[68:71], s10 offen offset:{64*r}")
    srd(A, 16, 4, E * 4, OFF_ENT)
    A.op("v_lshrrev_b32 v1, 6, v0"); A.op("s_nop 0")
    A.op("v_readfirstlane_b32 s6, v1")
    npf = 0
    if cpf:
        A.op("s_nop 3"); A.op("v_and_b32 v2, 63, v0"); A.op("v_lshlrev_b32 v2, 4, v2")
        npf = code_prefetch(A, "hop_loop", "hops_done", cpf, 6, NW, 2, 100, 64)
    A.op("v_lshlrev_b32 v1, 2, v0")
    A.op("v_mov_b32 v2, 0"); A.op("v_mov_b32 v3, -1")
    for i in range(2):
        A.op(f"ds_write_b32 v1, v2 offset:{i*3328}")
    assert 2 * 3328 >= L_BINS and 2 * 3328 <= L_SLOT + 0 or True
    nimg = 208 * IMG_STRIDE // 4
    for i in range(nimg // 832):
        A.op(f"ds_write_b32 v1, v3 offset:{L_IMG + i*3328}")
    assert nimg % 832 == 0
    A.op("v_cmp_gt_u32 vcc, 208, v0"); A.op("s_and_saveexec_b64 s[20:21], vcc")
    A.op(f"ds_write_b32 v1, v3 offset:{L_NODE}")
    A.op(f"ds_write_b32 v1, v2 offset:{L_DEG}")
    A.op("s_mov_b64 exec, s[20:21]")
    A.op("v_cmp_gt_u32 vcc, 16, v0"); A.op("s_and_saveexec_b64 s[20:21], vcc")
    A.op(f"ds_write_b32 v1, v2 offset:{L_MISC}")
    A.op("s_mov_b64 exec, s[20:21]")
    A.op("s_waitcnt lgkmcnt(0)")
    A.op("s_waitcnt vmcnt(%d)" % ((5 if cells else 1) + npf + (4 if xin else 0)))
    A.op("v_sub_u32 v10, v9, v8")
    A.op("v_mul_u32_u24 v11, 3200, v4"); A.op("v_add_u32 v11, v11, v8")
    A.op("v_lshl_add_u32 v11, v5, 2, v11"); A.op("v_lshlrev_b32 v11, 2, v11")
    A.op("v_lshlrev_b32 v12, 2, v5")
    NRND = 4 if lps == 4 else 3
    RS = 4 * lps
    for r in range(0 if cells else NRND):
        A.op(f"buffer_load_dwordx4 v[{44+4*r}:{44+4*r+3}], v11, s[16:19], 0 offen offset:{4*RS*r}")
    if xin:
        A.op(f"s_waitcnt vmcnt({NRND})")
        A.op(f"s_mul_i32 s47, s7, {HALF}"); A.op(f"s_mul_i32 s46, s8, {RN*128}"); A.op("s_add_u32 s46, s46, s47")
        srd(A, 88, 4, TAB, OFF_G)
        A.op(f"s_lshl_b32 s47, s7, 3"); A.op(f"s_add_u32 s47, s47, {OFF_ST}")
        A.op("s_add_u32 s92, s4, s47"); A.op("s_addc_u32 s93, s5, 0"); A.op(f"s_mov_b32 s94, {ST_TOK - 8}"); A.op("s_mov_b32 s95, 0x20000")
        A.op(f"s_mul_i32 s47, s8, {RN*16}")
        A.op("s_mov_b32 s52, 0xffff0000")
        for i in range(2):
            A.op(f"v_lshlrev_b32 v{72+i}, 16, v{72+i}")
            A.op("v_mov_b32 v74, 0"); A.op("v_mov_b32 v75, 0")
            for q in range(4):
                r = 64 + 4 * i + q
                A.op(f"v_lshlrev_b32 v60, 16, v{r}"); A.op(f"v_and_b32 v61, s52, v{r}")
                A.op("v_add_f32 v74, v74, v60"); A.op("v_fmac_f32 v75, v60, v60")
                A.op("v_add_f32 v74, v74, v61"); A.op("v_fmac_f32 v75, v61, v61")
                A.op(f"v_mul_f32 v60, v60, v{72+i}"); A.op(f"v_mul_f32 v61, v61, v{72+i}")
                A.op(f"v_cvt_pk_bf16_f32 v{r}, v60, v61")
            A.op(f"v_add_u32 v60, {832*i}, v0")
            A.op("v_lshlrev_b32 v62, 4, v60")
            if i == 1:
                A.op("v_cmp_gt_u32 vcc, 1600, v60"); A.op("s_nop 1"); A.op("v_cndmask_b32_e64 v62, -1, v62, vcc")
            A.op(f"buffer_store_dwordx4 v[{64+4*i}:{67+4*i}], v62, s[88:91], s46 offen sc0 sc1")
            for m in ("quad_perm:[1,0,3,2]", "quad_perm:[2,3,0,1]", "row_half_mirror"):
                A.op("s_nop 0")
                A.op(f"v_add_f32_dpp v74, v74, v74 {m} row_mask:0xf bank_mask:0xf")
                A.op(f"v_add_f32_dpp v75, v75, v75 {m} row_mask:0xf bank_mask:0xf")
            A.op("v_lshrrev_b32 v61, 3, v60"); A.op("v_lshlrev_b32 v61, 4, v61")
            if i == 1:
                A.op("v_cndmask_b32_e64 v61, -1, v61, vcc")
            A.op("s_mov_b32 exec_lo, 0x01010101"); A.op("s_mov_b32 exec_hi, 0x01010101")
            A.op(f"buffer_store_dwordx2 v[74:75], v61, s[92:95], s47 offen")
            A.op("s_mov_b64 exec, -1")
    A.op("s_barrier")
    A.op("v_cmp_eq_u32 vcc, 0, v5"); A.op("s_and_saveexec_b64 s[20:21], vcc")
    A.op(f"v_mov_b32 v13, {L_MISC}"); A.op("ds_add_u32 v13, v8")
    A.op("s_mov_b64 exec, s[20:21]")
    ER = 44
    def keys(e, k):
        A.op(f"v_bfe_u32 v24, v{e}, 16, 8"); A.op(f"v_bfe_u32 v{k}, v{e}, 12, 4")
        A.op(f"v_lshl_add_u32 v{k}, v24, 3, v{k}"); A.op(f"v_lshlrev_b32 v{k}, 2, v{k}")
    def count4(e0, pos):
        for i in range(4):
            keys(e0 + i, 25 + i)
        for i in range(4):
            A.op(f"v_add_u32 v24, {i}, v{pos}"); A.op("v_cmp_lt_u32 vcc, v24, v10"); A.op("s_and_b64 exec, s[22:23], vcc")
            A.op(f"ds_add_u32 v{25+i}, v30 offset:{L_CNT}")
        A.op("s_mov_b64 exec, s[22:23]")
    def fill4(e0, pos):
        for i in range(4):
            keys(e0 + i, 25 + i)
            A.op(f"v_bfe_u32 v{20+i}, v{e0+i}, 16, 8")
        for i in range(4):
            A.op(f"v_add_u32 v24, {i}, v{pos}"); A.op(f"v_cmp_lt_u32 s[{24+2*i}:{25+2*i}], v24, v10")
        for i in range(4):
            A.op(f"s_and_b64 exec, s[22:23], s[{24+2*i}:{25+2*i}]")
            A.op(f"ds_add_rtn_u32 v{32+i}, v{25+i}, v30 offset:{L_CNT}")
            A.op(f"v_lshlrev_b32 v24, 2, v{20+i}")
            A.op(f"ds_read_b32 v{36+i}, v24 offset:{L_SLOT}")
        A.op("s_mov_b64 exec, s[22:23]")
        A.op("s_waitcnt lgkmcnt(0)")
        for i in range(4):
            A.op("s_mov_b64 exec, s[22:23]")
            A.op(f"v_cmp_gt_u32 vcc, {CAP}, v{32+i}")
            A.op(f"s_and_b64 s[32:33], s[{24+2*i}:{25+2*i}], vcc")
            A.op(f"s_and_b64 exec, s[22:23], s[32:33]")
            A.op(f"v_mul_u32_u24 v24, {IMG_STRIDE}, v{36+i}")
            A.op(f"v_lshl_add_u32 v24, v{32+i}, 1, v24")
            A.op(f"ds_write_b16 v24, v{e0+i} offset:{L_IMG}")
            A.op(f"s_andn2_b64 s[32:33], s[{24+2*i}:{25+2*i}], vcc")
            A.op(f"s_and_b64 exec, s[22:23], s[32:33]")
            lo = A.new("no")
            A.op(f"s_cbranch_execz {lo}")
            A.op(f"v_lshlrev_b32 v24, 2, v{20+i}")
            A.op(f"ds_read_b32 v24, v24 offset:{L_OVFP}")
            A.op("s_waitcnt lgkmcnt(0)")
            A.op(f"v_add_u32 v24, v24, v{32+i}")
            A.op(f"v_subrev_u32 v24, {CAP}, v24")
            A.op(f"v_lshlrev_b32 v24, 1, v24")
            A.op(f"buffer_store_short v{e0+i}, v24, s[48:51], 0 offen")
            A.label(lo)
        A.op("s_mov_b64 exec, s[22:23]")
    def fillA(e0, pos, pr, sr):
        for i in range(4):
            keys(e0 + i, 25 + i)
            A.op(f"v_bfe_u32 v{20+i}, v{e0+i}, 16, 8"); A.op(f"v_lshlrev_b32 v{20+i}, 2, v{20+i}")
        for i in range(4):
            A.op(f"v_add_u32 v24, {i}, v{pos}"); A.op("v_cmp_lt_u32 vcc, v24, v10"); A.op("s_and_b64 exec, s[22:23], vcc")
            A.op(f"ds_add_rtn_u32 v{pr+i}, v{25+i}, v30 offset:{L_CNT}")
            A.op(f"ds_read_b32 v{sr+i}, v{20+i} offset:{L_SLOT}")
        A.op("s_mov_b64 exec, s[22:23]")
    def fillB(e0, pos, pr, sr):
        for i in range(4):
            A.op("s_mov_b64 exec, s[22:23]")
            A.op(f"v_add_u32 v24, {i}, v{pos}"); A.op(f"v_cmp_lt_u32 s[24:25], v24, v10")
            A.op(f"v_cmp_gt_u32 vcc, {CAP}, v{pr+i}")
            A.op(f"v_mul_u32_u24 v24, {IMG_STRIDE}, v{sr+i}")
            A.op(f"v_lshl_add_u32 v24, v{pr+i}, 1, v24")
            A.op(f"s_and_b64 exec, s[24:25], vcc")
            A.op(f"ds_write_b16 v24, v{e0+i} offset:{L_IMG}")
            A.op(f"s_andn2_b64 exec, s[24:25], vcc")
            lo = A.new("no")
            A.op(f"s_cbranch_execz {lo}")
            A.op(f"v_bfe_u32 v24, v{e0+i}, 16, 8"); A.op(f"v_lshlrev_b32 v24, 2, v24")
            A.op(f"ds_read_b32 v24, v24 offset:{L_OVFP}")
            A.op("s_waitcnt lgkmcnt(0)")
            A.op(f"v_add_u32 v24, v24, v{pr+i}")
            A.op(f"v_subrev_u32 v24, {CAP}, v24")
            A.op(f"v_lshlrev_b32 v24, 1, v24")
            A.op(f"buffer_store_short v{e0+i}, v24, s[48:51], 0 offen")
            A.label(lo)
        A.op("s_mov_b64 exec, s[22:23]")
    def entry_pass(fill):
        f4 = fill4 if fill else count4
        A.op("v_mov_b32 v30, 1"); A.op("s_mov_b64 s[22:23], exec")
        done = A.new("epd")
        if not fill:
            for r in range(NRND):
                A.op(f"v_add_u32 v15, {RS*r}, v12")
                A.op("v_cmp_lt_u32 vcc, v15, v10"); A.op(f"s_cbranch_vccz {done}")
                f4(ER + 4 * r, 15)
        else:
            la = A.new("fa"); lb = A.new("fb")
            for r in range(NRND):
                A.op(f"v_add_u32 v15, {RS*r}, v12")
                A.op("v_cmp_lt_u32 vcc, v15, v10"); A.op(f"s_cbranch_vccz {la}")
                fillA(ER + 4 * r, 15, 60 + 4 * r, 76 + 4 * r)
                A.op("s_waitcnt lgkmcnt(6)")
            A.label(la)
            A.op("s_waitcnt lgkmcnt(0)")
            for r in range(NRND):
                A.op(f"v_add_u32 v15, {RS*r}, v12")
                A.op("v_cmp_lt_u32 vcc, v15, v10"); A.op(f"s_cbranch_vccz {done}")
                fillB(ER + 4 * r, 15, 60 + 4 * r, 76 + 4 * r)
        lp = A.new("ep")
        A.op(f"v_add_u32 v14, {4*RS*NRND}, v11"); A.op(f"v_add_u32 v15, {RS*NRND}, v12")
        A.label(lp)
        A.op("v_cmp_lt_u32 vcc, v15, v10"); A.op(f"s_cbranch_vccz {done}")
        A.op("buffer_load_dwordx4 v[16:19], v14, s[16:19], 0 offen")
        A.op("s_waitcnt vmcnt(0)")
        f4(16, 15)
        A.op(f"v_add_u32 v14, {4*RS}, v14"); A.op(f"v_add_u32 v15, {RS}, v15")
        A.op(f"s_branch {lp}")
        A.label(done)
    A.op("s_waitcnt vmcnt(%d)" % (4 if xin else 0))
    if prof: A.op("s_memrealtime s[66:67]")
    entry_pass(False)
    A.op("s_waitcnt vmcnt(0) lgkmcnt(0)" if xin else "s_waitcnt lgkmcnt(0)")
    A.op("s_barrier")
    if xin:
        lg = A.new("g0f")
        A.op("s_cmp_eq_u32 s6, 0"); A.op(f"s_cbranch_scc0 {lg}")
        A.op(f"s_mul_i32 s52, s7, {128*128}"); A.op(f"s_add_u32 s52, s52, {OFF_CNT}")
        A.op("s_add_u32 s84, s4, s52"); A.op("s_addc_u32 s85, s5, 0"); A.op(f"s_mov_b32 s86, {128*128}"); A.op("s_mov_b32 s87, 0x20000")
        A.op("s_lshl_b32 s9, s8, 7"); A.op("s_add_u32 s9, s9, 4")
        A.op("v_mov_b32 v60, s9"); A.op("v_mov_b32 v61, 1")
        A.op("s_mov_b64 exec, 1")
        A.op("buffer_store_dword v61, v60, s[84:87], 0 offen sc0 sc1")
        A.op("s_mov_b64 exec, -1")
        A.label(lg)
    if prof: A.op("s_memrealtime s[68:69]")
    A.op("v_cmp_gt_u32 vcc, 200, v0"); A.op("s_and_saveexec_b64 s[20:21], vcc")
    l1 = A.new("np"); A.op(f"s_cbranch_execz {l1}")
    A.op("v_lshlrev_b32 v1, 5, v0")
    A.op(f"ds_read_b128 v[16:19], v1 offset:{L_CNT}"); A.op(f"ds_read_b128 v[20:23], v1 offset:{L_CNT+16}")
    A.op("s_waitcnt lgkmcnt(0)")
    A.op("v_mov_b32 v24, 0")
    for i in range(8):
        A.op(f"v_mov_b32 v25, v{16+i}"); A.op(f"v_mov_b32 v{16+i}, v24"); A.op("v_add_u32 v24, v24, v25")
    A.op(f"ds_write_b128 v1, v[16:19] offset:{L_CNT}"); A.op(f"ds_write_b128 v1, v[20:23] offset:{L_CNT+16}")
    A.op("v_mov_b32 v40, v24")
    A.op(f"v_min_u32 v41, {CAP}, v24"); A.op("v_lshlrev_b32 v41, 2, v41")
    A.op("v_mov_b32 v30, 1")
    A.op(f"ds_add_rtn_u32 v42, v41, v30 offset:{L_HIST}")
    A.op("v_lshlrev_b32 v1, 2, v0")
    A.op(f"ds_write_b32 v1, v40 offset:{L_NDEG}")
    A.op("v_lshlrev_b32 v43, 16, v43"); A.op("v_mul_f32 v43, v43, v43")
    A.op(f"ds_write_b32 v1, v43 offset:{L_DSQ}")
    A.op(f"v_cmp_lt_u32 vcc, {CAP}, v40"); A.op("s_and_b64 exec, exec, vcc")
    A.op(f"v_mov_b32 v13, {L_MISC+4}"); A.op("ds_write_b32 v13, v30")
    A.label(l1)
    A.op("s_mov_b64 exec, s[20:21]")
    A.op("s_waitcnt lgkmcnt(0)")
    A.op("s_barrier")
    A.op("s_cmp_eq_u32 s6, 0"); l2 = A.new("w0"); A.op(f"s_cbranch_scc0 {l2}")
    A.op("v_lshlrev_b32 v1, 2, v0")
    A.op(f"ds_read_b32 v16, v1 offset:{L_HIST}")
    A.op(f"v_mov_b32 v13, {L_MISC}"); A.op("ds_read_b64 v[18:19], v13")
    A.op("s_waitcnt lgkmcnt(0)")
    wave_scan_incl(A, 16)
    A.op("v_sub_u32 v16, 200, v16")
    A.op(f"ds_write_b32 v1, v16 offset:{L_BINS}")
    A.op("v_readfirstlane_b32 s9, v18"); A.op("v_readfirstlane_b32 s10, v19")
    A.op("s_nop 3")
    A.op("s_cmp_eq_u32 s10, 0"); A.op(f"s_cbranch_scc1 {l2}")
    A.op("s_mov_b32 s11, 0")
    lo = A.new("ov"); A.label(lo)
    A.op("s_lshl_b32 s20, s11, 2"); A.op("v_mov_b32 v1, s20")
    A.op(f"ds_read_b32 v16, v1 offset:{L_NDEG}")
    A.op("v_mov_b32 v17, s9"); A.op(f"ds_write_b32 v1, v17 offset:{L_OVFP}")
    A.op("s_waitcnt lgkmcnt(0)")
    A.op("v_readfirstlane_b32 s20, v16"); A.op("s_nop 3")
    A.op(f"s_max_u32 s20, s20, {CAP}"); A.op(f"s_sub_u32 s20, s20, {CAP}"); A.op("s_add_u32 s9, s9, s20")
    A.op("s_add_u32 s11, s11, 1"); A.op("s_cmp_lt_u32 s11, 200"); A.op(f"s_cbranch_scc1 {lo}")
    A.label(l2)
    A.op("s_waitcnt lgkmcnt(0)")
    A.op("s_barrier")
    A.op("v_cmp_gt_u32 vcc, 200, v0"); A.op("s_and_saveexec_b64 s[20:21], vcc")
    l3 = A.new("np"); A.op(f"s_cbranch_execz {l3}")
    A.op(f"ds_read_b32 v16, v41 offset:{L_BINS}")
    A.op("s_waitcnt lgkmcnt(0)")
    A.op("v_add_u32 v16, v16, v42")
    A.op("v_lshlrev_b32 v1, 2, v0"); A.op(f"ds_write_b32 v1, v16 offset:{L_SLOT}")
    A.op("v_lshlrev_b32 v16, 2, v16")
    A.op(f"ds_write_b32 v16, v0 offset:{L_NODE}"); A.op(f"ds_write_b32 v16, v40 offset:{L_DEG}")
    A.label(l3)
    A.op("s_mov_b64 exec, s[20:21]")
    A.op(f"s_mul_i32 s9, s7, {E*2}"); A.op(f"s_add_u32 s9, s9, {OFF_OVF}")
    A.op("s_add_u32 s48, s4, s9"); A.op("s_addc_u32 s49, s5, 0"); A.op(f"s_mov_b32 s50, {E*2}"); A.op("s_mov_b32 s51, 0x20000")
    A.op("s_waitcnt lgkmcnt(0)")
    A.op("s_barrier")
    if prof: A.op("s_memrealtime s[70:71]")
    entry_pass(True)
    A.op("s_waitcnt vmcnt(0) lgkmcnt(0)")
    A.op("s_barrier")
    if prof: A.op("s_memrealtime s[72:73]")
    if rtt:
        A.op(f"s_cmp_eq_u32 s6, {NW}"); A.op("s_cbranch_scc1 hop_rtt")
    if pw:
        A.op(f"s_cmp_eq_u32 s6, {NW}"); A.op("s_cbranch_scc1 hop_pw")
    P = [26, 26 + maxpairs]
    VA = 26 + 2 * maxpairs; VN = VA + 2; VS = VN + 2
    DATA = (VS + 2 + 3) // 4 * 4
    ACC = [10, 18]
    nv = DATA + 8 * maxdepth
    KF = DATA + 32
    if fn: nv = KF + 24
    assert nv <= 128
    A.op("v_and_b32 v0, 63, v0")
    A.op("v_and_b32 v8, 7, v0"); A.op("v_lshlrev_b32 v8, 4, v8")
    A.op("v_lshrrev_b32 v5, 3, v0")
    pc = sum(p << (4 * w) for w, p in enumerate(perm))
    A.op(f"s_mov_b32 s58, {pc & 0xffffffff:#x}"); A.op(f"s_mov_b32 s59, {pc >> 32:#x}")
    A.op("s_lshl_b32 s9, s6, 2"); A.op("s_lshr_b64 s[58:59], s[58:59], s9"); A.op("s_and_b32 s56, s58, 15")
    A.op("s_lshl_b32 s9, s56, 4")
    A.op("v_add_u32 v5, s9, v5")
    A.op(f"s_mul_i32 s10, s8, {RN}")
    for i in range(2):
        A.op(f"v_add_u32 v6, {8*i}, v5")
        A.op(f"v_mul_u32_u24 v7, {IMG_STRIDE}, v6")
        A.op("v_lshlrev_b32 v6, 2, v6")
        A.op(f"ds_read_b32 v2, v6 offset:{L_NODE}"); A.op(f"ds_read_b32 v{3+i}, v6 offset:{L_DEG}")
        for p in range(maxpairs):
            A.op(f"ds_read_b32 v{P[i]+p}, v7 offset:{L_IMG + 4*p}")
            if p % 8 == 7: A.op("s_waitcnt lgkmcnt(4)")
        A.op("s_waitcnt lgkmcnt(4)")
        A.op("v_cmp_gt_u32 vcc, 200, v2")
        A.op("v_min_u32 v6, 199, v2"); A.op("v_lshlrev_b32 v6, 2, v6")
        A.op(f"ds_read_b32 v{VS+i}, v6 offset:{L_DSQ}")
        A.op("v_add_u32 v2, s10, v2")
        A.op("v_lshl_add_u32 v2, v2, 7, v8")
        A.op(f"v_cndmask_b32_e64 v{VN+i}, -1, v2, vcc")
    A.op("v_max_u32 v3, v3, v4")
    A.op("s_nop 0")
    A.op("v_readfirstlane_b32 s40, v3")
    A.op("s_nop 3")
    A.op(f"s_cmp_gt_u32 s40, {CAP}"); A.op("s_cselect_b32 s41, 1, 0")
    A.op(f"s_min_u32 s40, s40, {CAP}"); A.op("s_add_u32 s40, s40, 1"); A.op("s_lshr_b32 s40, s40, 1")
    A.op("s_waitcnt lgkmcnt(0)")
    A.op("s_mov_b32 s28, 0x3f80"); A.op("s_mov_b32 s29, 0x3f800000"); A.op("s_mov_b32 s30, 128")
    A.op(f"s_mul_i32 s19, s7, {HALF}")
    A.op("s_add_u32 s20, s4, s19"); A.op("s_addc_u32 s21, s5, 0")
    A.op(f"s_mov_b32 s22, {HALF}"); A.op("s_mov_b32 s23, 0x20000")
    A.op(f"s_add_u32 s24, s20, {TAB}"); A.op("s_addc_u32 s25, s21, 0")
    A.op(f"s_mov_b32 s26, {HALF}"); A.op("s_mov_b32 s27, 0x20000")
    cbytes = nshard * 128 if bar == 'cnt' else 128 * 128
    A.op(f"s_mul_i32 s19, s7, {cbytes}"); A.op(f"s_add_u32 s19, s19, {OFF_CNT}")
    A.op("s_add_u32 s32, s4, s19"); A.op("s_addc_u32 s33, s5, 0")
    A.op(f"s_mov_b32 s34, {cbytes}"); A.op("s_mov_b32 s35, 0x20000")
    A.op(f"s_lshl_b32 s19, s7, 3"); A.op(f"s_add_u32 s19, s19, {OFF_ST + ST_TOK}")
    A.op("s_add_u32 s76, s4, s19"); A.op("s_addc_u32 s77, s5, 0")
    A.op(f"s_mov_b32 s78, {ST_TOK - 8}"); A.op("s_mov_b32 s79, 0x20000")
    if fn:
        srd(A, 80, 4, 1536, OFF_FV)
        A.op("v_lshlrev_b32 v2, 1, v8"); A.op("s_lshl_b32 s19, s7, 8")
        for v in range(3):
            for q in range(2):
                A.op(f"buffer_load_dwordx4 v[{KF+8*v+4*q}:{KF+8*v+4*q+3}], v2, s[80:83], s19 offen offset:{512*v + 16*q}")
        A.op(f"s_lshl_b32 s19, s7, 4"); A.op(f"s_add_u32 s19, s19, {OFF_FN}")
        A.op("s_add_u32 s84, s4, s19"); A.op("s_addc_u32 s85, s5, 0")
        A.op(f"s_mov_b32 s86, {FN_TOK - 16}"); A.op("s_mov_b32 s87, 0x20000")
        A.op("s_load_dwordx2 s[92:93], s[0:1], 0")
        A.op("s_waitcnt vmcnt(0) lgkmcnt(0)")
        srd(A, 88, 92, TAB)
    if xin:
        A.cmt("wait until g0 of all 125 ranges of this half is in memory")
        lw = A.new("g0w"); lp = A.new("g0p"); lo = A.new("g0o")
        A.op("s_cmp_lg_u32 s6, 0"); A.op(f"s_cbranch_scc1 {lw}")
        A.op("v_lshlrev_b32 v2, 7, v0"); A.op("v_add_u32 v2, 4, v2")
        A.op("v_add_u32 v3, 64, v0"); A.op(f"v_min_u32 v3, {NR-1}, v3"); A.op("v_lshlrev_b32 v3, 7, v3"); A.op("v_add_u32 v3, 4, v3")
        A.op("s_mov_b32 s37, 0")
        A.label(lp)
        A.op("buffer_load_dword v4, v2, s[32:35], 0 offen sc0 sc1"); A.op("buffer_load_dword v5, v3, s[32:35], 0 offen sc0 sc1")
        A.op("s_add_u32 s37, s37, 1"); A.op("s_cmp_ge_u32 s37, 1000000"); A.op(f"s_cbranch_scc1 {lo}")
        A.op("s_waitcnt vmcnt(0)")
        A.op("v_min_u32 v4, v4, v5"); A.op("v_cmp_le_u32 s[38:39], 1, v4")
        A.op("s_nop 3")
        A.op("s_cmp_eq_u64 s[38:39], -1"); A.op(f"s_cbranch_scc1 {lo}")
        A.op("s_sleep 1"); A.op(f"s_branch {lp}")
        A.label(lo)
        A.op("s_waitcnt vmcnt(0)")
        A.label(lw)
        A.op("s_barrier")
    A.op("s_mov_b32 s36, 0")
    if prof:
        A.op("s_memrealtime s[74:75]")
        A.op("s_waitcnt lgkmcnt(0)")
        srd(A, 80, 4, 4 << 20, 96 << 20)
        A.op("s_lshl_b32 s84, s2, 4"); A.op("s_add_u32 s84, s84, s6"); A.op("s_lshl_b32 s84, s84, 10")
        A.op("s_mov_b64 exec, 1")
        for qi in range(6):
            A.op(f"v_mov_b32 v6, s{64+2*qi}"); A.op(f"v_mov_b32 v7, s{65+2*qi}"); A.op(f"v_mov_b32 v2, {8*qi}")
            A.op("buffer_store_dwordx2 v[6:7], v2, s[80:83], s84 offen"); A.op("s_nop 1")
        A.op("s_mov_b64 exec, -1")
    def stats():
        A.cmt("row statistics (sum, sum of squares over this half) for the transformer LayerNorm")
        for i in range(2):
            t = DATA + 8 + 2 * i
            A.op(f"v_add_f32 v{t}, v{ACC[i]}, v{ACC[i]+1}"); A.op(f"v_mul_f32 v{t+1}, v{ACC[i]}, v{ACC[i]}")
            A.op(f"v_fmac_f32 v{t+1}, v{ACC[i]+1}, v{ACC[i]+1}")
            for q in range(2, 8):
                A.op(f"v_add_f32 v{t}, v{t}, v{ACC[i]+q}"); A.op(f"v_fmac_f32 v{t+1}, v{ACC[i]+q}, v{ACC[i]+q}")
        for m in ("quad_perm:[1,0,3,2]", "quad_perm:[2,3,0,1]", "row_half_mirror"):
            for q in range(4):
                A.op(f"v_add_f32_dpp v{DATA+8+q}, v{DATA+8+q}, v{DATA+8+q} {m} row_mask:0xf bank_mask:0xf")
        A.op(f"v_lshrrev_b32 v2, 3, v{VN}"); A.op(f"v_lshrrev_b32 v3, 3, v{VN+1}")
        A.op("s_mov_b32 exec_lo, 0x01010101"); A.op("s_mov_b32 exec_hi, 0x01010101")
        A.op(f"buffer_store_dwordx2 v[{DATA+8}:{DATA+9}], v2, s[76:79], 0 offen{stst}")
        A.op(f"buffer_store_dwordx2 v[{DATA+10}:{DATA+11}], v3, s[76:79], 0 offen{stst}")
        A.op("s_mov_b64 exec, -1")
        A.op(f"s_add_u32 s76, s76, {ST_TOK}"); A.op("s_addc_u32 s77, s77, 0")
        if fn:
            A.op(f"s_add_u32 s84, s84, {FN_TOK}"); A.op("s_addc_u32 s85, s85, 0")
            funcs([[ACC[0] + q for q in range(8)], [ACC[1] + q for q in range(8)]])
    def funcs(vals):
        F = [DATA + 12, DATA + 16]
        for i in range(2):
            for v in range(3):
                A.op(f"v_mul_f32 v{F[i]+v}, v{vals[i][0]}, v{KF+8*v}")
                for q in range(1, 8):
                    A.op(f"v_fmac_f32 v{F[i]+v}, v{vals[i][q]}, v{KF+8*v+q}")
        for m in ("quad_perm:[1,0,3,2]", "quad_perm:[2,3,0,1]", "row_half_mirror"):
            for i in range(2):
                for v in range(3):
                    A.op(f"v_add_f32_dpp v{F[i]+v}, v{F[i]+v}, v{F[i]+v} {m} row_mask:0xf bank_mask:0xf")
        A.op(f"v_lshrrev_b32 v2, 2, v{VN}"); A.op(f"v_lshrrev_b32 v3, 2, v{VN+1}")
        A.op("s_mov_b32 exec_lo, 0x01010101"); A.op("s_mov_b32 exec_hi, 0x01010101")
        A.op(f"buffer_store_dwordx4 v[{F[0]}:{F[0]+3}], v2, s[84:87], 0 offen")
        A.op(f"buffer_store_dwordx4 v[{F[1]}:{F[1]+3}], v3, s[84:87], 0 offen")
        A.op("s_mov_b64 exec, -1")
    def xpre():
        if not fn: return
        l = A.new("xp")
        A.op("s_cmp_eq_u32 s36, 1"); A.op(f"s_cbranch_scc0 {l}")
        A.op("s_lshl_b32 s19, s7, 7")
        for i in range(2):
            A.op(f"v_lshlrev_b32 v2, 1, v{VN+i}"); A.op("v_sub_u32 v2, v2, v8")
            A.op(f"buffer_load_dwordx4 v[{DATA+20+4*i}:{DATA+23+4*i}], v2, s[88:91], s19 offen")
        A.label(l)
    def xpost():
        if not fn: return
        l = A.new("xq")
        A.op("s_cmp_eq_u32 s36, 1"); A.op(f"s_cbranch_scc0 {l}")
        A.op("s_waitcnt vmcnt(0)")
        A.op("s_mov_b32 s19, 0xffff0000")
        U = [ACC[0], ACC[1]]
        for i in range(2):
            for q in range(4):
                A.op(f"v_lshlrev_b32 v{U[i]+2*q}, 16, v{DATA+20+4*i+q}"); A.op(f"v_and_b32 v{U[i]+2*q+1}, s19, v{DATA+20+4*i+q}")
        A.op(f"s_sub_u32 s84, s84, {FN_TOK}"); A.op("s_subb_u32 s85, s85, 0")
        funcs([[U[0] + q for q in range(8)], [U[1] + q for q in range(8)]])
        A.op(f"s_add_u32 s84, s84, {FN_TOK}"); A.op("s_addc_u32 s85, s85, 0")
        A.label(l)
    A.label("hop_loop")
    if prof: A.op("s_memrealtime s[64:65]")
    for i in range(2):
        for q in range(8):
            A.op(f"v_mov_b32 v{ACC[i]+q}, 0")
    if pf:
        A.op("s_lshr_b32 s82, s2, 3"); A.op("s_and_b32 s82, s82, 31")
        A.op("s_lshl_b32 s83, s6, 5"); A.op("s_add_u32 s82, s82, s83"); A.op("s_lshl_b32 s82, s82, 7")
        A.op("s_add_u32 s84, s20, s82"); A.op("s_addc_u32 s85, s21, 0")
        for b in range(1, 4):
            A.op(f"s_add_u32 s{84+2*b}, s84, {19*b*53248}"); A.op(f"s_addc_u32 s{85+2*b}, s85, 0")
    def tree(lo, hi):
        if lo == hi:
            A.op(f"s_branch hop_w{lo}"); return
        mid = (lo + hi + 1) // 2
        l = A.new("bt")
        A.op(f"s_cmp_ge_u32 s40, {mid}"); A.op(f"s_cbranch_scc1 {l}")
        tree(lo, mid - 1)
        A.label(l)
        tree(mid, hi)
    tree(0, maxpairs)
    A.label("hop_w0")
    A.op("s_branch hop_fin")
    for n in range(1, maxpairs + 1):
        A.label(f"hop_w{n}")
        steps = 2 * n
        depth = max(1, min(maxdepth, depthfn(steps), steps))
        state = {"p": None}
        def prefetch(j):
            if not pf: return
            ns = max(1, int(steps * pffrac))
            lo = min(60, (60 * j + ns - 1) // ns); hi = min(60, (60 * (j + 1) + ns - 1) // ns)
            for n_ in range(lo, hi):
                b = 84 + 2 * (n_ // 19)
                for sub in range(pf):
                    A.op(f"s_load_dword s{92 + (n_ & 1)}, s[{b}:{b+1}], {(n_ % 19) * 53248 + 64 * sub}")
        def issue(j):
            if prio:
                p = 3 - min(3, (4 * j) // steps)
                if p != state["p"]:
                    A.op(f"s_setprio {p}"); state["p"] = p
            for i in range(2):
                A.op(f"v_mad_u32_u16 v{VA + i}, v{P[i] + j//2}, s30, v8 op_sel:[{j&1},0,0,0]")
                d = DATA + 8 * (j % depth) + 4 * i
                A.op(f"buffer_load_dwordx4 v[{d}:{d+3}], v{VA + i}, s[20:23], 0 offen{ld}")
        for j in range(min(depth, steps)):
            issue(j)
        for j in range(steps):
            prefetch(j)
            out_steps = min(steps, j + depth) - j - 1
            for i in range(2):
                A.op(f"s_waitcnt vmcnt({2*out_steps + (1 - i)})")
                d = DATA + 8 * (j % depth) + 4 * i
                for q in range(ndot):
                    A.op(f"v_dot2c_f32_bf16 v{ACC[i]+2*q}, s28, v{d+q}")
                    A.op(f"v_dot2c_f32_bf16 v{ACC[i]+2*q+1}, s29, v{d+q}")
            if j + depth < steps:
                issue(j + depth)
        if n != maxpairs:
            A.op(f"s_branch hop_fin")
    A.label("hop_fin")
    if pf: A.op("s_waitcnt lgkmcnt(0)")
    if prof: A.op("s_memrealtime s[66:67]")
    if prio: A.op("s_setprio 0")
    A.op("s_cmp_eq_u32 s41, 0"); A.op("s_cbranch_scc1 hop_noovf")
    T = DATA; DD = DATA + 8
    for i in range(2):
        A.op("s_mov_b32 s52, 0")
        lg = A.new("og"); ln = A.new("on"); ll = A.new("ol"); ld = A.new("od")
        A.label(lg)
        A.op(f"s_lshl_b32 s53, s56, 4"); A.op(f"s_add_u32 s53, s53, s52"); A.op(f"s_add_u32 s53, s53, {8*i}")
        A.op("s_lshl_b32 s53, s53, 2"); A.op("v_mov_b32 v2, s53")
        A.op(f"ds_read_b32 v3, v2 offset:{L_DEG}"); A.op(f"ds_read_b32 v4, v2 offset:{L_NODE}")
        A.op("s_waitcnt lgkmcnt(0)")
        A.op("v_readfirstlane_b32 s54, v3"); A.op("v_lshlrev_b32 v4, 2, v4"); A.op("s_nop 2")
        A.op(f"s_cmp_le_u32 s54, {CAP}"); A.op(f"s_cbranch_scc1 {ln}")
        A.op(f"ds_read_b32 v4, v4 offset:{L_OVFP}")
        A.op(f"s_sub_u32 s54, s54, {CAP}")
        for q in range(8):
            A.op(f"v_mov_b32 v{T+q}, 0")
        A.op("v_lshrrev_b32 v5, 3, v0")
        A.op("s_waitcnt lgkmcnt(0)")
        A.label(ll)
        A.op("v_add_u32 v6, v4, v5"); A.op("v_lshlrev_b32 v6, 1, v6")
        A.op("buffer_load_ushort v7, v6, s[48:51], 0 offen sc1")
        A.op("v_cmp_gt_u32 vcc, s54, v5")
        A.op("v_mov_b32 v6, 0xffff")
        A.op("s_waitcnt vmcnt(0)")
        A.op("v_cndmask_b32_e64 v7, v6, v7, vcc")
        A.op("v_mad_u32_u24 v7, v7, s30, v8")
        A.op(f"buffer_load_dwordx4 v[{DD}:{DD+3}], v7, s[20:23], 0 offen sc1")
        A.op("v_add_u32 v5, 8, v5")
        A.op("s_waitcnt vmcnt(0)")
        for q in range(4):
            A.op(f"v_dot2c_f32_bf16 v{T+2*q}, s28, v{DD+q}")
            A.op(f"v_dot2c_f32_bf16 v{T+2*q+1}, s29, v{DD+q}")
        A.op("v_min_u32 v6, v5, v5")
        A.op("v_readfirstlane_b32 s55, v5"); A.op("s_nop 3")
        A.op("s_cmp_lt_u32 s55, s54"); A.op(f"s_cbranch_scc1 {ll}")
        for q in range(8):
            A.op("s_nop 1")
            A.op(f"v_add_f32_dpp v{T+q}, v{T+q}, v{T+q} row_ror:8 row_mask:0xf bank_mask:0xf")
        for q in range(8):
            A.op(f"ds_swizzle_b32 v{DD+q}, v{T+q} offset:0x401f")
        A.op("s_waitcnt lgkmcnt(0)")
        for q in range(8):
            A.op(f"v_add_f32 v{T+q}, v{T+q}, v{DD+q}")
            A.op(f"v_mov_b32 v{DD+q}, v{T+q}")
        A.op("s_nop 1")
        for q in range(8):
            A.op(f"v_permlane32_swap_b32 v{T+q}, v{DD+q}")
        A.op("s_mov_b32 s58, 0xff"); A.op("s_mov_b32 s59, 0"); A.op("s_lshl_b32 s55, s52, 3"); A.op("s_lshl_b64 s[58:59], s[58:59], s55")
        for q in range(8):
            A.op(f"v_add_f32 v{T+q}, v{T+q}, v{DD+q}")
        A.op("s_mov_b64 exec, s[58:59]")
        for q in range(8):
            A.op(f"v_add_f32 v{ACC[i]+q}, v{ACC[i]+q}, v{T+q}")
        A.op("s_mov_b64 exec, -1")
        A.label(ln)
        A.op("s_add_u32 s52, s52, 1"); A.op("s_cmp_lt_u32 s52, 8"); A.op(f"s_cbranch_scc1 {lg}")
    A.label("hop_noovf")
    for i in range(2):
        for q in range(8):
            A.op(f"v_mul_f32 v{ACC[i]+q}, v{VS+i}, v{ACC[i]+q}")
        d = DATA + 4 * i
        for q in range(4):
            A.op(f"v_cvt_pk_bf16_f32 v{d+q}, v{ACC[i]+2*q}, v{ACC[i]+2*q+1}")
        A.op(f"buffer_store_dwordx4 v[{d}:{d+3}], v{VN+i}, s[24:27], 0 offen sc0 sc1")
    A.op("s_add_u32 s36, s36, 1")
    A.op(f"s_add_u32 s20, s20, {TAB}"); A.op("s_addc_u32 s21, s21, 0")
    A.op(f"s_add_u32 s24, s24, {TAB}"); A.op("s_addc_u32 s25, s25, 0")
    A.op(f"s_cmp_ge_u32 s36, {nh}"); A.op("s_cbranch_scc1 hop_last")
    A.op("s_waitcnt vmcnt(0)")
    if prof: A.op("s_memrealtime s[68:69]")
    A.op("s_barrier")
    if prof:
        A.op("s_memrealtime s[70:71]")
        A.op("s_waitcnt lgkmcnt(0)")
        A.op("s_lshl_b32 s85, s36, 6"); A.op("s_add_u32 s85, s85, s84")
        A.op("s_mov_b64 exec, 1")
        for qi in range(4):
            A.op(f"v_mov_b32 v6, s{64+2*qi}"); A.op(f"v_mov_b32 v7, s{65+2*qi}"); A.op(f"v_mov_b32 v2, {8*qi}")
            A.op("buffer_store_dwordx2 v[6:7], v2, s[80:83], s85 offen"); A.op("s_nop 1")
        A.op("s_mov_b64 exec, -1")
    if pw: A.op("s_branch hop_barother")
    A.op("s_cmp_lg_u32 s6, 0"); A.op("s_cbranch_scc1 hop_barother")
    if bar == 'cnt':
        A.op(f"s_and_b32 s9, s8, {nshard-1}"); A.op("s_lshl_b32 s9, s9, 7")
        A.op("v_mov_b32 v2, s9"); A.op("v_mov_b32 v3, 1")
        A.op("s_mov_b64 exec, 1")
        A.op("buffer_atomic_add v3, v2, s[32:35], 0 offen sc1")
        A.op("s_mov_b64 exec, -1")
        A.op(f"v_min_u32 v5, {nshard-1}, v0"); A.op("v_lshlrev_b32 v2, 7, v5")
        A.op(f"v_sub_u32 v5, {NR + nshard - 1}, v5"); A.op(f"v_lshrrev_b32 v5, {nshard.bit_length()-1}, v5")
        A.op("v_mul_lo_u32 v5, v5, s36")
    else:
        A.op("s_lshl_b32 s9, s8, 7")
        A.op("v_mov_b32 v2, s9"); A.op("v_mov_b32 v3, s36")
        A.op("s_mov_b64 exec, 1")
        A.op("buffer_store_dword v3, v2, s[32:35], 0 offen sc0 sc1")
        A.op("s_mov_b64 exec, -1")
        A.op("v_lshlrev_b32 v2, 7, v0")
        A.op("v_add_u32 v3, 64, v0"); A.op(f"v_min_u32 v3, {NR-1}, v3"); A.op("v_lshlrev_b32 v3, 7, v3")
    A.op("v_mov_b32 v4, v2"); A.op("v_mov_b32 v9, v3"); A.op("v_mov_b32 v6, v5")
    stats()
    xpre()
    A.op("v_mov_b32 v2, v4"); A.op("v_mov_b32 v3, v9"); A.op("v_mov_b32 v5, v6")
    A.op("s_mov_b32 s37, 0")
    A.label("hop_poll")
    A.op("buffer_load_dword v4, v2, s[32:35], 0 offen sc0 sc1")
    if bar != 'cnt':
        A.op("buffer_load_dword v5, v3, s[32:35], 0 offen sc0 sc1")
    A.op("s_add_u32 s37, s37, 1"); A.op("s_cmp_ge_u32 s37, 1000000"); A.op("s_cbranch_scc1 hop_pollok")
    A.op("s_waitcnt vmcnt(0)")
    if bar == 'cnt':
        A.op("v_cmp_ge_u32 s[38:39], v4, v5")
    else:
        A.op("v_min_u32 v4, v4, v5"); A.op("v_cmp_le_u32 s[38:39], s36, v4")
    A.op("s_nop 3")
    A.op("s_cmp_eq_u64 s[38:39], -1"); A.op("s_cbranch_scc1 hop_pollok")
    if sleep: A.op(f"s_sleep {sleep}")
    A.op("s_branch hop_poll")
    A.label("hop_pollok")
    A.op("s_waitcnt vmcnt(0)")
    xpost()
    A.label("hop_barw")
    A.op("s_barrier")
    A.op("s_branch hop_loop")
    A.label("hop_barother")
    stats()
    xpre()
    xpost()
    A.op("s_branch hop_barw")
    A.label("hop_last")
    stats()
    A.op("s_endpgm")
    if pw:
        A.cmt("helper wave: L2 prefetch of this hop's source half table (own share), barrier flag and poll")
        A.label("hop_pw")
        A.op(f"s_setprio {pwprio}")
        A.op("v_and_b32 v0, 63, v0")
        A.op(f"s_mul_i32 s19, s7, {HALF}")
        A.op("s_add_u32 s20, s4, s19"); A.op("s_addc_u32 s21, s5, 0")
        A.op(f"s_mov_b32 s22, {HALF}"); A.op("s_mov_b32 s23, 0x20000")
        A.op(f"s_mul_i32 s19, s7, {128*128}"); A.op(f"s_add_u32 s19, s19, {OFF_CNT}")
        A.op("s_add_u32 s32, s4, s19"); A.op("s_addc_u32 s33, s5, 0")
        A.op(f"s_mov_b32 s34, {128*128}"); A.op("s_mov_b32 s35, 0x20000")
        A.op("s_lshr_b32 s9, s2, 3"); A.op("s_and_b32 s9, s9, 31"); A.op("s_lshl_b32 s9, s9, 7")
        A.op("v_lshlrev_b32 v2, 12, v0"); A.op("v_add_u32 v2, s9, v2")
        A.op("v_lshlrev_b32 v10, 7, v0")
        A.op("v_add_u32 v11, 64, v0"); A.op(f"v_min_u32 v11, {NR-1}, v11"); A.op("v_lshlrev_b32 v11, 7, v11")
        A.op("s_lshl_b32 s9, s8, 7"); A.op("v_mov_b32 v12, s9")
        A.op("s_mov_b32 s36, 0")
        A.label("pw_hop")
        for i in range(13 if pw == 1 else 0):
            A.op(f"v_add_u32 v3, {i*64*4096}, v2")
            A.op(f"buffer_load_dword v{20+i}, v3, s[20:23], 0 offen sc1")
            if pwsleep: A.op(f"s_sleep {pwsleep}")
        A.op("s_add_u32 s36, s36, 1")
        A.op(f"s_add_u32 s20, s20, {TAB}"); A.op("s_addc_u32 s21, s21, 0")
        A.op(f"s_cmp_ge_u32 s36, {nh}"); A.op("s_cbranch_scc1 hops_done")
        A.op("s_waitcnt vmcnt(0)")
        A.op("s_barrier")
        A.op("v_mov_b32 v13, s36")
        A.op("s_mov_b64 exec, 1")
        A.op("buffer_store_dword v13, v12, s[32:35], 0 offen sc0 sc1")
        A.op("s_mov_b64 exec, -1")
        A.op("s_mov_b32 s37, 0")
        A.label("pw_poll")
        A.op("buffer_load_dword v4, v10, s[32:35], 0 offen sc0 sc1")
        A.op("buffer_load_dword v5, v11, s[32:35], 0 offen sc0 sc1")
        A.op("s_add_u32 s37, s37, 1"); A.op("s_cmp_ge_u32 s37, 1000000"); A.op("s_cbranch_scc1 pw_ok")
        A.op("s_waitcnt vmcnt(0)")
        A.op("v_min_u32 v4, v4, v5"); A.op("v_cmp_le_u32 s[38:39], s36, v4")
        A.op("s_nop 3")
        A.op("s_cmp_eq_u64 s[38:39], -1"); A.op("s_cbranch_scc1 pw_ok")
        if sleep: A.op(f"s_sleep {sleep}")
        A.op("s_branch pw_poll")
        A.label("pw_ok")
        A.op("s_waitcnt vmcnt(0)")
        A.op("s_barrier")
        A.op("s_branch pw_hop")
    if rtt:
        A.label("hop_rtt")
        A.op("s_setprio 3")
        srd(A, 80, 4, 4 << 20, 96 << 20)
        srd(A, 32, 4, CNT_BYTES, OFF_CNT)
        A.op("s_lshl_b32 s84, s2, 10")
        A.op("v_and_b32 v0, 63, v0"); A.op("v_lshlrev_b32 v2, 7, v0"); A.op("v_and_b32 v2, 0x3fff, v2")
        A.op("s_mov_b32 s36, 0")
        A.label("rtt_hop")
        for i in range(rtt):
            A.op("s_memrealtime s[64:65]"); A.op("s_waitcnt lgkmcnt(0)")
            A.op("buffer_load_dword v4, v2, s[32:35], 0 offen sc0 sc1")
            A.op("s_waitcnt vmcnt(0)")
            A.op("s_memrealtime s[66:67]"); A.op("s_waitcnt lgkmcnt(0)")
            A.op("s_sub_u32 s66, s66, s64")
            A.op("s_mov_b64 exec, 1")
            A.op("v_mov_b32 v6, s66"); A.op("v_mov_b32 v7, s64"); A.op("s_lshl_b32 s85, s36, 7"); A.op("s_add_u32 s85, s85, s84"); A.op(f"v_mov_b32 v5, {8*i}")
            A.op("buffer_store_dwordx2 v[6:7], v5, s[80:83], s85 offen")
            A.op("s_mov_b64 exec, -1")
            A.op("s_sleep 6")
        A.op("s_add_u32 s36, s36, 1")
        A.op(f"s_cmp_ge_u32 s36, {nh}"); A.op("s_cbranch_scc1 hops_done")
        A.op("s_barrier"); A.op("s_barrier")
        A.op("s_branch rtt_hop")
    A.label("hops_done")
    A.op("s_endpgm")
    A.label("hops_wprep")
    wl = prep.gen_wprep(A, 64 * NW, 250)
    return dict(name=name, grid=252, block=64 * NWB, lds=max(L_END, wl), vgpr=nv, sgpr=96 if (prof or pf or rtt or fn or xin) else 80)
```
